```python
import torch

def _softmax(x, axis=-1):
    return torch.softmax(x, dim=axis)
def _gelu(x):
    return torch.nn.functional.gelu(x, approximate="tanh")
def _silu(x):
    return torch.nn.functional.silu(x)
def _sigmoid(x):
    return torch.sigmoid(x)
def _layernorm(x, axis=-1, eps=1e-5):
    m = x.mean(dim=axis, keepdim=True)
    v = x.var(dim=axis, keepdim=True, unbiased=False)
    return (x - m) / torch.sqrt(v + eps)
def _scatter_add(tgt, idx, src, axis=0):
    return tgt.clone().index_add_(axis, idx, src)
def _segment_sum(src, seg, n):
    out = torch.zeros((n,) + src.shape[1:], dtype=src.dtype)
    return out.index_add_(0, seg, src)
def _pad(x, pw):
    flat = tuple(v for pair in reversed(pw) for v in pair)
    return torch.nn.functional.pad(x, flat)

kernel_name = 'standalone__layernorm_linear__sampling'

def setup_inputs():

    _w = (lambda a: (lambda t: t.to(torch.bfloat16) if t.is_floating_point() else t)(torch.as_tensor(a)))
    B, S, D = 1024, 8, 576
    return {
        "x": _w((lambda *s: torch.randn(*s, dtype=torch.bfloat16) * 0.05)(B, S, D)),
        "g": _w((lambda *s: torch.randn(*s, dtype=torch.bfloat16) * 0.05)(D) + 1.0),
        "b": _w((lambda *s: torch.randn(*s, dtype=torch.bfloat16) * 0.4)(D)),
        "w": _w((lambda *s: torch.randn(*s, dtype=torch.bfloat16) * 0.05)(D, D)),
    }

def reference(x, g, b, w):
    return (_layernorm(x, axis=-1) * g + b) @ w
```

```python
import sys
NAME = "standalone__layernorm_linear__sampling"
out = []
def e(s): out.append("    " + s)
def lbl(s): out.append(s + ":")

HDR = open("cdna_kernels/%s.s.ref" % NAME).read().split("; Override launch")[0]

LDS_W = 0
LDS_STG = 147456
LDS_TOTAL = 163840

X0 = 16
G0 = 160
B0 = 196
T0 = 232
AX = 0
AC = 144

e("s_cmp_ge_u32 s2, 256")
e("s_cbranch_scc1 L_end")
e("s_load_dwordx4 s[4:7], s[0:1], 0")
e("s_load_dwordx4 s[8:11], s[0:1], 16")
e("s_load_dwordx2 s[12:13], s[0:1], 32")
e("v_lshrrev_b32 v1, 6, v0")
e("v_and_b32 v0, 63, v0")
e("s_nop 0")
e("v_readfirstlane_b32 s36, v1")
e("s_and_b32 s37, s2, 7")
e("s_lshl_b32 s37, s37, 3")
e("s_lshr_b32 s40, s2, 5")
e("s_add_u32 s37, s37, s40")
e("s_lshr_b32 s38, s2, 3")
e("s_and_b32 s38, s38, 3")
e("s_lshl_b32 s39, s37, 7")
e("s_lshl_b32 s40, s36, 5")
e("s_add_u32 s39, s39, s40")
e("v_and_b32 v2, 7, v0")
e("v_lshrrev_b32 v3, 3, v0")
e("v_lshlrev_b32 v4, 4, v2")
e("v_mul_u32_u24 v5, 1152, v3")
e("v_add_u32 v5, v5, v4")
e("s_mul_i32 s41, s39, 1152")
e("s_waitcnt lgkmcnt(0)")
def srd(d, b, n):
    e(f"s_mov_b32 s{d}, s{b}")
    e(f"s_and_b32 s{d+1}, s{b+1}, 0xffff")
    e(f"s_mov_b32 s{d+2}, {n}")
    e(f"s_mov_b32 s{d+3}, 0x00020000")
srd(16, 4, 8192*1152)
srd(20, 6, 1152)
srd(24, 8, 1152)
srd(28, 10, 576*1152)
srd(32, 12, 8192*1152)
for rg in range(4):
    e(f"s_add_u32 s{42+rg}, s41, {rg*8*1152}")
for kc in range(9):
    for rg in range(4):
        r = X0 + (kc*4+rg)*4
        e(f"buffer_load_dwordx4 v[{r}:{r+3}], v5, s[16:19], s{42+rg} offen offset:{kc*128}")
for kc in range(9):
    e(f"buffer_load_dwordx4 v[{G0+kc*4}:{G0+kc*4+3}], v4, s[20:23], 0 offen offset:{kc*128}")
    e(f"buffer_load_dwordx4 v[{B0+kc*4}:{B0+kc*4+3}], v4, s[24:27], 0 offen offset:{kc*128}")
e("s_movk_i32 s46, 3641")
for j in range(9):
    e(f"v_add_u32 v{T0}, {64*j}, v0")
    e(f"v_mul_lo_u32 v{T0+1}, v{T0}, s46")
    e(f"v_lshrrev_b32 v{T0+1}, 16, v{T0+1}")
    e(f"v_mul_u32_u24 v{T0+2}, 18, v{T0+1}")
    e(f"v_sub_u32 v{T0+2}, v{T0}, v{T0+2}")
    e(f"v_and_b32 v{T0+3}, 0x13, v{T0+1}")
    e(f"v_and_b32 v{T0+4}, 4, v{T0+1}")
    e(f"v_lshlrev_b32 v{T0+4}, 1, v{T0+4}")
    e(f"v_or_b32 v{T0+3}, v{T0+3}, v{T0+4}")
    e(f"v_and_b32 v{T0+4}, 8, v{T0+1}")
    e(f"v_lshrrev_b32 v{T0+4}, 1, v{T0+4}")
    e(f"v_or_b32 v{T0+3}, v{T0+3}, v{T0+4}")
    e(f"v_mul_u32_u24 v{T0+3}, 1152, v{T0+3}")
    e(f"v_lshlrev_b32 v{T0+2}, 4, v{T0+2}")
    e(f"v_add_u32 v{6+j}, v{T0+3}, v{T0+2}")
e("s_mul_i32 s47, s38, 288")
e("s_mul_i32 s48, s36, 36864")
e("s_add_u32 s47, s47, s48")
e("s_mul_i32 s48, s36, 9216")
def dma_block(sg, sl, extra_g, extra_l):
    e(f"s_add_u32 s50, s{sg}, {extra_g}")
    for j in range(9):
        e(f"s_add_u32 m0, s{sl}, {extra_l + j*1024}")
        e("s_nop 0")
        e(f"buffer_load_dwordx4 v{6+j}, s[28:31], s50 offen lds")
for i in range(4):
    dma_block(47, 48, i*4*36864, i*4*9216)

e("s_waitcnt vmcnt(36)")
S1 = T0; S2 = T0+4
e("s_mov_b32 s51, 0x3f803f80")
for rg in range(4):
    e(f"v_mov_b32 v{S1+rg}, 0")
    e(f"v_mov_b32 v{S2+rg}, 0")
for kc in range(9):
    for i in range(4):
        for rg in range(4):
            r = X0 + (kc*4+rg)*4 + i
            e(f"v_dot2_f32_bf16 v{S1+rg}, v{r}, s51, v{S1+rg}")
            e(f"v_dot2_f32_bf16 v{S2+rg}, v{r}, v{r}, v{S2+rg}")
e("s_nop 3")
for mod in ["quad_perm:[1,0,3,2]", "quad_perm:[2,3,0,1]", "row_half_mirror"]:
    for i in range(8):
        e(f"v_add_f32_dpp v{T0+8+i}, v{T0+i}, v{T0+i} {mod} row_mask:0xf bank_mask:0xf")
    for i in range(8):
        e(f"v_mov_b32 v{T0+i}, v{T0+8+i}")
    e("s_nop 1")
e("s_mov_b32 s52, 0x3ae38e39")
e("s_mov_b32 s53, 0x3727c5ac")
for rg in range(4):
    m = S1+rg; q = S2+rg; t = T0+8
    e(f"v_mul_f32 v{m}, s52, v{m}")
    e(f"v_mul_f32 v{q}, s52, v{q}")
    e(f"v_fma_f32 v{q}, -v{m}, v{m}, v{q}")
    e(f"v_max_f32 v{q}, 0, v{q}")
    e(f"v_cvt_pk_bf16_f32 v{t}, v{m}, v{q}")
    e(f"v_lshlrev_b32 v{m}, 16, v{t}")
    e(f"v_and_b32 v{q}, 0xffff0000, v{t}")
    e(f"v_add_f32 v{q}, s53, v{q}")
    e(f"v_cvt_pk_bf16_f32 v{t}, v{q}, v{q}")
    e(f"v_lshlrev_b32 v{q}, 16, v{t}")
    e(f"v_sqrt_f32 v{q}, v{q}")
    e("s_nop 0")
    e(f"v_cvt_pk_bf16_f32 v{t}, v{q}, v{q}")
    e(f"v_lshlrev_b32 v{q}, 16, v{t}")
    e(f"v_rcp_f32 v{q}, v{q}")
    e("s_nop 0")
    e(f"v_mul_f32 v{m}, v{m}, v{q}")
    e(f"v_sub_f32 v{m}, 0, v{m}")
e(f"s_lshl_b32 s54, s36, 12")
e(f"s_add_u32 s54, s54, {LDS_STG}")
e("v_lshrrev_b32 v1, 4, v0")
e("v_xor_b32 v15, v2, v1")
e("v_lshlrev_b32 v15, 4, v15")
e("v_lshl_add_u32 v15, v3, 7, v15")
e("v_add_u32 v15, s54, v15")
e(f"v_xor_b32 v{T0+23}, 64, v15")
e(f"v_and_b32 v{T0+22}, 15, v0")
e(f"v_lshrrev_b32 v{T0+21}, 1, v{T0+22}")
e(f"v_xor_b32 v{T0+21}, v{T0+21}, v1")
e(f"v_lshlrev_b32 v{T0+21}, 4, v{T0+21}")
e(f"v_lshl_add_u32 v{T0+21}, v{T0+22}, 7, v{T0+21}")
e(f"v_add_u32 v{T0+21}, s54, v{T0+21}")
e(f"v_xor_b32 v{T0+20}, 64, v{T0+21}")
WA = [15, T0+23]
RA = [T0+21, T0+20]
for kc in range(9):
    for i in range(4):
        gl, gh, bl, bh = T0+8, T0+9, T0+10, T0+11
        e(f"v_lshlrev_b32 v{gl}, 16, v{G0+kc*4+i}")
        e(f"v_and_b32 v{gh}, 0xffff0000, v{G0+kc*4+i}")
        e(f"v_lshlrev_b32 v{bl}, 16, v{B0+kc*4+i}")
        e(f"v_and_b32 v{bh}, 0xffff0000, v{B0+kc*4+i}")
        for rg in range(4):
            r = X0 + (kc*4+rg)*4 + i
            lo, hi = T0+12+2*(rg&1), T0+13+2*(rg&1)
            e(f"v_lshlrev_b32 v{lo}, 16, v{r}")
            e(f"v_and_b32 v{hi}, 0xffff0000, v{r}")
            e(f"v_fma_f32 v{lo}, v{lo}, v{S2+rg}, v{S1+rg}")
            e(f"v_fma_f32 v{hi}, v{hi}, v{S2+rg}, v{S1+rg}")
            e(f"v_fma_f32 v{lo}, v{lo}, v{gl}, v{bl}")
            e(f"v_fma_f32 v{hi}, v{hi}, v{gh}, v{bh}")
            e(f"v_cvt_pk_bf16_f32 v{r}, v{lo}, v{hi}")
    for rg in range(4):
        r = X0 + (kc*4+rg)*4
        e(f"ds_write_b128 v{WA[rg&1]}, v[{r}:{r+3}] offset:{rg*1024}")
    for sp in range(2):
        for T in range(2):
            a = AX + ((kc*2+sp)*2+T)*4
            e(f"ds_read_b128 a[{a}:{a+3}], v{RA[sp]} offset:{T*2048}")
for i in range(72):
    e(f"v_accvgpr_write_b32 a{AC+i}, 0")
e("v_lshrrev_b32 v16, 5, v0")
e("v_lshlrev_b32 v16, 4, v16")
e("v_bfe_u32 v17, v0, 4, 1")
e("v_lshl_add_u32 v16, v17, 2, v16")
e("v_bfe_u32 v17, v0, 2, 2")
e("v_add_u32 v16, v16, v17")
e("v_mul_u32_u24 v16, 288, v16")
e("v_and_b32 v17, 3, v0")
e("v_lshl_add_u32 v16, v17, 3, v16")
e("s_waitcnt vmcnt(0) lgkmcnt(0)")
e("s_barrier")
WB = 24
NB = 6
PD = 4
frags = [(s, t) for s in range(18) for t in range(9)]
def slot_of(s): return s if s < 16 else s-16
def issue(fi):
    s, t = frags[fi]
    if t == 0:
        e(f"v_add_u32 v{18+(s&1)}, {LDS_W + slot_of(s)*9216}, v16")
    b = WB + (fi % NB)*4
    e(f"ds_read_b64_tr_b16 v[{b}:{b+1}], v{18+(s&1)} offset:{t*32}")
    e(f"ds_read_b64_tr_b16 v[{b+2}:{b+3}], v{18+(s&1)} offset:{2304+t*32}")
issued = 0
def run(lo, hi):
    global issued
    issued = lo
    for fi in range(lo, hi):
        while issued < min(hi, fi+PD+1):
            issue(issued); issued += 1
        pend = (issued - fi - 1)*2
        e(f"s_waitcnt lgkmcnt({pend})")
        s, t = frags[fi]
        b = WB + (fi % NB)*4
        for T in range(2):
            a = AX + (s*2+T)*4
            c = AC + (T*9+t)*4
            e(f"v_mfma_f32_16x16x32_bf16 a[{c}:{c+3}], v[{b}:{b+3}], a[{a}:{a+3}], a[{c}:{c+3}]")
run(0, 18)
e("s_barrier")
e("s_cmp_ge_u32 s36, 2")
e("s_cbranch_scc1 L_skip_dma")
dma_block(47, 48, 16*36864, 0)
lbl("L_skip_dma")
run(18, 16*9)
e("s_waitcnt vmcnt(0)")
e("s_barrier")
run(16*9, 18*9)
e("s_barrier")
e("s_mul_i32 s54, s36, 9728")
e("v_and_b32 v20, 15, v0")
e("v_mul_u32_u24 v20, 304, v20")
e("v_lshrrev_b32 v21, 4, v0")
e("v_lshl_add_u32 v20, v21, 3, v20")
e("v_add_u32 v20, s54, v20")
e("s_nop 7")
e("s_nop 7")
for T in range(2):
    for t in range(9):
        c = AC + (T*9+t)*4
        r = 48 + ((T*9+t) % 4)*8
        for i in range(4):
            e(f"v_accvgpr_read_b32 v{r+i}, a{c+i}")
        e(f"v_cvt_pk_bf16_f32 v{r+4}, v{r}, v{r+1}")
        e(f"v_cvt_pk_bf16_f32 v{r+5}, v{r+2}, v{r+3}")
        e(f"ds_write_b64 v20, v[{r+4}:{r+5}] offset:{T*16*304 + t*32}")
e("s_mul_i32 s55, s38, 288")
e("s_add_u32 s55, s55, s41")
for j in range(9):
    e(f"v_add_u32 v{T0}, {64*j}, v0")
    e(f"v_mul_lo_u32 v{T0+1}, v{T0}, s46")
    e(f"v_lshrrev_b32 v{T0+1}, 16, v{T0+1}")
    e(f"v_mul_u32_u24 v{T0+2}, 18, v{T0+1}")
    e(f"v_sub_u32 v{T0+2}, v{T0}, v{T0+2}")
    e(f"v_lshlrev_b32 v{T0+2}, 4, v{T0+2}")
    e(f"v_mul_u32_u24 v{T0+3}, 304, v{T0+1}")
    e(f"v_add3_u32 v{T0+3}, v{T0+3}, v{T0+2}, s54")
    e(f"v_mul_u32_u24 v{T0+4}, 1152, v{T0+1}")
    e(f"v_add_u32 v{100+j}, v{T0+4}, v{T0+2}")
    e(f"ds_read_b128 v[{112+j*4}:{112+j*4+3}], v{T0+3}")
for j in range(9):
    e(f"s_waitcnt lgkmcnt({8-j})")
    e(f"buffer_store_dwordx4 v[{112+j*4}:{112+j*4+3}], v{100+j}, s[32:35], s55 offen")
lbl("L_end")

text = HDR + f"""; @launch grid=(256,1,1) block=(256,1,1) lds={LDS_TOTAL}
.amdgcn_target "amdgcn-amd-amdhsa--gfx950"
.text
.globl {NAME}_kernel
.p2align 8
.type {NAME}_kernel,@function
{NAME}_kernel:
""" + "\n".join(out) + f"""
    s_endpgm
.section .rodata,"a"
.p2align 6
.amdhsa_kernel {NAME}_kernel
  .amdhsa_next_free_vgpr 472
  .amdhsa_next_free_sgpr 64
  .amdhsa_accum_offset 256
  .amdhsa_group_segment_fixed_size 0
  .amdhsa_kernarg_size 56
  .amdhsa_user_sgpr_count 2
  .amdhsa_user_sgpr_kernarg_segment_ptr 1
  .amdhsa_system_sgpr_workgroup_id_x 1
.end_amdhsa_kernel
"""
open(sys.argv[1] if len(sys.argv) > 1 else "cdna_kernels/%s.s" % NAME, "w").write(text)
```

```python
import sys, os
NAME = "standalone__layernorm_linear__sampling"
opts = dict(a.split("=") for a in sys.argv[2:] if "=" in a)
STAMP = int(opts.get("stamp", 0))
STATS = opts.get("stats", "plain")
XFLAG = opts.get("xflag", "")
WFLAG = opts.get("wflag", "")
OFLAG = opts.get("oflag", "")
BARPOS = int(opts.get("barpos", 3))
PPRIO = int(opts.get("pprio", 0))
CPRIO = int(opts.get("cprio", 0))
LPRIO = int(opts.get("lprio", 0))
ROT = int(opts.get("rot", 1))
NL = int(opts.get("nl", 2))
XD = int(opts.get("xd", 4))
NW = 8 + NL
out = []
def e(s): out.append("    " + s)
def lbl(s): out.append(s + ":")
HDR = open("cdna_kernels/%s.s.ref" % NAME).read().split("; Override launch")[0]

XS = 12288; WS = 24576; WBASE = 49152
AUX = 147456; AUXP = 1184
STATT = 151040
OUTT = 49152 + 24576
OUTP = 400
LDS_TOTAL = 152064

nst = {"c": 0, "p": 0, "l": 0}
def stamp(role, rt=False):
    if STAMP != 1: return
    i = nst[role]; nst[role] += 1
    e(f"s_mem{'real' if rt else ''}time s[{70+2*i}:{71+2*i}]")
    e("s_waitcnt lgkmcnt(0)")
def st2():
    if STAMP != 2: return
    e("s_memtime s[70:71]")
    e("s_waitcnt lgkmcnt(0)")
    e("s_mov_b32 m0, s69"); e("s_nop 0"); e("v_writelane_b32 v167, s70, m0")
    e("s_add_u32 s69, s69, 1")
def bar():
    st2(); e("s_barrier"); st2()
def srd(d, b, n):
    e(f"s_mov_b32 s{d}, s{b}")
    e(f"s_and_b32 s{d+1}, s{b+1}, 0xffff")
    e(f"s_mov_b32 s{d+2}, {n}")
    e(f"s_mov_b32 s{d+3}, 0x00020000")
def finalize_stats(m, q, t):
    e(f"v_mul_f32 v{m}, 0x3ae38e39, v{m}")
    e(f"v_mul_f32 v{q}, 0x3ae38e39, v{q}")
    e(f"v_fma_f32 v{q}, -v{m}, v{m}, v{q}")
    e(f"v_max_f32 v{q}, 0, v{q}")
    e(f"v_cvt_pk_bf16_f32 v{t}, v{m}, v{q}")
    e(f"v_lshlrev_b32 v{m}, 16, v{t}")
    e(f"v_and_b32 v{q}, 0xffff0000, v{t}")
    e(f"v_add_f32 v{q}, 0x3727c5ac, v{q}")
    e(f"v_cvt_pk_bf16_f32 v{t}, v{q}, v{q}")
    e(f"v_lshlrev_b32 v{q}, 16, v{t}")
    e(f"v_sqrt_f32 v{q}, v{q}")
    e("s_nop 0")
    e(f"v_cvt_pk_bf16_f32 v{t}, v{q}, v{q}")
    e(f"v_lshlrev_b32 v{q}, 16, v{t}")
    e(f"v_rcp_f32 v{q}, v{q}")
    e("s_nop 0")
    e(f"v_mul_f32 v{m}, v{m}, v{q}")
    e(f"v_sub_f32 v{m}, 0, v{m}")
def kappas():
    e("s_mov_b32 s54, s39")
    for j in range(1, 9):
        e(f"s_add_u32 s{54+j}, s{53+j}, 128")
        e(f"s_cmp_eq_u32 s{54+j}, 1152")
        e(f"s_cselect_b32 s{54+j}, 0, s{54+j}")

e("s_cmp_ge_u32 s2, 255")
e("s_cbranch_scc1 L_end")
if STAMP == 1:
    e("s_memrealtime s[70:71]"); e("s_memtime s[72:73]"); e("s_waitcnt lgkmcnt(0)")
    nst = {"c": 2, "p": 2, "l": 2}
if STAMP == 2:
    e("s_mov_b32 s69, 0"); e("v_mov_b32 v167, 0"); st2()
e("s_load_dwordx4 s[4:7], s[0:1], 0")
e("s_load_dwordx4 s[8:11], s[0:1], 16")
e("s_load_dwordx2 s[12:13], s[0:1], 32")
if STAMP: e("s_load_dwordx2 s[14:15], s[0:1], 48")
e("v_lshrrev_b32 v1, 6, v0")
e("v_and_b32 v0, 63, v0")
e("s_and_b32 s3, s2, 7")
e("v_readfirstlane_b32 s36, v1")
e("s_lshr_b32 s40, s2, 3")
e("s_lshl_b32 s41, s3, 1")
e("s_add_u32 s41, s41, s40")
e("s_sub_u32 s41, s41, 30")
e("s_mul_i32 s42, s3, 10")
e("s_cmp_ge_u32 s40, 30")
e("s_cselect_b32 s40, s41, s40")
e("s_cselect_b32 s42, 80, s42")
e("s_mul_i32 s41, s40, 43")
e("s_lshr_b32 s41, s41, 7")
e("s_mul_i32 s43, s41, 3")
e("s_sub_u32 s38, s40, s43")
e("s_add_u32 s37, s42, s41")
if ROT:
    e("s_mul_i32 s39, s38, 3")
    e("s_add_u32 s39, s39, s41")
    e("s_sub_u32 s43, s39, 9")
    e("s_cmp_ge_u32 s39, 9")
    e("s_cselect_b32 s39, s43, s39")
else:
    e("s_mov_b32 s39, 0")
e(f"s_mul_i32 s40, s37, {96*1152}")
e("s_mul_i32 s41, s38, 384")
e("s_lshl_b32 s39, s39, 7")
e("s_cmp_ge_u32 s36, 8")
e("s_cbranch_scc1 L_load")
e("s_cmp_ge_u32 s36, 4")
e("s_cbranch_scc1 L_prod")

ACC = 20; XF = 104; WF = 132
if CPRIO: e(f"s_setprio {CPRIO}")
e("v_and_b32 v1, 15, v0")
e("v_lshrrev_b32 v2, 4, v0")
e("v_lshlrev_b32 v3, 4, v0")
e("s_waitcnt lgkmcnt(0)")
srd(16, 4, 8192*1152)
srd(20, 6, 1152)
srd(32, 12, 8192*1152)
e("s_cmp_eq_u32 s36, 3")
e("s_cbranch_scc1 C_auxdone")
e("s_cmp_eq_u32 s36, 2")
e("s_cbranch_scc1 C_extra")
e("s_cmp_eq_u32 s36, 1")
e("s_cselect_b32 s44, s8, s6")
e("s_cselect_b32 s45, s9, s7")
e("s_and_b32 s45, s45, 0xffff")
e("s_mov_b32 s46, 1152")
e("s_mov_b32 s47, 0x00020000")
e(f"buffer_load_dwordx4 v[{XF}:{XF+3}], v3, s[44:47], 0 offen")
e(f"buffer_load_dwordx4 v[{XF+4}:{XF+7}], v3, s[44:47], 0 offen offset:1024")
e(f"s_mul_i32 s48, s36, {AUXP}")
e(f"s_add_u32 s48, s48, {AUX}")
e("v_add_u32 v4, s48, v3")
e("s_waitcnt vmcnt(1)")
e(f"ds_write_b128 v4, v[{XF}:{XF+3}]")
e("s_waitcnt vmcnt(0)")
e("s_mov_b64 exec, 0xff")
e(f"ds_write_b128 v4, v[{XF+4}:{XF+7}] offset:1024")
e("s_mov_b64 exec, -1")
e("s_branch C_auxdone")
lbl("C_extra")
e("s_add_u32 s48, s37, 8160")
e("s_mul_i32 s48, s48, 1152")
e(f"buffer_load_dwordx4 v[{XF}:{XF+3}], v3, s[16:19], s48 offen")
e(f"buffer_load_dwordx4 v[{XF+8}:{XF+11}], v3, s[20:23], 0 offen")
e(f"buffer_load_dwordx4 v[{XF+12}:{XF+15}], v3, s[20:23], 0 offen offset:1024")
for i in range(4): e(f"v_mov_b32 v{XF+4+i}, 0")
e("s_mov_b64 exec, 0xff")
e(f"buffer_load_dwordx4 v[{XF+4}:{XF+7}], v3, s[16:19], s48 offen offset:1024")
e("s_mov_b64 exec, -1")
e("v_mov_b32 v8, 0"); e("v_mov_b32 v9, 0")
e(f"v_add_u32 v4, {AUX + 2*AUXP}, v3")
e("s_waitcnt vmcnt(0)")
for i in range(8):
    x = XF+i; g = XF+8+i
    e(f"v_lshlrev_b32 v10, 16, v{x}")
    e(f"v_and_b32 v11, 0xffff0000, v{x}")
    e(f"v_lshlrev_b32 v12, 16, v{g}")
    e(f"v_and_b32 v13, 0xffff0000, v{g}")
    e("v_add_f32 v8, v8, v10")
    e("v_fmac_f32 v9, v10, v10")
    e("v_add_f32 v8, v8, v11")
    e("v_fmac_f32 v9, v11, v11")
    e("v_mul_f32 v10, v10, v12")
    e("v_mul_f32 v11, v11, v13")
    e(f"v_cvt_pk_bf16_f32 v{x}, v10, v11")
e(f"ds_write_b128 v4, v[{XF}:{XF+3}]")
e("s_mov_b64 exec, 0xff")
e(f"ds_write_b128 v4, v[{XF+4}:{XF+7}] offset:1024")
e("s_mov_b64 exec, -1")
for mod in ["quad_perm:[1,0,3,2]", "quad_perm:[2,3,0,1]", "row_half_mirror", "row_mirror"]:
    e("s_nop 1")
    e(f"v_add_f32_dpp v10, v8, v8 {mod} row_mask:0xf bank_mask:0xf")
    e(f"v_add_f32_dpp v11, v9, v9 {mod} row_mask:0xf bank_mask:0xf")
    e("v_mov_b32 v8, v10"); e("v_mov_b32 v9, v11")
e("s_nop 1")
for r, base in ((8, 48), (9, 52)):
    for k in range(4): e(f"v_readlane_b32 s{base+k}, v{r}, {16*k}")
e("s_nop 3")
for r, base in ((8, 48), (9, 52)):
    e(f"v_mov_b32 v{r}, s{base}")
    for k in range(1, 4): e(f"v_add_f32 v{r}, s{base+k}, v{r}")
finalize_stats(8, 9, 10)
e(f"v_mov_b32 v10, {STATT + 98*8}")
e("ds_write_b64 v10, v[8:9]")
lbl("C_auxdone")
e("v_lshrrev_b32 v4, 1, v1")
e("v_xor_b32 v4, v4, v2")
e("v_lshlrev_b32 v4, 4, v4")
e("v_lshl_add_u32 v4, v1, 7, v4")
e("v_xor_b32 v5, 64, v4")
e("v_bfe_u32 v6, v0, 2, 2")
e("v_lshl_add_u32 v7, v2, 3, v6")
e("v_mul_u32_u24 v7, 384, v7")
e("v_and_b32 v8, 3, v0")
e("v_lshl_add_u32 v7, v8, 3, v7")
e(f"v_add_u32 v7, {WBASE}, v7")
e("v_lshrrev_b32 v6, 1, v6")
e("v_and_b32 v8, 1, v2")
e("v_lshl_or_b32 v6, v8, 1, v6")
e("s_mul_i32 s48, s36, 3")
for t in range(3):
    e(f"s_add_u32 s49, s48, {t}")
    e(f"v_xor_b32 v8, s49, v6")
    e(f"v_lshl_add_u32 v{9+t}, v8, 5, v7")
e("v_min_u32 v12, 2, v1")
e(f"v_mul_u32_u24 v12, {AUXP}, v12")
e("v_lshl_add_u32 v12, v2, 4, v12")
e(f"v_add_u32 v12, {AUX}, v12")
for i in range(84): e(f"v_mov_b32 v{ACC+i}, 0")
def set_addr():
    e("v_add_u32 v13, s50, v4")
    e("v_add_u32 v14, s50, v5")
    for t in range(3): e(f"v_add_u32 v{15+t}, s51, v{9+t}")
    e("v_add_u32 v18, s39, v12")
def xread(sp, T):
    x = XF + T*4
    if T < 6: return f"ds_read_b128 v[{x}:{x+3}], v{13+sp} offset:{T*2048}"
    return f"ds_read_b128 v[{x}:{x+3}], v18 offset:{sp*64}"
def wreads(sp):
    r = []
    for t in range(3):
        w = WF + (sp*3+t)*4
        r.append(f"ds_read_b64_tr_b16 v[{w}:{w+1}], v{15+t} offset:{sp*12288}")
        r.append(f"ds_read_b64_tr_b16 v[{w+2}:{w+3}], v{15+t} offset:{sp*12288+1536}")
    return r
def mf(sp, T, t):
    c = ACC + (T*3+t)*4; w = WF + (sp*3+t)*4; x = XF + T*4
    return f"v_mfma_f32_16x16x32_bf16 v[{c}:{c+3}], v[{w}:{w+3}], v[{x}:{x+3}], v[{c}:{c+3}]"
e("s_mov_b32 s50, 0"); e("s_mov_b32 s51, 0"); e("s_mov_b32 s52, 0")
set_addr()
e("s_waitcnt lgkmcnt(0)")
stamp("c")
bar()
stamp("c")
body = []
def tail_reads_order():
    pass
w1 = wreads(1)
for T in range(7):
    for t in range(3):
        body.append(("m", [("x", 0, T)] + [("w", 0, t)], mf(0, T, t)))
        k = T*3+t
        if k < 6: body.append(("r", ("w", 1, k//2), w1[k]))
    body.append(("r", ("x", 1, T), xread(1, T)))
w0 = wreads(0)
pend = []
for T in range(7):
    if T == BARPOS:
        body.append(("adv",))
        body.append(("bar",))
        pend = [("r", ("w", 0, k//2), w0[k]) for k in range(6)]
        pend = pend[0:2] + [("r", ("x", 0, 0), xread(0, 0))] + pend[2:6] + [("r", ("x", 0, TT), xread(0, TT)) for TT in range(1, BARPOS)]
    for t in range(3):
        body.append(("m", [("x", 1, T)] + [("w", 1, t)], mf(1, T, t)))
        if pend: body.append(pend.pop(0))
    if T >= BARPOS: pend.append(("r", ("x", 0, T), xread(0, T)))
while pend: body.append(pend.pop(0))
bi = [i for i, it in enumerate(body) if it[0] == "bar"][0]
init_reads = [it for it in body[bi:] if it[0] == "r"]
for it in init_reads: e(it[2])
lbl("C_loop")
seq = [it[1] for it in init_reads]
cur_out = None
lastwait = None
for it in body:
    if it[0] == "r":
        e(it[2]); seq.append(it[1])
    elif it[0] == "m":
        idx = max(max(i for i, tg in enumerate(seq) if tg == need) for need in it[1])
        n = len(seq) - 1 - idx
        done_upto = len(seq) - 1 - n
        if lastwait is None or done_upto > lastwait:
            e(f"s_waitcnt lgkmcnt({min(n,15)})"); lastwait = done_upto
        e(it[2])
    elif it[0] == "adv":
        e(f"s_add_u32 s50, s50, {XS}")
        e(f"s_add_u32 s51, s51, {WS}")
        e(f"s_cmp_eq_u32 s50, {4*XS}")
        e("s_cselect_b32 s50, 0, s50")
        e("s_cselect_b32 s51, 0, s51")
        e("s_add_u32 s39, s39, 128")
        e("s_cmp_eq_u32 s39, 1152")
        e("s_cselect_b32 s39, 0, s39")
        set_addr()
    elif it[0] == "bar":
        e("s_waitcnt lgkmcnt(0)"); lastwait = len(seq)-1
        bar()
e("s_add_u32 s52, s52, 1")
e("s_cmp_lt_u32 s52, 9")
e("s_cbranch_scc1 C_loop")
stamp("c")
e("s_waitcnt lgkmcnt(0)")
e(f"v_lshlrev_b32 v4, 3, v1")
e(f"v_add_u32 v4, {STATT}, v4")
ST = XF
for T in range(7): e(f"ds_read_b64 v[{ST+2*T}:{ST+2*T+1}], v4 offset:{T*128}")
e(f"v_mul_u32_u24 v5, {OUTP}, v1")
e("v_lshl_add_u32 v5, v2, 3, v5")
e("s_mul_i32 s48, s36, 96")
e(f"s_add_u32 s48, s48, {OUTT}")
e("v_add_u32 v5, s48, v5")
e("s_nop 7")
C1 = XF+14; C2 = XF+26; TM = XF+38
for t in range(3):
    for r in range(4):
        a = ACC + (6*3+t)*4 + r
        e(f"v_mov_b32_dpp v{C1+t*4+r}, v{a} row_newbcast:0 row_mask:0xf bank_mask:0xf")
        e(f"v_mov_b32_dpp v{C2+t*4+r}, v{a} row_newbcast:1 row_mask:0xf bank_mask:0xf")
e("s_waitcnt lgkmcnt(0)")
n = 0
for T in range(7):
    st = ST+2*T
    for t in range(3):
        a = ACC + (T*3+t)*4
        tm = TM + (n % 3)*6; n += 1
        for h in range(2):
            e(f"v_pk_fma_f32 v[{tm+2*h}:{tm+2*h+1}], v[{C1+t*4+2*h}:{C1+t*4+2*h+1}], v[{st}:{st+1}], v[{C2+t*4+2*h}:{C2+t*4+2*h+1}] op_sel:[0,0,0] op_sel_hi:[1,0,1]")
        for h in range(2):
            e(f"v_pk_fma_f32 v[{tm+2*h}:{tm+2*h+1}], v[{a+2*h}:{a+2*h+1}], v[{st}:{st+1}], v[{tm+2*h}:{tm+2*h+1}] op_sel:[0,1,0] op_sel_hi:[1,1,1]")
        e(f"v_cvt_pk_bf16_f32 v{tm+4}, v{tm}, v{tm+1}")
        e(f"v_cvt_pk_bf16_f32 v{tm+5}, v{tm+2}, v{tm+3}")
        e(f"ds_write_b64 v5, v[{tm+4}:{tm+5}] offset:{T*16*OUTP + t*32}")
e("s_waitcnt lgkmcnt(0)")
stamp("c")
e("s_branch L_store")

lbl("L_load")
if LPRIO: e(f"s_setprio {LPRIO}")
GPL = 4 // NL
e("s_sub_u32 s46, s36, 8")
kappas()
for jj in range(6):
    t = 20
    e(f"v_add_u32 v{t}, {64*jj}, v0")
    e(f"v_mul_u32_u24 v{t+1}, 2731, v{t}")
    e(f"v_lshrrev_b32 v{t+1}, 16, v{t+1}")
    e(f"v_mul_u32_u24 v{t+2}, 24, v{t+1}")
    e(f"v_sub_u32 v{t+2}, v{t}, v{t+2}")
    e(f"v_bfe_u32 v{t+3}, v{t+1}, 1, 1")
    e(f"v_bfe_u32 v{t+4}, v{t+1}, 3, 1")
    e(f"v_lshl_or_b32 v{t+3}, v{t+4}, 1, v{t+3}")
    e(f"v_lshlrev_b32 v{t+3}, 1, v{t+3}")
    e(f"v_xor_b32 v{t+2}, v{t+2}, v{t+3}")
    e(f"v_lshlrev_b32 v{t+2}, 4, v{t+2}")
    e(f"v_mul_u32_u24 v{t+1}, 1152, v{t+1}")
    e(f"v_add_u32 v{t+1}, v{t+1}, v{t+2}")
    e(f"v_subrev_u32 v{8+jj}, {(jj%4)*1024 if jj < 4 else (jj-4)*1024}, v{t+1}")
e(f"s_mul_i32 s45, s46, {6144*GPL}")
e(f"s_add_u32 s45, s45, {WBASE}")
e(f"s_mul_i32 s47, s46, {16*1152*GPL}")
e("s_add_u32 s47, s47, s41")
e("s_waitcnt lgkmcnt(0)")
srd(28, 10, 576*1152)
srd(32, 12, 8192*1152)
vm = []
def wdma(j):
    st = j % 4
    e(f"s_mul_i32 s43, s{54+j}, 576")
    e("s_add_u32 s43, s43, s47")
    for g in range(GPL):
        if g: e(f"s_add_u32 s43, s43, {16*1152}")
        e(f"s_add_u32 m0, s45, {st*WS + g*6144}")
        e("s_nop 0")
        for jj in range(4):
            e(f"buffer_load_dwordx4 v{8+jj}, s[28:31], s43 offen offset:{jj*1024} {WFLAG} lds"); vm.append(("w", j))
        e(f"s_add_u32 m0, s45, {st*WS + g*6144 + 4096}")
        e("s_nop 0")
        for jj in range(4, 6):
            e(f"buffer_load_dwordx4 v{8+jj}, s[28:31], s43 offen offset:{(jj-4)*1024} {WFLAG} lds"); vm.append(("w", j))
def wait_for(tags):
    last = max(i for i, t in enumerate(vm) if t in tags)
    n = len(vm) - 1 - last
    e(f"s_waitcnt vmcnt({min(n,63)})")
LD0 = int(opts.get("ld0", 2))
for j in range(LD0): wdma(j)
stamp("l")
nxt = LD0
for j in range(9):
    wait_for([("w", j)])
    if j in (0, 4, 8): stamp("l")
    bar()
    lim = min(8, j+3)
    cnt = 0
    while nxt <= lim and cnt < 2:
        wdma(nxt); nxt += 1; cnt += 1
bar()
stamp("l")
e("s_branch L_store")

lbl("L_prod")
if PPRIO: e(f"s_setprio {PPRIO}")
XR = 20; GP = XR + 12*XD; GF = GP + 4*XD; SA = GF+8; TP = SA+12
assert TP + 16 <= 167
e("s_sub_u32 s36, s36, 4")
e("v_and_b32 v2, 7, v0")
e("v_lshrrev_b32 v3, 3, v0")
e("v_lshlrev_b32 v4, 4, v2")
e("v_mul_u32_u24 v5, 1152, v3")
e("v_add_u32 v5, v5, v4")
e("v_add_u32 v6, 9216, v5")
e("v_add_u32 v7, 18432, v5")
e(f"s_mul_i32 s42, s36, {24*1152}")
e("s_add_u32 s40, s40, s42")
kappas()
vm = []
def xload(j):
    e(f"buffer_load_dwordx4 v[{GP+4*(j%XD)}:{GP+4*(j%XD)+3}], v4, s[20:23], s{54+j} offen"); vm.append(("g", j))
    e(f"s_add_u32 s43, s40, s{54+j}")
    for rg in range(3):
        r = XR + (j%XD)*12 + rg*4
        e(f"buffer_load_dwordx4 v[{r}:{r+3}], v{5+rg}, s[16:19], s43 offen {XFLAG}")
        vm.append(("x", j))
e("v_lshrrev_b32 v14, 4, v0")
e("v_xor_b32 v14, v14, v2")
e("v_lshlrev_b32 v14, 4, v14")
e("v_lshl_add_u32 v14, v3, 7, v14")
e("s_mul_i32 s46, s36, 3072")
e("s_and_b32 s47, s36, 1")
e("s_lshl_b32 s47, s47, 6")
e("v_xor_b32 v14, s47, v14")
e("v_add_u32 v14, s46, v14")
e("v_xor_b32 v15, 64, v14")
for i in range(12): e(f"v_mov_b32 v{SA+i}, 0")
e("s_mov_b32 s48, 0x3f803f80")
e("s_waitcnt lgkmcnt(0)")
srd(16, 4, 8192*1152)
srd(20, 6, 1152)
for j in range(XD): xload(j)
srd(32, 12, 8192*1152)
stamp("p")
for j in range(9):
    wait_for([("x", j), ("g", j)])
    if j == 0: stamp("p")
    gp = GP + 4*(j%XD)
    for i in range(4):
        e(f"v_lshlrev_b32 v{GF+2*i}, 16, v{gp+i}")
        e(f"v_and_b32 v{GF+2*i+1}, 0xffff0000, v{gp+i}")
    for rg in range(3):
        regs = [XR + (j%XD)*12 + rg*4 + i for i in range(4)]
        s1a, s1b, s2a, s2b = SA+rg*4, SA+rg*4+1, SA+rg*4+2, SA+rg*4+3
        tb = TP + (rg % 2)*8
        for i in range(4):
            e(f"v_lshlrev_b32 v{tb+2*i}, 16, v{regs[i]}")
            e(f"v_and_b32 v{tb+2*i+1}, 0xffff0000, v{regs[i]}")
        for i in range(4):
            lo, hi = tb+2*i, tb+2*i+1
            if STATS == "plain":
                e(f"v_add_f32 v{s1a}, v{s1a}, v{lo}")
                e(f"v_add_f32 v{s1b}, v{s1b}, v{hi}")
            else:
                e(f"v_dot2_f32_bf16 v{s1a if i%2 else s1b}, v{regs[i]}, s48, v{s1a if i%2 else s1b}")
            if STATS == "dot2":
                e(f"v_dot2_f32_bf16 v{s2a if i%2 else s2b}, v{regs[i]}, v{regs[i]}, v{s2a if i%2 else s2b}")
            else:
                e(f"v_fmac_f32 v{s2a}, v{lo}, v{lo}")
                e(f"v_fmac_f32 v{s2b}, v{hi}, v{hi}")
        for i in range(4):
            lo, hi = tb+2*i, tb+2*i+1
            e(f"v_mul_f32 v{lo}, v{lo}, v{GF+2*i}")
            e(f"v_mul_f32 v{hi}, v{hi}, v{GF+2*i+1}")
        for i in range(4):
            e(f"v_cvt_pk_bf16_f32 v{regs[i]}, v{tb+2*i}, v{tb+2*i+1}")
        e(f"ds_write_b128 v{14+(rg&1)}, v[{regs[0]}:{regs[3]}] offset:{(j%4)*XS + rg*1024}")
    e("s_waitcnt lgkmcnt(0)")
    if j in (0, 4, 8): stamp("p")
    bar()
    if j + XD <= 8: xload(j+XD)
e("s_nop 3")
for rg in range(3):
    e(f"v_add_f32 v{TP+2*rg}, v{SA+rg*4}, v{SA+rg*4+1}")
    e(f"v_add_f32 v{TP+2*rg+1}, v{SA+rg*4+2}, v{SA+rg*4+3}")
for mod in ["quad_perm:[1,0,3,2]", "quad_perm:[2,3,0,1]", "row_half_mirror"]:
    e("s_nop 1")
    for i in range(6): e(f"v_add_f32_dpp v{TP+8+i}, v{TP+i}, v{TP+i} {mod} row_mask:0xf bank_mask:0xf")
    for i in range(6): e(f"v_mov_b32 v{TP+i}, v{TP+8+i}")
for rg in range(3): finalize_stats(TP+2*rg, TP+2*rg+1, TP+8)
e("s_mul_i32 s46, s36, 192")
e(f"s_add_u32 s46, s46, {STATT}")
e("v_lshlrev_b32 v14, 3, v3")
e("v_add_u32 v14, s46, v14")
for rg in range(3): e(f"ds_write_b64 v14, v[{TP+2*rg}:{TP+2*rg+1}] offset:{rg*64}")
e("s_waitcnt lgkmcnt(0)")
bar()
e("s_add_u32 s36, s36, 4")
e(f"s_mul_i32 s40, s37, {96*1152}")
stamp("p")

lbl("L_store")
e("v_cmp_le_u32 vcc, 24, v0")
e("v_mov_b32 v2, 0")
e("s_nop 0")
e("v_cndmask_b32 v2, 0, 1, vcc")
e("v_mul_u32_u24 v3, 24, v2")
e("v_sub_u32 v3, v0, v3")
e("v_lshlrev_b32 v3, 4, v3")
e(f"v_mul_u32_u24 v4, {OUTP}, v2")
e("v_add_u32 v4, v4, v3")
e(f"s_mul_i32 s48, s36, {12*OUTP}")
e(f"s_add_u32 s48, s48, {OUTT}")
e("v_add_u32 v4, s48, v4")
e("v_mul_u32_u24 v5, 1152, v2")
e("v_add_u32 v5, v5, v3")
e(f"s_mul_i32 s48, s36, {12*1152}")
e("s_add_u32 s48, s48, s40")
e("s_add_u32 s48, s48, s41")
e("s_add_u32 s49, s48, 4608")
e("s_add_u32 s53, s48, 9216")
bar()
e("s_cmp_ge_u32 s36, 8")
e("s_cbranch_scc1 L_xrow")
e("s_mov_b32 exec_hi, 0xffff")
for jj in range(6): e(f"ds_read_b128 v[{20+4*jj}:{23+4*jj}], v4 offset:{jj*2*OUTP}")
for jj in range(6):
    e(f"s_waitcnt lgkmcnt({5-jj})")
    so = [48, 49, 53][jj//2]
    e(f"buffer_store_dwordx4 v[{20+4*jj}:{23+4*jj}], v5, s[32:35], s{so} offen offset:{(jj%2)*2304} {OFLAG}")
e("s_branch L_fin")
lbl("L_xrow")
e("s_cmp_lg_u32 s36, 8")
e("s_cbranch_scc1 L_fin")
e("s_mov_b64 exec, 0xffffff")
e(f"v_add_u32 v6, {OUTT + 98*OUTP}, v3")
e("ds_read_b128 v[44:47], v6")
e("s_add_u32 s48, s37, 8160")
e("s_mul_i32 s48, s48, 1152")
e("s_add_u32 s48, s48, s41")
e("s_waitcnt lgkmcnt(0)")
e(f"buffer_store_dwordx4 v[44:47], v3, s[32:35], s48 offen {OFLAG}")
lbl("L_fin")
if STAMP == 2:
    e("s_mov_b64 exec, -1")
    st2(); e("s_waitcnt vmcnt(0)"); st2()
    srd(56, 14, 1<<22)
    e("s_lshl_b32 s60, s2, 12")
    e("s_lshl_b32 s61, s36, 8")
    e("s_add_u32 s60, s60, s61")
    e("v_lshlrev_b32 v1, 2, v0")
    e("buffer_store_dword v167, v1, s[56:59], s60 offen")
if STAMP == 1:
    e("s_mov_b64 exec, -1")
    n = max(nst.values())
    e(f"s_memtime s[{70+2*n}:{71+2*n}]"); e("s_waitcnt vmcnt(0) lgkmcnt(0)")
    e(f"s_memtime s[{72+2*n}:{73+2*n}]"); e(f"s_memrealtime s[{74+2*n}:{75+2*n}]"); e("s_waitcnt lgkmcnt(0)")
    n += 3
    srd(56, 14, 1<<20)
    e("s_lshl_b32 s60, s2, 11")
    e("s_lshl_b32 s61, s36, 7")
    e("s_add_u32 s60, s60, s61")
    e("v_mov_b32 v1, 0")
    for i in range(n):
        e(f"v_mov_b32 v2, s{70+2*i}")
        e(f"v_mov_b32 v3, s{71+2*i}")
        e(f"buffer_store_dwordx2 v[2:3], v1, s[56:59], s60 offen offset:{8*i}")
        e("s_nop 1")
    print("stamps", n, nst)
lbl("L_end")

text = HDR + f"""; @launch grid=(256,1,1) block=({NW*64},1,1) lds={LDS_TOTAL}
.amdgcn_target "amdgcn-amd-amdhsa--gfx950"
.text
.globl {NAME}_kernel
.p2align 8
.type {NAME}_kernel,@function
{NAME}_kernel:
""" + "\n".join(out) + f"""
    s_endpgm
.section .rodata,"a"
.p2align 6
.amdhsa_kernel {NAME}_kernel
  .amdhsa_next_free_vgpr 168
  .amdhsa_next_free_sgpr 100
  .amdhsa_accum_offset 168
  .amdhsa_group_segment_fixed_size 0
  .amdhsa_kernarg_size 56
  .amdhsa_user_sgpr_count 2
  .amdhsa_user_sgpr_kernarg_segment_ptr 1
  .amdhsa_system_sgpr_workgroup_id_x 1
.end_amdhsa_kernel
"""
open(sys.argv[1], "w").write(text)
```

```python
import sys, os
NAME = "standalone__layernorm_linear__sampling"
opts = dict(a.split("=") for a in sys.argv[2:] if "=" in a)
STAMP = int(opts.get("stamp", 0))
STATS = opts.get("stats", "plain")
XFLAG = opts.get("xflag", "")
WFLAG = opts.get("wflag", "")
OFLAG = opts.get("oflag", "")
BARPOS = int(opts.get("barpos", 3))
PPRIO = int(opts.get("pprio", 0))
CPRIO = int(opts.get("cprio", 0))
LPRIO = int(opts.get("lprio", 0))
ROT = int(opts.get("rot", 1))
NL = int(opts.get("nl", 2))
XD = int(opts.get("xd", 4))
NW = 8 + NL
out = []
def e(s): out.append("    " + s)
def lbl(s): out.append(s + ":")
HDR = open("cdna_kernels/%s.s.ref" % NAME).read().split("; Override launch")[0]

XS = 12288; WS = 24576; WBASE = 49152
AUX = 147456; AUXP = 1184
STATT = 151040
OUTT = 49152 + 24576
OUTP = 400
LDS_TOTAL = 152064

nst = {"c": 0, "p": 0, "l": 0}
def stamp(role, rt=False):
    if STAMP != 1: return
    i = nst[role]; nst[role] += 1
    e(f"s_mem{'real' if rt else ''}time s[{70+2*i}:{71+2*i}]")
    e("s_waitcnt lgkmcnt(0)")
def st2():
    if STAMP not in (2, 3): return
    e("s_memtime s[70:71]")
    e("s_waitcnt lgkmcnt(0)")
    e("s_mov_b32 m0, s69"); e("s_nop 0"); e("v_writelane_b32 v167, s70, m0")
    e("s_add_u32 s69, s69, 1")
def bar():
    st2(); e("s_barrier"); st2()
def srd(d, b, n):
    e(f"s_mov_b32 s{d}, s{b}")
    e(f"s_and_b32 s{d+1}, s{b+1}, 0xffff")
    e(f"s_mov_b32 s{d+2}, {n}")
    e(f"s_mov_b32 s{d+3}, 0x00020000")
def finalize_stats(m, q, t):
    e(f"v_mul_f32 v{m}, 0x3ae38e39, v{m}")
    e(f"v_mul_f32 v{q}, 0x3ae38e39, v{q}")
    e(f"v_fma_f32 v{q}, -v{m}, v{m}, v{q}")
    e(f"v_max_f32 v{q}, 0, v{q}")
    e(f"v_cvt_pk_bf16_f32 v{t}, v{m}, v{q}")
    e(f"v_lshlrev_b32 v{m}, 16, v{t}")
    e(f"v_and_b32 v{q}, 0xffff0000, v{t}")
    e(f"v_add_f32 v{q}, 0x3727c5ac, v{q}")
    e(f"v_cvt_pk_bf16_f32 v{t}, v{q}, v{q}")
    e(f"v_lshlrev_b32 v{q}, 16, v{t}")
    e(f"v_sqrt_f32 v{q}, v{q}")
    e("s_nop 0")
    e(f"v_cvt_pk_bf16_f32 v{t}, v{q}, v{q}")
    e(f"v_lshlrev_b32 v{q}, 16, v{t}")
    e(f"v_rcp_f32 v{q}, v{q}")
    e("s_nop 0")
    e(f"v_mul_f32 v{m}, v{m}, v{q}")
    e(f"v_sub_f32 v{m}, 0, v{m}")
def kappas():
    e("s_mov_b32 s54, s39")
    for j in range(1, 9):
        e(f"s_add_u32 s{54+j}, s{53+j}, 128")
        e(f"s_cmp_eq_u32 s{54+j}, 1152")
        e(f"s_cselect_b32 s{54+j}, 0, s{54+j}")

e("s_cmp_ge_u32 s2, 255")
e("s_cbranch_scc1 L_end")
if STAMP == 1:
    e("s_memrealtime s[70:71]"); e("s_memtime s[72:73]"); e("s_waitcnt lgkmcnt(0)")
    nst = {"c": 2, "p": 2, "l": 2}
if STAMP in (2, 3):
    e("s_memrealtime s[72:73]")
    e("s_mov_b32 s69, 0"); e("v_mov_b32 v167, 0"); st2()
    if STAMP == 3: e("s_load_dwordx2 s[66:67], s[0:1], 40")
e("s_load_dwordx4 s[4:7], s[0:1], 0")
e("s_load_dwordx4 s[8:11], s[0:1], 16")
e("s_load_dwordx2 s[12:13], s[0:1], 32")
if STAMP: e("s_load_dwordx2 s[14:15], s[0:1], 48")
e("v_lshrrev_b32 v1, 6, v0")
e("v_and_b32 v0, 63, v0")
e("s_and_b32 s3, s2, 7")
e("v_readfirstlane_b32 s36, v1")
e("s_lshr_b32 s40, s2, 3")
e("s_lshl_b32 s41, s3, 1")
e("s_add_u32 s41, s41, s40")
e("s_sub_u32 s41, s41, 30")
e("s_mul_i32 s42, s3, 10")
e("s_cmp_ge_u32 s40, 30")
e("s_cselect_b32 s40, s41, s40")
e("s_cselect_b32 s42, 80, s42")
e("s_mul_i32 s41, s40, 43")
e("s_lshr_b32 s41, s41, 7")
e("s_mul_i32 s43, s41, 3")
e("s_sub_u32 s38, s40, s43")
e("s_add_u32 s37, s42, s41")
if ROT:
    e("s_mul_i32 s39, s38, 3")
    e("s_add_u32 s39, s39, s41")
    e("s_sub_u32 s43, s39, 9")
    e("s_cmp_ge_u32 s39, 9")
    e("s_cselect_b32 s39, s43, s39")
else:
    e("s_mov_b32 s39, 0")
e(f"s_mul_i32 s40, s37, {96*1152}")
e("s_mul_i32 s41, s38, 384")
e("s_lshl_b32 s39, s39, 7")
e("s_cmp_ge_u32 s36, 8")
e("s_cbranch_scc1 L_load")
e("s_cmp_ge_u32 s36, 4")
e("s_cbranch_scc1 L_prod")

ACC = 20; XF = 104; WF = 132
if CPRIO: e(f"s_setprio {CPRIO}")
e("v_and_b32 v1, 15, v0")
e("v_lshrrev_b32 v2, 4, v0")
e("v_lshlrev_b32 v3, 4, v0")
e("s_waitcnt lgkmcnt(0)")
srd(16, 4, 8192*1152)
srd(20, 6, 1152)
srd(32, 12, 8192*1152)
e("s_cmp_eq_u32 s36, 3")
e("s_cbranch_scc1 C_auxdone")
e("s_cmp_eq_u32 s36, 2")
e("s_cbranch_scc1 C_extra")
e("s_cmp_eq_u32 s36, 1")
e("s_cselect_b32 s44, s8, s6")
e("s_cselect_b32 s45, s9, s7")
e("s_and_b32 s45, s45, 0xffff")
e("s_mov_b32 s46, 1152")
e("s_mov_b32 s47, 0x00020000")
e(f"buffer_load_dwordx4 v[{XF}:{XF+3}], v3, s[44:47], 0 offen")
e(f"buffer_load_dwordx4 v[{XF+4}:{XF+7}], v3, s[44:47], 0 offen offset:1024")
e(f"s_mul_i32 s48, s36, {AUXP}")
e(f"s_add_u32 s48, s48, {AUX}")
e("v_add_u32 v4, s48, v3")
e("s_waitcnt vmcnt(1)")
e(f"ds_write_b128 v4, v[{XF}:{XF+3}]")
e("s_waitcnt vmcnt(0)")
e("s_mov_b64 exec, 0xff")
e(f"ds_write_b128 v4, v[{XF+4}:{XF+7}] offset:1024")
e("s_mov_b64 exec, -1")
e("s_branch C_auxdone")
lbl("C_extra")
e("s_add_u32 s48, s37, 8160")
e("s_mul_i32 s48, s48, 1152")
e(f"buffer_load_dwordx4 v[{XF}:{XF+3}], v3, s[16:19], s48 offen")
e(f"buffer_load_dwordx4 v[{XF+8}:{XF+11}], v3, s[20:23], 0 offen")
e(f"buffer_load_dwordx4 v[{XF+12}:{XF+15}], v3, s[20:23], 0 offen offset:1024")
for i in range(4): e(f"v_mov_b32 v{XF+4+i}, 0")
e("s_mov_b64 exec, 0xff")
e(f"buffer_load_dwordx4 v[{XF+4}:{XF+7}], v3, s[16:19], s48 offen offset:1024")
e("s_mov_b64 exec, -1")
e("v_mov_b32 v8, 0"); e("v_mov_b32 v9, 0")
e(f"v_add_u32 v4, {AUX + 2*AUXP}, v3")
e("s_waitcnt vmcnt(0)")
for i in range(8):
    x = XF+i; g = XF+8+i
    e(f"v_lshlrev_b32 v10, 16, v{x}")
    e(f"v_and_b32 v11, 0xffff0000, v{x}")
    e(f"v_lshlrev_b32 v12, 16, v{g}")
    e(f"v_and_b32 v13, 0xffff0000, v{g}")
    e("v_add_f32 v8, v8, v10")
    e("v_fmac_f32 v9, v10, v10")
    e("v_add_f32 v8, v8, v11")
    e("v_fmac_f32 v9, v11, v11")
    e("v_mul_f32 v10, v10, v12")
    e("v_mul_f32 v11, v11, v13")
    e(f"v_cvt_pk_bf16_f32 v{x}, v10, v11")
e(f"ds_write_b128 v4, v[{XF}:{XF+3}]")
e("s_mov_b64 exec, 0xff")
e(f"ds_write_b128 v4, v[{XF+4}:{XF+7}] offset:1024")
e("s_mov_b64 exec, -1")
for mod in ["quad_perm:[1,0,3,2]", "quad_perm:[2,3,0,1]", "row_half_mirror", "row_mirror"]:
    e("s_nop 1")
    e(f"v_add_f32_dpp v10, v8, v8 {mod} row_mask:0xf bank_mask:0xf")
    e(f"v_add_f32_dpp v11, v9, v9 {mod} row_mask:0xf bank_mask:0xf")
    e("v_mov_b32 v8, v10"); e("v_mov_b32 v9, v11")
e("s_nop 1")
for r, base in ((8, 48), (9, 52)):
    for k in range(4): e(f"v_readlane_b32 s{base+k}, v{r}, {16*k}")
e("s_nop 3")
for r, base in ((8, 48), (9, 52)):
    e(f"v_mov_b32 v{r}, s{base}")
    for k in range(1, 4): e(f"v_add_f32 v{r}, s{base+k}, v{r}")
finalize_stats(8, 9, 10)
e(f"v_mov_b32 v10, {STATT + 98*8}")
e("ds_write_b64 v10, v[8:9]")
lbl("C_auxdone")
e("v_lshrrev_b32 v4, 1, v1")
e("v_xor_b32 v4, v4, v2")
e("v_lshlrev_b32 v4, 4, v4")
e("v_lshl_add_u32 v4, v1, 7, v4")
e("v_xor_b32 v5, 64, v4")
e("v_bfe_u32 v6, v0, 2, 2")
e("v_lshl_add_u32 v7, v2, 3, v6")
e("v_mul_u32_u24 v7, 384, v7")
e("v_and_b32 v8, 3, v0")
e("v_lshl_add_u32 v7, v8, 3, v7")
e(f"v_add_u32 v7, {WBASE}, v7")
e("v_lshrrev_b32 v6, 1, v6")
e("v_and_b32 v8, 1, v2")
e("v_lshl_or_b32 v6, v8, 1, v6")
e("s_mul_i32 s48, s36, 3")
for t in range(3):
    e(f"s_add_u32 s49, s48, {t}")
    e(f"v_xor_b32 v8, s49, v6")
    e(f"v_lshl_add_u32 v{9+t}, v8, 5, v7")
e("v_min_u32 v12, 2, v1")
e(f"v_mul_u32_u24 v12, {AUXP}, v12")
e("v_lshl_add_u32 v12, v2, 4, v12")
e(f"v_add_u32 v12, {AUX}, v12")
for i in range(84): e(f"v_mov_b32 v{ACC+i}, 0")
def set_addr():
    e("v_add_u32 v13, s50, v4")
    e("v_add_u32 v14, s50, v5")
    for t in range(3): e(f"v_add_u32 v{15+t}, s51, v{9+t}")
    e("v_add_u32 v18, s39, v12")
def xread(sp, T):
    x = XF + T*4
    if T < 6: return f"ds_read_b128 v[{x}:{x+3}], v{13+sp} offset:{T*2048}"
    return f"ds_read_b128 v[{x}:{x+3}], v18 offset:{sp*64}"
def wreads(sp):
    r = []
    for t in range(3):
        w = WF + (sp*3+t)*4
        r.append(f"ds_read_b64_tr_b16 v[{w}:{w+1}], v{15+t} offset:{sp*12288}")
        r.append(f"ds_read_b64_tr_b16 v[{w+2}:{w+3}], v{15+t} offset:{sp*12288+1536}")
    return r
def mf(sp, T, t):
    c = ACC + (T*3+t)*4; w = WF + (sp*3+t)*4; x = XF + T*4
    return f"v_mfma_f32_16x16x32_bf16 v[{c}:{c+3}], v[{w}:{w+3}], v[{x}:{x+3}], v[{c}:{c+3}]"
e("s_mov_b32 s50, 0"); e("s_mov_b32 s51, 0"); e("s_mov_b32 s52, 0")
set_addr()
e("s_waitcnt lgkmcnt(0)")
stamp("c")
bar()
stamp("c")
body = []
def tail_reads_order():
    pass
w1 = wreads(1)
for T in range(7):
    for t in range(3):
        body.append(("m", [("x", 0, T)] + [("w", 0, t)], mf(0, T, t)))
        k = T*3+t
        if k < 6: body.append(("r", ("w", 1, k//2), w1[k]))
    body.append(("r", ("x", 1, T), xread(1, T)))
w0 = wreads(0)
pend = []
for T in range(7):
    if T == BARPOS:
        body.append(("adv",))
        body.append(("bar",))
        pend = [("r", ("w", 0, k//2), w0[k]) for k in range(6)]
        pend = pend[0:2] + [("r", ("x", 0, 0), xread(0, 0))] + pend[2:6] + [("r", ("x", 0, TT), xread(0, TT)) for TT in range(1, BARPOS)]
    for t in range(3):
        body.append(("m", [("x", 1, T)] + [("w", 1, t)], mf(1, T, t)))
        if pend: body.append(pend.pop(0))
    if T >= BARPOS: pend.append(("r", ("x", 0, T), xread(0, T)))
while pend: body.append(pend.pop(0))
bi = [i for i, it in enumerate(body) if it[0] == "bar"][0]
init_reads = [it for it in body[bi:] if it[0] == "r"]
for it in init_reads: e(it[2])
lbl("C_loop")
seq = [it[1] for it in init_reads]
cur_out = None
lastwait = None
for it in body:
    if it[0] == "r":
        e(it[2]); seq.append(it[1])
    elif it[0] == "m":
        idx = max(max(i for i, tg in enumerate(seq) if tg == need) for need in it[1])
        n = len(seq) - 1 - idx
        done_upto = len(seq) - 1 - n
        if lastwait is None or done_upto > lastwait:
            e(f"s_waitcnt lgkmcnt({min(n,15)})"); lastwait = done_upto
        e(it[2])
    elif it[0] == "adv":
        e(f"s_add_u32 s50, s50, {XS}")
        e(f"s_add_u32 s51, s51, {WS}")
        e(f"s_cmp_eq_u32 s50, {4*XS}")
        e("s_cselect_b32 s50, 0, s50")
        e("s_cselect_b32 s51, 0, s51")
        e("s_add_u32 s39, s39, 128")
        e("s_cmp_eq_u32 s39, 1152")
        e("s_cselect_b32 s39, 0, s39")
        set_addr()
    elif it[0] == "bar":
        e("s_waitcnt lgkmcnt(0)"); lastwait = len(seq)-1
        bar()
e("s_add_u32 s52, s52, 1")
e("s_cmp_lt_u32 s52, 9")
e("s_cbranch_scc1 C_loop")
stamp("c")
e("s_waitcnt lgkmcnt(0)")
e(f"v_lshlrev_b32 v4, 3, v1")
e(f"v_add_u32 v4, {STATT}, v4")
ST = XF
for T in range(7): e(f"ds_read_b64 v[{ST+2*T}:{ST+2*T+1}], v4 offset:{T*128}")
e(f"v_mul_u32_u24 v5, {OUTP}, v1")
e("v_lshl_add_u32 v5, v2, 3, v5")
e("s_mul_i32 s48, s36, 96")
e(f"s_add_u32 s48, s48, {OUTT}")
e("v_add_u32 v5, s48, v5")
e("s_nop 7")
C1 = XF+14; C2 = XF+26; TM = XF+38
for t in range(3):
    for r in range(4):
        a = ACC + (6*3+t)*4 + r
        e(f"v_mov_b32_dpp v{C1+t*4+r}, v{a} row_newbcast:0 row_mask:0xf bank_mask:0xf")
        e(f"v_mov_b32_dpp v{C2+t*4+r}, v{a} row_newbcast:1 row_mask:0xf bank_mask:0xf")
e("s_waitcnt lgkmcnt(0)")
n = 0
for T in range(7):
    st = ST+2*T
    for t in range(3):
        a = ACC + (T*3+t)*4
        tm = TM + (n % 3)*6; n += 1
        for h in range(2):
            e(f"v_pk_fma_f32 v[{tm+2*h}:{tm+2*h+1}], v[{C1+t*4+2*h}:{C1+t*4+2*h+1}], v[{st}:{st+1}], v[{C2+t*4+2*h}:{C2+t*4+2*h+1}] op_sel:[0,0,0] op_sel_hi:[1,0,1]")
        for h in range(2):
            e(f"v_pk_fma_f32 v[{tm+2*h}:{tm+2*h+1}], v[{a+2*h}:{a+2*h+1}], v[{st}:{st+1}], v[{tm+2*h}:{tm+2*h+1}] op_sel:[0,1,0] op_sel_hi:[1,1,1]")
        e(f"v_cvt_pk_bf16_f32 v{tm+4}, v{tm}, v{tm+1}")
        e(f"v_cvt_pk_bf16_f32 v{tm+5}, v{tm+2}, v{tm+3}")
        e(f"ds_write_b64 v5, v[{tm+4}:{tm+5}] offset:{T*16*OUTP + t*32}")
e("s_waitcnt lgkmcnt(0)")
stamp("c")
e("s_branch L_store")

lbl("L_load")
if LPRIO: e(f"s_setprio {LPRIO}")
GPL = 4 // NL
e("s_sub_u32 s46, s36, 8")
kappas()
for jj in range(6):
    t = 20
    e(f"v_add_u32 v{t}, {64*jj}, v0")
    e(f"v_mul_u32_u24 v{t+1}, 2731, v{t}")
    e(f"v_lshrrev_b32 v{t+1}, 16, v{t+1}")
    e(f"v_mul_u32_u24 v{t+2}, 24, v{t+1}")
    e(f"v_sub_u32 v{t+2}, v{t}, v{t+2}")
    e(f"v_bfe_u32 v{t+3}, v{t+1}, 1, 1")
    e(f"v_bfe_u32 v{t+4}, v{t+1}, 3, 1")
    e(f"v_lshl_or_b32 v{t+3}, v{t+4}, 1, v{t+3}")
    e(f"v_lshlrev_b32 v{t+3}, 1, v{t+3}")
    e(f"v_xor_b32 v{t+2}, v{t+2}, v{t+3}")
    e(f"v_lshlrev_b32 v{t+2}, 4, v{t+2}")
    e(f"v_mul_u32_u24 v{t+1}, 1152, v{t+1}")
    e(f"v_add_u32 v{t+1}, v{t+1}, v{t+2}")
    e(f"v_subrev_u32 v{8+jj}, {(jj%4)*1024 if jj < 4 else (jj-4)*1024}, v{t+1}")
e(f"s_mul_i32 s45, s46, {6144*GPL}")
e(f"s_add_u32 s45, s45, {WBASE}")
e(f"s_mul_i32 s47, s46, {16*1152*GPL}")
e("s_add_u32 s47, s47, s41")
e("s_waitcnt lgkmcnt(0)")
srd(28, 10, 576*1152)
srd(32, 12, 8192*1152)
vm = []
def wdma(j):
    st = j % 4
    e(f"s_mul_i32 s43, s{54+j}, 576")
    e("s_add_u32 s43, s43, s47")
    for g in range(GPL):
        if g: e(f"s_add_u32 s43, s43, {16*1152}")
        e(f"s_add_u32 m0, s45, {st*WS + g*6144}")
        e("s_nop 0")
        for jj in range(4):
            e(f"buffer_load_dwordx4 v{8+jj}, s[28:31], s43 offen offset:{jj*1024} {WFLAG} lds"); vm.append(("w", j))
        e(f"s_add_u32 m0, s45, {st*WS + g*6144 + 4096}")
        e("s_nop 0")
        for jj in range(4, 6):
            e(f"buffer_load_dwordx4 v{8+jj}, s[28:31], s43 offen offset:{(jj-4)*1024} {WFLAG} lds"); vm.append(("w", j))
def wait_for(tags):
    last = max(i for i, t in enumerate(vm) if t in tags)
    n = len(vm) - 1 - last
    e(f"s_waitcnt vmcnt({min(n,63)})")
LD0 = int(opts.get("ld0", 2))
for j in range(LD0): wdma(j)
stamp("l")
nxt = LD0
for j in range(9):
    wait_for([("w", j)])
    if j in (0, 4, 8): stamp("l")
    bar()
    lim = min(8, j+3)
    cnt = 0
    while nxt <= lim and cnt < 2:
        wdma(nxt); nxt += 1; cnt += 1
bar()
stamp("l")
e("s_branch L_store")

lbl("L_prod")
if PPRIO: e(f"s_setprio {PPRIO}")
XR = 20; GP = XR + 12*XD; GF = GP + 4*XD; SA = GF+8; TP = SA+12
assert TP + 16 <= 167
e("s_sub_u32 s36, s36, 4")
e("v_and_b32 v2, 7, v0")
e("v_lshrrev_b32 v3, 3, v0")
e("v_lshlrev_b32 v4, 4, v2")
e("v_mul_u32_u24 v5, 1152, v3")
e("v_add_u32 v5, v5, v4")
e("v_add_u32 v6, 9216, v5")
e("v_add_u32 v7, 18432, v5")
e(f"s_mul_i32 s42, s36, {24*1152}")
e("s_add_u32 s40, s40, s42")
kappas()
vm = []
def xload(j):
    e(f"buffer_load_dwordx4 v[{GP+4*(j%XD)}:{GP+4*(j%XD)+3}], v4, s[20:23], s{54+j} offen"); vm.append(("g", j))
    e(f"s_add_u32 s43, s40, s{54+j}")
    for rg in range(3):
        r = XR + (j%XD)*12 + rg*4
        e(f"buffer_load_dwordx4 v[{r}:{r+3}], v{5+rg}, s[16:19], s43 offen {XFLAG}")
        vm.append(("x", j))
e("v_lshrrev_b32 v14, 4, v0")
e("v_xor_b32 v14, v14, v2")
e("v_lshlrev_b32 v14, 4, v14")
e("v_lshl_add_u32 v14, v3, 7, v14")
e("s_mul_i32 s46, s36, 3072")
e("s_and_b32 s47, s36, 1")
e("s_lshl_b32 s47, s47, 6")
e("v_xor_b32 v14, s47, v14")
e("v_add_u32 v14, s46, v14")
e("v_xor_b32 v15, 64, v14")
for i in range(12): e(f"v_mov_b32 v{SA+i}, 0")
e("s_mov_b32 s48, 0x3f803f80")
e("s_waitcnt lgkmcnt(0)")
srd(16, 4, 8192*1152)
srd(20, 6, 1152)
for j in range(XD): xload(j)
srd(32, 12, 8192*1152)
stamp("p")
for j in range(9):
    wait_for([("x", j), ("g", j)])
    if j == 0: stamp("p")
    gp = GP + 4*(j%XD)
    for i in range(4):
        e(f"v_lshlrev_b32 v{GF+2*i}, 16, v{gp+i}")
        e(f"v_and_b32 v{GF+2*i+1}, 0xffff0000, v{gp+i}")
    for rg in range(3):
        regs = [XR + (j%XD)*12 + rg*4 + i for i in range(4)]
        s1a, s1b, s2a, s2b = SA+rg*4, SA+rg*4+1, SA+rg*4+2, SA+rg*4+3
        tb = TP + (rg % 2)*8
        for i in range(4):
            e(f"v_lshlrev_b32 v{tb+2*i}, 16, v{regs[i]}")
            e(f"v_and_b32 v{tb+2*i+1}, 0xffff0000, v{regs[i]}")
        for i in range(4):
            lo, hi = tb+2*i, tb+2*i+1
            if STATS == "plain":
                e(f"v_add_f32 v{s1a}, v{s1a}, v{lo}")
                e(f"v_add_f32 v{s1b}, v{s1b}, v{hi}")
            else:
                e(f"v_dot2_f32_bf16 v{s1a if i%2 else s1b}, v{regs[i]}, s48, v{s1a if i%2 else s1b}")
            if STATS == "dot2":
                e(f"v_dot2_f32_bf16 v{s2a if i%2 else s2b}, v{regs[i]}, v{regs[i]}, v{s2a if i%2 else s2b}")
            else:
                e(f"v_fmac_f32 v{s2a}, v{lo}, v{lo}")
                e(f"v_fmac_f32 v{s2b}, v{hi}, v{hi}")
        for i in range(4):
            lo, hi = tb+2*i, tb+2*i+1
            e(f"v_mul_f32 v{lo}, v{lo}, v{GF+2*i}")
            e(f"v_mul_f32 v{hi}, v{hi}, v{GF+2*i+1}")
        for i in range(4):
            e(f"v_cvt_pk_bf16_f32 v{regs[i]}, v{tb+2*i}, v{tb+2*i+1}")
        e(f"ds_write_b128 v{14+(rg&1)}, v[{regs[0]}:{regs[3]}] offset:{(j%4)*XS + rg*1024}")
    e("s_waitcnt lgkmcnt(0)")
    if j in (0, 4, 8): stamp("p")
    bar()
    if j + XD <= 8: xload(j+XD)
e("s_nop 3")
for rg in range(3):
    e(f"v_add_f32 v{TP+2*rg}, v{SA+rg*4}, v{SA+rg*4+1}")
    e(f"v_add_f32 v{TP+2*rg+1}, v{SA+rg*4+2}, v{SA+rg*4+3}")
for mod in ["quad_perm:[1,0,3,2]", "quad_perm:[2,3,0,1]", "row_half_mirror"]:
    e("s_nop 1")
    for i in range(6): e(f"v_add_f32_dpp v{TP+8+i}, v{TP+i}, v{TP+i} {mod} row_mask:0xf bank_mask:0xf")
    for i in range(6): e(f"v_mov_b32 v{TP+i}, v{TP+8+i}")
for rg in range(3): finalize_stats(TP+2*rg, TP+2*rg+1, TP+8)
e("s_mul_i32 s46, s36, 192")
e(f"s_add_u32 s46, s46, {STATT}")
e("v_lshlrev_b32 v14, 3, v3")
e("v_add_u32 v14, s46, v14")
for rg in range(3): e(f"ds_write_b64 v14, v[{TP+2*rg}:{TP+2*rg+1}] offset:{rg*64}")
e("s_waitcnt lgkmcnt(0)")
bar()
e("s_add_u32 s36, s36, 4")
e(f"s_mul_i32 s40, s37, {96*1152}")
stamp("p")

lbl("L_store")
e("v_cmp_le_u32 vcc, 24, v0")
e("v_mov_b32 v2, 0")
e("s_nop 0")
e("v_cndmask_b32 v2, 0, 1, vcc")
e("v_mul_u32_u24 v3, 24, v2")
e("v_sub_u32 v3, v0, v3")
e("v_lshlrev_b32 v3, 4, v3")
e(f"v_mul_u32_u24 v4, {OUTP}, v2")
e("v_add_u32 v4, v4, v3")
e(f"s_mul_i32 s48, s36, {12*OUTP}")
e(f"s_add_u32 s48, s48, {OUTT}")
e("v_add_u32 v4, s48, v4")
e("v_mul_u32_u24 v5, 1152, v2")
e("v_add_u32 v5, v5, v3")
e(f"s_mul_i32 s48, s36, {12*1152}")
e("s_add_u32 s48, s48, s40")
e("s_add_u32 s48, s48, s41")
e("s_add_u32 s49, s48, 4608")
e("s_add_u32 s53, s48, 9216")
bar()
e("s_cmp_ge_u32 s36, 8")
e("s_cbranch_scc1 L_xrow")
e("s_mov_b32 exec_hi, 0xffff")
for jj in range(6): e(f"ds_read_b128 v[{20+4*jj}:{23+4*jj}], v4 offset:{jj*2*OUTP}")
for jj in range(6):
    e(f"s_waitcnt lgkmcnt({5-jj})")
    so = [48, 49, 53][jj//2]
    e(f"buffer_store_dwordx4 v[{20+4*jj}:{23+4*jj}], v5, s[32:35], s{so} offen offset:{(jj%2)*2304} {OFLAG}")
e("s_branch L_fin")
lbl("L_xrow")
e("s_cmp_lg_u32 s36, 8")
e("s_cbranch_scc1 L_fin")
e("s_mov_b64 exec, 0xffffff")
e(f"v_add_u32 v6, {OUTT + 98*OUTP}, v3")
e("ds_read_b128 v[44:47], v6")
e("s_add_u32 s48, s37, 8160")
e("s_mul_i32 s48, s48, 1152")
e("s_add_u32 s48, s48, s41")
e("s_waitcnt lgkmcnt(0)")
e(f"buffer_store_dwordx4 v[44:47], v3, s[32:35], s48 offen {OFLAG}")
lbl("L_fin")
if STAMP == 3:
    e("s_mov_b64 exec, -1")
    st2(); e("s_waitcnt vmcnt(0)"); st2()
    e("s_memrealtime s[74:75]")
    srd(56, 66, 256)
    e("s_waitcnt lgkmcnt(0)")
    e("s_not_b32 s72, s72")
    e("v_mov_b32 v1, 0"); e("v_mov_b32 v2, s72"); e("v_mov_b32 v3, s74")
    e("s_mov_b64 exec, 1")
    e("buffer_atomic_umax v2, v1, s[56:59], 0 offen")
    e("buffer_atomic_umax v3, v1, s[56:59], 0 offen offset:4")
    e("s_mov_b64 exec, -1")
    e("s_cmp_lg_u32 s2, 100")
    e("s_cbranch_scc1 L_end")
    e("s_cmp_lg_u32 s36, 0")
    e("s_cbranch_scc1 L_end")
    e("v_readlane_b32 s70, v167, 0")
    e("s_nop 3")
    e("v_subrev_u32 v167, s70, v167")
    e("v_lshlrev_b32 v1, 1, v0")
    e("v_add_u32 v1, 4, v1")
    e("s_mov_b32 exec_lo, 0x1555554")
    e("s_mov_b32 exec_hi, 0")
    e("buffer_store_dword v167, v1, s[56:59], 0 offen")
if STAMP == 2:
    e("s_mov_b64 exec, -1")
    st2(); e("s_waitcnt vmcnt(0)"); st2()
    srd(56, 14, 1<<22)
    e("s_lshl_b32 s60, s2, 12")
    e("s_lshl_b32 s61, s36, 8")
    e("s_add_u32 s60, s60, s61")
    e("v_lshlrev_b32 v1, 2, v0")
    e("buffer_store_dword v167, v1, s[56:59], s60 offen")
if STAMP == 1:
    e("s_mov_b64 exec, -1")
    n = max(nst.values())
    e(f"s_memtime s[{70+2*n}:{71+2*n}]"); e("s_waitcnt vmcnt(0) lgkmcnt(0)")
    e(f"s_memtime s[{72+2*n}:{73+2*n}]"); e(f"s_memrealtime s[{74+2*n}:{75+2*n}]"); e("s_waitcnt lgkmcnt(0)")
    n += 3
    srd(56, 14, 1<<20)
    e("s_lshl_b32 s60, s2, 11")
    e("s_lshl_b32 s61, s36, 7")
    e("s_add_u32 s60, s60, s61")
    e("v_mov_b32 v1, 0")
    for i in range(n):
        e(f"v_mov_b32 v2, s{70+2*i}")
        e(f"v_mov_b32 v3, s{71+2*i}")
        e(f"buffer_store_dwordx2 v[2:3], v1, s[56:59], s60 offen offset:{8*i}")
        e("s_nop 1")
    print("stamps", n, nst)
lbl("L_end")

text = HDR + f"""; @launch grid=(256,1,1) block=({NW*64},1,1) lds={LDS_TOTAL}
.amdgcn_target "amdgcn-amd-amdhsa--gfx950"
.text
.globl {NAME}_kernel
.p2align 8
.type {NAME}_kernel,@function
{NAME}_kernel:
""" + "\n".join(out) + f"""
    s_endpgm
.section .rodata,"a"
.p2align 6
.amdhsa_kernel {NAME}_kernel
  .amdhsa_next_free_vgpr 168
  .amdhsa_next_free_sgpr 100
  .amdhsa_accum_offset 168
  .amdhsa_group_segment_fixed_size 0
  .amdhsa_kernarg_size 56
  .amdhsa_user_sgpr_count 2
  .amdhsa_user_sgpr_kernarg_segment_ptr 1
  .amdhsa_system_sgpr_workgroup_id_x 1
.end_amdhsa_kernel
"""
open(sys.argv[1], "w").write(text)
```

```python
import sys, os
NAME = "standalone__layernorm_linear__sampling"
opts = dict(a.split("=") for a in sys.argv[2:] if "=" in a)
STAMP = int(opts.get("stamp", 0))
STATS = opts.get("stats", "plain")
XFLAG = opts.get("xflag", "")
WFLAG = opts.get("wflag", "")
OFLAG = opts.get("oflag", "")
BARPOS = int(opts.get("barpos", 3))
PPRIO = int(opts.get("pprio", 0))
P0PRIO = int(opts.get("p0prio", 2))
CPRIO = int(opts.get("cprio", 0))
ROT = int(opts.get("rot", 1))
SAFE = int(opts.get("safe", 1))
EARLY1 = int(opts.get("early1", 0))
WGRAN = int(opts.get("wgran", 2))
NW = 12
out = []
def e(s): out.append("    " + s)
def lbl(s): out.append(s + ":")
HDR = open("cdna_kernels/%s.s.ref" % NAME).read().split("; Override launch")[0]

XH = 6208; XS = 12416; WS = 24576; WOFF = 2*XS; PS = 2*XS + 2*WS
AUX = 2*PS; AUXP = 2336
STATT = AUX + 3*AUXP
PART = STATT + 896
FLG = 156672
assert PART + 768 <= FLG
LDS_TOTAL = FLG + 128
OUTT = PS; OUTP = 400

def st2():
    if STAMP != 2: return
    e("s_memtime s[70:71]")
    e("s_waitcnt lgkmcnt(0)")
    e("s_mov_b32 m0, s69"); e("s_nop 0"); e("v_writelane_b32 v167, s70, m0")
    e("s_add_u32 s69, s69, 1")
def srd(d, b, n):
    e(f"s_mov_b32 s{d}, s{b}")
    e(f"s_and_b32 s{d+1}, s{b+1}, 0xffff")
    e(f"s_mov_b32 s{d+2}, {n}")
    e(f"s_mov_b32 s{d+3}, 0x00020000")
def finalize_stats(trips):
    seq = [
     "v_mul_f32 v{m}, 0x3ae38e39, v{m}",
     "v_mul_f32 v{q}, 0x3ae38e39, v{q}",
     "v_fma_f32 v{q}, -v{m}, v{m}, v{q}",
     "v_max_f32 v{q}, 0, v{q}",
     "v_cvt_pk_bf16_f32 v{t}, v{m}, v{q}",
     "v_lshlrev_b32 v{m}, 16, v{t}",
     "v_and_b32 v{q}, 0xffff0000, v{t}",
     "v_add_f32 v{q}, 0x3727c5ac, v{q}",
     "v_cvt_pk_bf16_f32 v{t}, v{q}, v{q}",
     "v_lshlrev_b32 v{q}, 16, v{t}",
     "v_sqrt_f32 v{q}, v{q}",
     "NOP",
     "v_cvt_pk_bf16_f32 v{t}, v{q}, v{q}",
     "v_lshlrev_b32 v{q}, 16, v{t}",
     "v_rcp_f32 v{q}, v{q}",
     "NOP",
     "v_mul_f32 v{m}, v{m}, v{q}",
     "v_sub_f32 v{m}, 0, v{m}"]
    for s in seq:
        if s == "NOP": e("s_nop 0"); continue
        for (m, q, t) in trips: e(s.format(m=m, q=q, t=t))
spin_id = [0]
deferred = []
def spin(vaddr, off, vtmp, sneed, preread=False):
    global out
    k = spin_id[0]; spin_id[0] += 1
    save = None
    if preread:
        e(f"v_cmp_le_u32 vcc, {sneed}, v{vtmp}")
        e("s_cmp_eq_u64 vcc, exec")
        e(f"s_cbranch_scc0 SP_{k}")
        lbl(f"SP_ok{k}")
        save = out; out = []
    lbl(f"SP_{k}")
    e(f"ds_read_b32 v{vtmp}, v{vaddr} offset:{off}")
    e("s_waitcnt lgkmcnt(0)")
    e(f"v_cmp_le_u32 vcc, {sneed}, v{vtmp}")
    if SAFE:
        e("s_add_u32 s68, s68, 1")
        e("s_bitcmp1_b32 s68, 18")
        e(f"s_cbranch_scc1 SP_ok{k}")
    e("s_cmp_eq_u64 vcc, exec")
    e(f"s_cbranch_scc0 SP_{k}")
    if preread:
        e(f"s_branch SP_ok{k}")
        deferred.extend(out); out = save
    else:
        lbl(f"SP_ok{k}")

e("s_cmp_ge_u32 s2, 255")
e("s_cbranch_scc1 L_end")
if STAMP == 2:
    e("s_mov_b32 s69, 0"); e("v_mov_b32 v167, 0"); e("s_memrealtime s[72:73]"); st2(); e("v_writelane_b32 v167, s72, 62")
e("v_readfirstlane_b32 s36, v0")
e("v_and_b32 v0, 63, v0")
e("s_nop 1")
e("s_cmp_ge_u32 s36, 256")
e("s_cbranch_scc1 L_skipz")
e("v_lshlrev_b32 v3, 2, v0")
e("v_mov_b32 v5, 0")
e(f"v_add_u32 v4, {FLG - 128}, v3")
e("ds_write_b32 v4, v5")
e("s_waitcnt lgkmcnt(0)")
lbl("L_skipz")
e("s_load_dwordx4 s[4:7], s[0:1], 0")
e("s_load_dwordx4 s[8:11], s[0:1], 16")
e("s_load_dwordx2 s[12:13], s[0:1], 32")
if STAMP: e("s_load_dwordx2 s[14:15], s[0:1], 48")
e("s_barrier")
e("s_mov_b32 s68, 0")
e("s_and_b32 s3, s2, 7")
e("s_lshr_b32 s40, s2, 3")
e("s_lshl_b32 s41, s3, 1")
e("s_add_u32 s41, s41, s40")
e("s_sub_u32 s41, s41, 30")
e("s_mul_i32 s42, s3, 10")
e("s_cmp_ge_u32 s40, 30")
e("s_cselect_b32 s40, s41, s40")
e("s_cselect_b32 s42, 80, s42")
e("s_mul_i32 s41, s40, 43")
e("s_lshr_b32 s41, s41, 7")
e("s_mul_i32 s43, s41, 3")
e("s_sub_u32 s38, s40, s43")
e("s_add_u32 s37, s42, s41")
if ROT:
    e("s_mul_i32 s39, s38, 3")
    e("s_add_u32 s39, s39, s41")
    e("s_sub_u32 s43, s39, 9")
    e("s_cmp_ge_u32 s39, 9")
    e("s_cselect_b32 s39, s43, s39")
else:
    e("s_mov_b32 s39, 0")
e(f"s_mul_i32 s40, s37, {96*1152}")
e("s_mul_i32 s41, s38, 384")
e("s_lshl_b32 s39, s39, 7")
e("s_lshr_b32 s36, s36, 6")
e("s_mov_b32 s66, 0xffff0000")
e("s_cmp_ge_u32 s36, 4")
e("s_cbranch_scc1 L_prod")

ACC = 20; XF = 104; WF = 132
e("v_lshlrev_b32 v3, 4, v0")
e("s_waitcnt lgkmcnt(0)")
srd(20, 6, 1152)
e("s_cmp_eq_u32 s36, 3")
e("s_cbranch_scc1 C_auxdone")
e("s_cmp_eq_u32 s36, 2")
e("s_cbranch_scc1 C_extra")
e("s_cmp_eq_u32 s36, 1")
e("s_cselect_b32 s44, s8, s6")
e("s_cselect_b32 s45, s9, s7")
e("s_and_b32 s45, s45, 0xffff")
e("s_mov_b32 s46, 1152")
e("s_mov_b32 s47, 0x00020000")
e(f"buffer_load_dwordx4 v[{XF}:{XF+3}], v3, s[44:47], 0 offen")
e(f"buffer_load_dwordx4 v[{XF+4}:{XF+7}], v3, s[44:47], 0 offen offset:1024")
e(f"s_mul_i32 s48, s36, {AUXP}")
e(f"s_add_u32 s48, s48, {AUX}")
e("v_add_u32 v4, s48, v3")
e("s_waitcnt vmcnt(0)")
e("s_branch C_auxw")
lbl("C_extra")
srd(16, 4, 8192*1152)
e("s_add_u32 s48, s37, 8160")
e("s_mul_i32 s48, s48, 1152")
e(f"buffer_load_dwordx4 v[{XF}:{XF+3}], v3, s[16:19], s48 offen")
e(f"buffer_load_dwordx4 v[{XF+8}:{XF+11}], v3, s[20:23], 0 offen")
e(f"buffer_load_dwordx4 v[{XF+12}:{XF+15}], v3, s[20:23], 0 offen offset:1024")
for i in range(4): e(f"v_mov_b32 v{XF+4+i}, 0")
e("s_mov_b64 exec, 0xff")
e(f"buffer_load_dwordx4 v[{XF+4}:{XF+7}], v3, s[16:19], s48 offen offset:1024")
e("s_mov_b64 exec, -1")
e("v_mov_b32 v8, 0"); e("v_mov_b32 v9, 0")
e(f"v_add_u32 v4, {AUX + 2*AUXP}, v3")
e("s_waitcnt vmcnt(0)")
for i in range(8):
    x = XF+i; g = XF+8+i
    e(f"v_lshlrev_b32 v10, 16, v{x}")
    e(f"v_and_b32 v11, s66, v{x}")
    e(f"v_lshlrev_b32 v12, 16, v{g}")
    e(f"v_and_b32 v13, s66, v{g}")
    e("v_add_f32 v8, v8, v10")
    e("v_fmac_f32 v9, v10, v10")
    e("v_add_f32 v8, v8, v11")
    e("v_fmac_f32 v9, v11, v11")
    e("v_mul_f32 v10, v10, v12")
    e("v_mul_f32 v11, v11, v13")
    e(f"v_cvt_pk_bf16_f32 v{x}, v10, v11")
lbl("C_auxw")
e(f"ds_write_b128 v4, v[{XF}:{XF+3}]")
e(f"ds_write_b128 v4, v[{XF}:{XF+3}] offset:1152")
e("s_mov_b64 exec, 0xff")
e(f"ds_write_b128 v4, v[{XF+4}:{XF+7}] offset:1024")
e(f"ds_write_b128 v4, v[{XF+4}:{XF+7}] offset:2176")
e("s_mov_b64 exec, -1")
lbl("C_auxdone")
e("v_and_b32 v6, 3, v0")
e("v_lshlrev_b32 v6, 2, v6")
e(f"v_add_u32 v6, {FLG}, v6")
e("s_lshl_b32 s48, s36, 2")
e(f"s_add_u32 s48, s48, {FLG}")
e("v_mov_b32 v7, s48")
e("v_mov_b32 v19, 1")
e("ds_write_b32 v7, v19 offset:64")
e("s_cmp_lg_u32 s36, 2")
e("s_cbranch_scc1 C_nostat")
for mod in ["quad_perm:[1,0,3,2]", "quad_perm:[2,3,0,1]", "row_half_mirror", "row_mirror"]:
    e("s_nop 1")
    e(f"v_add_f32_dpp v10, v8, v8 {mod} row_mask:0xf bank_mask:0xf")
    e(f"v_add_f32_dpp v11, v9, v9 {mod} row_mask:0xf bank_mask:0xf")
    e("v_mov_b32 v8, v10"); e("v_mov_b32 v9, v11")
e("s_nop 1")
for r, base in ((8, 48), (9, 52)):
    for k in range(4): e(f"v_readlane_b32 s{base+k}, v{r}, {16*k}")
e("s_nop 3")
for r, base in ((8, 48), (9, 52)):
    e(f"v_mov_b32 v{r}, s{base}")
    for k in range(1, 4): e(f"v_add_f32 v{r}, s{base+k}, v{r}")
finalize_stats([(8, 9, 10)])
e(f"v_mov_b32 v10, {STATT + 98*8}")
e("ds_write_b64 v10, v[8:9]")
lbl("C_nostat")
e("v_and_b32 v1, 15, v0")
e("v_lshrrev_b32 v2, 4, v0")
e("v_lshrrev_b32 v4, 2, v1")
e("v_sub_u32 v4, 0, v4")
e("v_xor_b32 v4, v4, v2")
e("v_and_b32 v4, 3, v4")
e("v_lshlrev_b32 v4, 4, v4")
e("v_lshl_add_u32 v13, v1, 6, v4")
e("v_bfe_u32 v4, v0, 2, 2")
e("v_lshl_add_u32 v5, v2, 3, v4")
e("v_lshlrev_b32 v5, 7, v5")
e("v_and_b32 v8, 3, v0")
e("v_lshl_add_u32 v5, v8, 3, v5")
e("v_lshrrev_b32 v4, 1, v4")
e("v_and_b32 v8, 1, v2")
e("v_lshl_or_b32 v4, v8, 1, v4")
e("v_xor_b32 v4, s36, v4")
e("v_lshl_add_u32 v5, v4, 5, v5")
e(f"v_add_u32 v14, {WOFF}, v5")
e("v_min_u32 v4, 2, v1")
e(f"v_mul_u32_u24 v4, {AUXP}, v4")
e("v_lshl_add_u32 v4, v2, 4, v4")
e(f"s_add_u32 s48, s39, {AUX}")
e("v_add_u32 v15, s48, v4")
for i in range(0, 84, 2): e(f"v_mov_b64 v[{ACC+i}:{ACC+i+1}], 0")
e("v_mov_b32 v19, 0")
e(f"s_mov_b32 s50, {PS}")
e("s_mov_b32 s53, 1")
def xread(par, sp, T):
    x = XF + T*4
    if T < 6: return f"ds_read_b128 v[{x}:{x+3}], v13 offset:{par*XS + sp*XH + T*1024}"
    return f"ds_read_b128 v[{x}:{x+3}], v15 offset:{par*128 + sp*64}"
def wreads(par, sp):
    r = []
    for t in range(3):
        w = WF + (sp*3+t)*4
        o = par*WS + t*8192 + sp*4096
        r.append(f"ds_read_b64_tr_b16 v[{w}:{w+1}], v14 offset:{o}")
        r.append(f"ds_read_b64_tr_b16 v[{w+2}:{w+3}], v14 offset:{o+512}")
    return r
def mf(sp, T, t):
    c = ACC + (T*3+t)*4; w = WF + (sp*3+t)*4; x = XF + T*4
    return f"v_mfma_f32_16x16x32_bf16 v[{c}:{c+3}], v[{w}:{w+3}], v[{x}:{x+3}], v[{c}:{c+3}]"
if CPRIO: e(f"s_setprio {CPRIO}")
spin(6, 64, 8, 1)
st2()
spin(6, 0, 8, 1)
st2()
def chunk_body(par):
    body = []
    w1 = wreads(par, 1)
    for T in range(7):
        for t in range(3):
            body.append(("m", [("x", 0, min(6, T + (WGRAN-1 if T % WGRAN == 0 else 0)))] + [("w", 0, 2 if WGRAN > 1 else t)], mf(0, T, t)))
            k = T*3+t-3
            if 0 <= k < 6: body.append(("r", ("w", 1, k//2), w1[k]))
        body.append(("r", ("x", 1, T), xread(par, 1, T)))
    nx = 1-par
    w0 = wreads(nx, 0)
    book = [("FR",), "v_add_u32 v19, 1, v19"]
    if par == 1:
        book += ["s_add_u32 s53, s53, 1", "v_add_u32 v13, s50, v13", "v_add_u32 v14, s50, v14", "v_add_u32 v15, 0x100, v15", "s_sub_u32 s50, 0, s50"]
    pend = []
    for T in range(7):
        if T == BARPOS:
            assert not book
            body.append(("bar", nx))
            pend = [("r", ("w", 0, k//2), w0[k]) for k in range(6)]
            pend = pend[0:2] + [("r", ("x", 0, 0), xread(nx, 0, 0))] + pend[2:6] + [("r", ("x", 0, TT), xread(nx, 0, TT)) for TT in range(1, BARPOS)]
        for t in range(3):
            body.append(("m", [("x", 1, min(6, T + (WGRAN-1 if T % WGRAN == 0 else 0)))] + [("w", 1, 2 if WGRAN > 1 else t)], mf(1, T, t)))
            if book:
                it = book.pop(0)
                body.append(("r", ("f",), f"ds_read_b32 v8, v6 offset:{nx*16}") if it == ("FR",) else ("x", it))
            if pend: body.append(pend.pop(0))
        if T >= BARPOS: pend.append(("r", ("x", 0, T), xread(nx, 0, T)))
    while pend: body.append(pend.pop(0))
    return body
bodyA = chunk_body(0); bodyB = chunk_body(1)
bi = [i for i, it in enumerate(bodyB) if it[0] == "bar"][0]
init_reads = [it for it in bodyB[bi:] if it[0] == "r"]
for it in init_reads: e(it[2])
lbl("C_loop")
seq = [it[1] for it in init_reads]
lastwait = None
def emit(body):
    global lastwait
    for it in body:
        if it[0] == "r":
            e(it[2]); seq.append(it[1])
        elif it[0] == "x":
            e(it[1])
        elif it[0] == "m":
            idx = max(max(i for i, tg in enumerate(seq) if tg == need) for need in it[1])
            n = len(seq) - 1 - idx
            if lastwait is None or idx > lastwait:
                e(f"s_waitcnt lgkmcnt({min(n,15)})"); lastwait = idx
            e(it[2])
        elif it[0] == "bar":
            e("s_waitcnt lgkmcnt(0)"); lastwait = len(seq)-1
            e("ds_write_b32 v7, v19 offset:32")
            st2()
            spin(6, it[1]*16, 8, "s53", preread=True)
            st2()
emit(bodyA)
e("s_cmp_eq_u32 s53, 5")
e("s_cbranch_scc1 C_epi")
emit(bodyB)
e("s_branch C_loop")
out.extend(deferred); deferred.clear()
lbl("C_epi")
e("s_barrier")
e("s_waitcnt lgkmcnt(0)")
e(f"v_lshlrev_b32 v4, 3, v1")
e(f"v_add_u32 v4, {STATT}, v4")
e(f"v_mul_u32_u24 v5, {OUTP}, v1")
e("v_lshl_add_u32 v5, v2, 3, v5")
e("s_lshl_b32 s48, s36, 5")
e(f"s_add_u32 s48, s48, {OUTT}")
e("v_add_u32 v5, s48, v5")
ST = XF
for T in range(7): e(f"ds_read_b64 v[{ST+2*T}:{ST+2*T+1}], v4 offset:{T*128}")
C1 = XF+14; C2 = XF+26; TM = XF+38
for t in range(3):
    for r in range(4):
        a = ACC + (6*3+t)*4 + r
        e(f"v_mov_b32_dpp v{C1+t*4+r}, v{a} row_newbcast:0 row_mask:0xf bank_mask:0xf")
        e(f"v_mov_b32_dpp v{C2+t*4+r}, v{a} row_newbcast:1 row_mask:0xf bank_mask:0xf")
e("s_waitcnt lgkmcnt(0)")
n = 0
for T in range(7):
    st = ST+2*T
    for t in range(3):
        a = ACC + (T*3+t)*4
        tm = TM + (n % 3)*6; n += 1
        for h in range(2):
            e(f"v_pk_fma_f32 v[{tm+2*h}:{tm+2*h+1}], v[{C1+t*4+2*h}:{C1+t*4+2*h+1}], v[{st}:{st+1}], v[{C2+t*4+2*h}:{C2+t*4+2*h+1}] op_sel:[0,0,0] op_sel_hi:[1,0,1]")
        for h in range(2):
            e(f"v_pk_fma_f32 v[{tm+2*h}:{tm+2*h+1}], v[{a+2*h}:{a+2*h+1}], v[{st}:{st+1}], v[{tm+2*h}:{tm+2*h+1}] op_sel:[0,1,0] op_sel_hi:[1,1,1]")
        e(f"v_cvt_pk_bf16_f32 v{tm+4}, v{tm}, v{tm+1}")
        e(f"v_cvt_pk_bf16_f32 v{tm+5}, v{tm+2}, v{tm+3}")
        e(f"ds_write_b64 v5, v[{tm+4}:{tm+5}] offset:{T*16*OUTP + t*128}")
    e(f"v_mov_b32 v19, {T+1}")
    e("ds_write_b32 v7, v19 offset:80")
st2()
e("s_branch L_fin")
out.extend(deferred); deferred.clear()

lbl("L_prod")
if P0PRIO: e(f"s_setprio {P0PRIO}")
XR = 20; GP = 56; GF = 76; SA = 116; TP = 128
e("s_sub_u32 s46, s36, 4")
e("s_lshr_b32 s47, s46, 2")
e("s_and_b32 s46, s46, 3")
e("v_and_b32 v2, 7, v0")
e("v_lshrrev_b32 v3, 3, v0")
e("v_lshlrev_b32 v4, 4, v2")
e("v_mul_u32_u24 v8, 1152, v3")
e("v_add_u32 v5, v8, v4")
e("v_add_u32 v6, 9216, v5")
e("v_add_u32 v7, 18432, v5")
e("v_and_b32 v9, 16, v0")
e("v_lshlrev_b32 v9, 1, v9")
e("v_xor_b32 v8, v5, v9")
e("v_xor_b32 v9, 64, v8")
e(f"s_mul_i32 s42, s46, {24*1152}")
e("s_add_u32 s44, s40, s42")
e(f"s_mul_i32 s42, s46, {16*1152}")
e("s_add_u32 s45, s41, s42")
e("s_lshl_b32 s42, s47, 7")
e("s_add_u32 s54, s39, s42")
e("s_cmp_ge_u32 s54, 1152")
e("s_cselect_b32 s42, 1152, 0")
e("s_sub_u32 s54, s54, s42")
e("s_lshl_b32 s49, s46, 11")
e(f"s_mul_i32 s42, s47, {WS}")
e("s_add_u32 s49, s49, s42")
e(f"s_add_u32 s49, s49, {WOFF}")
vm = []
def gload(i):
    e(f"buffer_load_dwordx4 v[{GP+4*i}:{GP+4*i+3}], v4, s[20:23], s{54+i} offen"); vm.append(("g", i))
def xload(i):
    e(f"s_add_u32 s67, s44, s{54+i}")
    for rg in range(3):
        r = XR + (i%3)*12 + rg*4
        e(f"buffer_load_dwordx4 v[{r}:{r+3}], v{5+rg}, s[16:19], s67 offen {XFLAG}"); vm.append(("x", i))
def wdma(i):
    so = (i % 2)*PS
    e(f"s_mul_i32 s43, s{54+i}, 576")
    e("s_add_u32 s43, s43, s45")
    e("s_add_u32 s42, s43, 9216")
    for gg in range(2):
        for c in range(3):
            e(f"s_add_u32 m0, s49, {so + c*8192 + gg*1024 - c*128}")
            e("s_nop 0")
            e(f"buffer_load_dwordx4 v{8+gg}, s[28:31], s{43-gg} offen offset:{c*128} {WFLAG} lds"); vm.append(("w", i))
def wait_min(tags):
    last = max(k for k, t in enumerate(vm) if t in tags)
    n = len([t for t in vm[last+1:] if t[1] != 4]) if tags[0][1] != 4 else len(vm)-1-last
    e(f"s_waitcnt vmcnt({min(n,63)})")
e("s_waitcnt lgkmcnt(0)")
srd(16, 4, 8192*1152)
srd(20, 6, 1152)
srd(28, 10, 576*1152)
gload(0); xload(0); wdma(0)
for i in range(1, 5):
    e(f"s_add_u32 s{54+i}, s{53+i}, 256")
    e(f"s_cmp_ge_u32 s{54+i}, 1152")
    e("s_cselect_b32 s42, 1152, 0")
    e(f"s_sub_u32 s{54+i}, s{54+i}, s42")
srd(32, 12, 8192*1152)
e("v_lshrrev_b32 v10, 2, v3")
e("v_sub_u32 v10, 0, v10")
e("v_xor_b32 v10, v10, v2")
e("v_and_b32 v10, 3, v10")
e("v_lshlrev_b32 v10, 4, v10")
e("v_lshl_add_u32 v10, v3, 6, v10")
e("v_lshrrev_b32 v11, 2, v2")
e(f"v_mul_u32_u24 v11, {XH}, v11")
e("s_and_b32 s43, s46, 1")
e("s_lshl_b32 s43, s43, 5")
e("v_xor_b32 v10, s43, v10")
e("s_mul_i32 s42, s46, 1536")
e(f"s_mul_i32 s43, s47, {XS}")
e("s_add_u32 s42, s42, s43")
e("v_xor_b32 v12, 32, v10")
e("v_add3_u32 v10, v10, v11, s42")
e("v_add3_u32 v11, v12, v11, s42")
e(f"v_add_u32 v12, {PS}, v10")
e(f"v_add_u32 v13, {PS}, v11")
e("s_lshl_b32 s42, s47, 4")
e("s_lshl_b32 s43, s46, 2")
e("s_add_u32 s42, s42, s43")
e(f"s_add_u32 s42, s42, {FLG}")
e("v_mov_b32 v16, s42")
e("v_and_b32 v17, 3, v0")
e("v_lshlrev_b32 v17, 2, v17")
e(f"v_add_u32 v17, {FLG}, v17")
for i in range(0, 12, 2): e(f"v_mov_b64 v[{SA+i}:{SA+i+1}], 0")
e("s_mov_b32 s48, 0x3f803f80")
def gunpack(i):
    for k in range(4):
        e(f"v_lshlrev_b32 v{GF+8*i+2*k}, 16, v{GP+4*i+k}")
        e(f"v_and_b32 v{GF+8*i+2*k+1}, s66, v{GP+4*i+k}")
def convert(i):
    gf = GF + 8*i
    for rg in range(3):
        regs = [XR + (i%3)*12 + rg*4 + k for k in range(4)]
        s1a, s1b, s2a, s2b = SA+rg*4, SA+rg*4+1, SA+rg*4+2, SA+rg*4+3
        tb = TP + (rg % 2)*8
        for k in range(4):
            e(f"v_lshlrev_b32 v{tb+2*k}, 16, v{regs[k]}")
            e(f"v_and_b32 v{tb+2*k+1}, s66, v{regs[k]}")
        for k in range(4):
            lo, hi = tb+2*k, tb+2*k+1
            if STATS == "plain":
                e(f"v_add_f32 v{s1a}, v{s1a}, v{lo}")
                e(f"v_add_f32 v{s1b}, v{s1b}, v{hi}")
            else:
                e(f"v_dot2_f32_bf16 v{s1a if k%2 else s1b}, v{regs[k]}, s48, v{s1a if k%2 else s1b}")
            if STATS == "dot2":
                e(f"v_dot2_f32_bf16 v{s2a if k%2 else s2b}, v{regs[k]}, v{regs[k]}, v{s2a if k%2 else s2b}")
            else:
                e(f"v_fmac_f32 v{s2a}, v{lo}, v{lo}")
                e(f"v_fmac_f32 v{s2b}, v{hi}, v{hi}")
        for k in range(4):
            lo, hi = tb+2*k, tb+2*k+1
            e(f"v_mul_f32 v{lo}, v{lo}, v{gf+2*k}")
            e(f"v_mul_f32 v{hi}, v{hi}, v{gf+2*k+1}")
        for k in range(4):
            e(f"v_cvt_pk_bf16_f32 v{regs[k]}, v{tb+2*k}, v{tb+2*k+1}")
        e(f"ds_write_b128 v{10+2*(i%2)+(rg&1)}, v[{regs[0]}:{regs[3]}] offset:{rg*512}")
def capture(fn, *args):
    global out
    save = out; out = []; n0 = len(vm)
    fn(*args)
    lines = out; out = save
    tags = vm[n0:]; del vm[n0:]
    groups = []; cur = []
    for l in lines:
        cur.append(l)
        if "buffer_load" in l: groups.append((cur, tags[len(groups)])); cur = []
    assert not cur
    return groups
def convert_with(i, groups):
    global out
    save = out; out = []
    convert(i)
    lines = out; out = save
    if not groups:
        out.extend(lines); return
    step = max(1, (len(lines) - 8) // len(groups))
    gi = 0
    for k, l in enumerate(lines):
        if gi < len(groups) and k == gi*step:
            out.extend(groups[gi][0]); vm.append(groups[gi][1]); gi += 1
        out.append(l)
    assert gi == len(groups)
ILV = int(opts.get("ilv", 1))
st2()
for i in range(5):
    if i == 4:
        e("s_cmp_eq_u32 s47, 1")
        e("s_cbranch_scc1 P_odd_done")
    if i >= 2:
        e(f"s_add_u32 s43, s47, {2*(i-2)+1}")
        spin(17, 32, 18, "s43")
    wait_min([("x", i)] + ([("g", 0)] if i == 0 else []))
    st2()
    groups = []
    if i == 0:
        gunpack(0)
    else:
        groups += capture(wdma, i)
        if i + 2 <= 3: groups += capture(xload, i+2)
    if ILV: convert_with(i, groups)
    else:
        for g_, t_ in groups: out.extend(g_); vm.append(t_)
        convert(i)
    wait_min([("w", i)])
    e(f"v_mov_b32 v19, {i+1}")
    e("ds_write_b32 v16, v19")
    st2()
    if i == 0:
        if P0PRIO != PPRIO: e(f"s_setprio {PPRIO}")
        xload(1); xload(2)
        e(f"v_mov_b32 v19, {FLG+64}")
        spin(19, 0, 18, 1)
        e(f"s_add_u32 s43, s54, {AUX}")
        e("v_add_u32 v18, s43, v4")
        for k in range(1, 5):
            e(f"ds_read_b128 v[{GP+4*k}:{GP+4*k+3}], v18 offset:{256*k}")
        e("s_waitcnt lgkmcnt(0)")
        for k in range(1, 5): gunpack(k)
    if i == 2:
        e("s_cmp_eq_u32 s47, 1"); e(f"s_cbranch_scc1 P_skipx{i}")
        xload(4)
        lbl(f"P_skipx{i}")
def reduce8():
    e("s_nop 3")
    for rg in range(3):
        e(f"v_add_f32 v{TP+2*rg}, v{SA+rg*4}, v{SA+rg*4+1}")
        e(f"v_add_f32 v{TP+2*rg+1}, v{SA+rg*4+2}, v{SA+rg*4+3}")
    src, dst = TP, TP+8
    for mod in ["quad_perm:[1,0,3,2]", "quad_perm:[2,3,0,1]", "row_half_mirror"]:
        e("s_nop 1")
        for k in range(6): e(f"v_add_f32_dpp v{dst+k}, v{src+k}, v{src+k} {mod} row_mask:0xf bank_mask:0xf")
        src, dst = dst, src
    e("s_mul_i32 s42, s46, 192")
    e(f"s_add_u32 s42, s42, {STATT}")
    e("v_lshlrev_b32 v14, 3, v3")
    e("v_add_u32 v14, s42, v14")
    e("s_lshl_b32 s42, s46, 2")
    e(f"s_add_u32 s42, s42, {FLG+48}")
    e("v_mov_b32 v15, s42")
R = TP+8
reduce8()
spin(15, 0, 18, 1)
for rg in range(3): e(f"ds_read_b64 v[{TP+2*rg}:{TP+2*rg+1}], v14 offset:{PART-STATT + rg*64}")
e("s_waitcnt lgkmcnt(0)")
for k in range(6): e(f"v_add_f32 v{R+k}, v{R+k}, v{TP+k}")
finalize_stats([(R+2*rg, R+2*rg+1, TP+rg) for rg in range(3)])
for rg in range(3): e(f"ds_write_b64 v14, v[{R+2*rg}:{R+2*rg+1}] offset:{rg*64}")
e("v_mov_b32 v19, 5")
e("ds_write_b32 v16, v19 offset:16")
st2()
e("s_branch L_store")
lbl("P_odd_done")
reduce8()
for rg in range(3): e(f"ds_write_b64 v14, v[{R+2*rg}:{R+2*rg+1}] offset:{PART-STATT + rg*64}")
e("v_mov_b32 v19, 1")
e("ds_write_b32 v15, v19")
st2()

lbl("L_store")
e("s_sub_u32 s46, s36, 4")
e("s_cmp_eq_u32 s46, 7")
e("s_cbranch_scc0 L_st1")
e("s_barrier")
e("s_branch L_fin")
lbl("L_st1")
e("s_add_u32 s47, s46, 1")
e("s_cmp_eq_u32 s46, 6")
e("s_cbranch_scc1 L_xrow")
for jj in range(3):
    e(f"v_add_u32 v2, {64*jj}, v0")
    e("v_mul_u32_u24 v3, 2731, v2")
    e("v_lshrrev_b32 v3, 16, v3")
    e("v_mul_u32_u24 v4, 24, v3")
    e("v_sub_u32 v4, v2, v4")
    e("v_lshlrev_b32 v4, 4, v4")
    e(f"v_mul_u32_u24 v5, {OUTP}, v3")
    e(f"v_add_u32 v{8+jj}, v5, v4")
    e("v_mul_u32_u24 v5, 1152, v3")
    e(f"v_add_u32 v{12+jj}, v5, v4")
e(f"s_mul_i32 s48, s46, {16*OUTP}")
e(f"s_add_u32 s48, s48, {OUTT}")
for jj in range(3): e(f"v_add_u32 v{8+jj}, s48, v{8+jj}")
e(f"s_mul_i32 s48, s46, {16*1152}")
e("s_add_u32 s48, s48, s40")
e("s_add_u32 s48, s48, s41")
e("s_add_u32 s49, s48, 9216")
e("s_barrier")
st2()
spin(17, 80, 18, "s47")
st2()
for jj in range(6): e(f"ds_read_b128 v[{20+4*jj}:{23+4*jj}], v{8+jj%3} offset:{(jj//3)*8*OUTP}")
for jj in range(6):
    e(f"s_waitcnt lgkmcnt({5-jj})")
    e(f"buffer_store_dwordx4 v[{20+4*jj}:{23+4*jj}], v{12+jj%3}, s[32:35], s{48+jj//3} offen {OFLAG}")
e("s_branch L_fin")
lbl("L_xrow")
e("v_lshlrev_b32 v3, 4, v0")
e(f"v_add_u32 v6, {OUTT + 98*OUTP}, v3")
e("s_add_u32 s48, s37, 8160")
e("s_mul_i32 s48, s48, 1152")
e("s_add_u32 s48, s48, s41")
e("s_barrier")
st2()
spin(17, 80, 18, "s47")
st2()
e("s_mov_b64 exec, 0xffffff")
e("ds_read_b128 v[44:47], v6")
e("s_waitcnt lgkmcnt(0)")
e(f"buffer_store_dwordx4 v[44:47], v3, s[32:35], s48 offen {OFLAG}")
lbl("L_fin")
if STAMP == 2:
    e("s_mov_b64 exec, -1")
    st2(); e("s_waitcnt vmcnt(0)"); st2()
    e("s_memrealtime s[72:73]"); e("s_waitcnt lgkmcnt(0)"); e("v_writelane_b32 v167, s72, 63")
    srd(56, 14, 1<<22)
    e("s_lshl_b32 s60, s2, 12")
    e("s_lshl_b32 s61, s36, 8")
    e("s_add_u32 s60, s60, s61")
    e("v_lshlrev_b32 v1, 2, v0")
    e("buffer_store_dword v167, v1, s[56:59], s60 offen")
lbl("L_end")

text = HDR + f"""; @launch grid=(256,1,1) block=({NW*64},1,1) lds={LDS_TOTAL}
.amdgcn_target "amdgcn-amd-amdhsa--gfx950"
.text
.globl {NAME}_kernel
.p2align 8
.type {NAME}_kernel,@function
{NAME}_kernel:
""" + "\n".join(out) + f"""
    s_endpgm
.section .rodata,"a"
.p2align 6
.amdhsa_kernel {NAME}_kernel
  .amdhsa_next_free_vgpr 168
  .amdhsa_next_free_sgpr 100
  .amdhsa_accum_offset 168
  .amdhsa_group_segment_fixed_size 0
  .amdhsa_kernarg_size 56
  .amdhsa_user_sgpr_count 2
  .amdhsa_user_sgpr_kernarg_segment_ptr 1
  .amdhsa_system_sgpr_workgroup_id_x 1
.end_amdhsa_kernel
"""
open(sys.argv[1], "w").write(text)
```

```python
import sys
NAME = "standalone__layernorm_linear__sampling"
opts = dict(a.split("=", 1) for a in sys.argv[2:] if "=" in a)
def opt(k, d): return type(d)(opts.get(k, d))
STAMP = opt("stamp", 0)
STATS = opt("stats", "plain")
XFLAG = opt("xflag", ""); WFLAG = opt("wflag", ""); OFLAG = opt("oflag", "nt")
BARPOS = opt("barpos", 3)
PPRIO = opt("pprio", 0); P0PRIO = opt("p0prio", 2); CPRIO = opt("cprio", 0)
ROT = opt("rot", 1); SAFE = opt("safe", 1); WGRAN = opt("wgran", 2)
SPAN = opt("span", 1.0); X1MODE = opt("x1mode", 1); ROLEPERM = opt("roleperm", 1)
NW = 12
out = []
def e(s): out.append("    " + s)
def lbl(s): out.append(s + ":")
HDR = open("cdna_kernels/%s.s.ref" % NAME).read().split("; Override launch")[0]

XH = 6208; XS = 12416; WS = 24576; WOFF = 2*XS; PS = 2*XS + 2*WS
AUX = 2*PS; AUXP = 2080
STATT = AUX + 3*AUXP
PART = STATT + 896
FLG = (PART + 768 + 127)//128*128
LDS_TOTAL = FLG + 128
OUTT = PS; OUTP = 400
F_DONE, F_STATB, F_AUX, F_OUT = 32, 48, 64, 96

def st2():
    if STAMP != 2: return
    e("s_memtime s[70:71]")
    e("s_waitcnt lgkmcnt(0)")
    e("s_mov_b32 m0, s69"); e("s_nop 0"); e("v_writelane_b32 v167, s70, m0")
    e("s_add_u32 s69, s69, 1")
def srd(d, b, n):
    e(f"s_mov_b32 s{d}, s{b}")
    e(f"s_and_b32 s{d+1}, s{b+1}, 0xffff")
    e(f"s_mov_b32 s{d+2}, {n}")
    e(f"s_mov_b32 s{d+3}, 0x00020000")
def finalize_stats(trips):
    seq = [
     "v_mul_f32 v{m}, 0x3ae38e39, v{m}",
     "v_mul_f32 v{q}, 0x3ae38e39, v{q}",
     "v_fma_f32 v{q}, -v{m}, v{m}, v{q}",
     "v_max_f32 v{q}, 0, v{q}",
     "v_cvt_pk_bf16_f32 v{t}, v{m}, v{q}",
     "v_lshlrev_b32 v{m}, 16, v{t}",
     "v_and_b32 v{q}, 0xffff0000, v{t}",
     "v_add_f32 v{q}, 0x3727c5ac, v{q}",
     "v_cvt_pk_bf16_f32 v{t}, v{q}, v{q}",
     "v_lshlrev_b32 v{q}, 16, v{t}",
     "v_sqrt_f32 v{q}, v{q}",
     "NOP",
     "v_cvt_pk_bf16_f32 v{t}, v{q}, v{q}",
     "v_lshlrev_b32 v{q}, 16, v{t}",
     "v_rcp_f32 v{q}, v{q}",
     "NOP",
     "v_mul_f32 v{m}, v{m}, v{q}",
     "v_sub_f32 v{m}, 0, v{m}"]
    for s in seq:
        if s == "NOP": e("s_nop 0"); continue
        for (m, q, t) in trips: e(s.format(m=m, q=q, t=t))
spin_id = [0]
deferred = []
def spin(vaddr, off, vtmp, sneed, preread=False):
    global out
    k = spin_id[0]; spin_id[0] += 1
    save = None
    if preread:
        e(f"v_cmp_le_u32 vcc, {sneed}, v{vtmp}")
        e("s_cmp_eq_u64 vcc, exec")
        e(f"s_cbranch_scc0 SP_{k}")
        lbl(f"SP_ok{k}")
        save = out; out = []
    lbl(f"SP_{k}")
    e(f"ds_read_b32 v{vtmp}, v{vaddr} offset:{off}")
    e("s_waitcnt lgkmcnt(0)")
    e(f"v_cmp_le_u32 vcc, {sneed}, v{vtmp}")
    if SAFE:
        e("s_add_u32 s68, s68, 1")
        e("s_bitcmp1_b32 s68, 18")
        e(f"s_cbranch_scc1 SP_ok{k}")
    e("s_cmp_eq_u64 vcc, exec")
    e(f"s_cbranch_scc0 SP_{k}")
    if preread:
        e(f"s_branch SP_ok{k}")
        deferred.extend(out); out = save
    else:
        lbl(f"SP_ok{k}")

e("s_cmp_ge_u32 s2, 255")
e("s_cbranch_scc1 L_end")
if STAMP == 2:
    e("s_mov_b32 s69, 0"); e("v_mov_b32 v167, 0"); e("s_memrealtime s[72:73]"); st2(); e("v_writelane_b32 v167, s72, 62")
e("s_load_dwordx4 s[4:7], s[0:1], 0")
e("s_load_dwordx4 s[8:11], s[0:1], 16")
e("s_load_dwordx2 s[12:13], s[0:1], 32")
if STAMP: e("s_load_dwordx2 s[14:15], s[0:1], 48")
if P0PRIO: e(f"s_setprio {P0PRIO}")
e("v_readfirstlane_b32 s36, v0")
e("v_and_b32 v0, 63, v0")
e("s_and_b32 s3, s2, 7")
e("s_lshr_b32 s40, s2, 3")
e("s_lshl_b32 s41, s3, 1")
e("s_add_u32 s41, s41, s40")
e("s_sub_u32 s41, s41, 30")
e("s_mul_i32 s42, s3, 10")
e("s_cmp_ge_u32 s40, 30")
e("s_cselect_b32 s40, s41, s40")
e("s_cselect_b32 s42, 80, s42")
e("s_mul_i32 s41, s40, 43")
e("s_lshr_b32 s41, s41, 7")
e("s_mul_i32 s43, s41, 3")
e("s_sub_u32 s38, s40, s43")
e("s_add_u32 s37, s42, s41")
e("s_mul_i32 s42, s41, 43")
e("s_lshr_b32 s42, s42, 7")
e("s_mul_i32 s43, s42, 3")
e("s_sub_u32 s24, s41, s43")
e("s_add_u32 s27, s38, s42")
e("s_sub_u32 s43, s27, 3")
e("s_cmp_ge_u32 s27, 3")
e("s_cselect_b32 s27, s43, s27")
if ROT == 0: e("s_mov_b32 s24, 0"); e("s_mov_b32 s27, 0")
if ROT == 2: e("s_mov_b32 s24, 0")
if ROT == 3:
    e("s_mov_b32 s24, 0")
    e("s_lshr_b32 s42, s41, 1")
    e("s_add_u32 s27, s38, s42")
    e("s_mul_i32 s43, s27, 43")
    e("s_lshr_b32 s43, s43, 7")
    e("s_mul_i32 s43, s43, 3")
    e("s_sub_u32 s27, s27, s43")
    e("s_and_b32 s39, s41, 1")
e("s_mul_i32 s24, s24, 384")
e("s_lshl_b32 s27, s27, 7")
e("s_add_u32 s64, s27, 128")
e("s_cmp_eq_u32 s64, 384")
e("s_cselect_b32 s64, 0, s64")
e(f"s_mul_i32 s40, s37, {96*1152}")
e("s_mul_i32 s41, s38, 384")
e("s_lshr_b32 s36, s36, 6")
if ROLEPERM:
    e("s_xor_b32 s42, s36, 4")
    e("s_cmp_lt_u32 s36, 8")
    e("s_cselect_b32 s36, s42, s36")
e("v_and_b32 v2, 7, v0")
e("v_lshrrev_b32 v3, 3, v0")
e("v_lshlrev_b32 v4, 4, v2")
e("v_mul_u32_u24 v8, 1152, v3")
e("v_add_u32 v5, v8, v4")
e("v_add_u32 v6, 9216, v5")
e("v_add_u32 v7, 18432, v5")
e("v_and_b32 v9, 16, v0")
e("v_lshlrev_b32 v9, 1, v9")
e("v_xor_b32 v8, v5, v9")
e("v_xor_b32 v9, 64, v8")
e("v_lshlrev_b32 v10, 2, v0")
e("v_mov_b32 v11, 0")
e(f"v_add_u32 v10, {FLG - 128}, v10")
e("ds_write_b32 v10, v11")
e("v_lshlrev_b32 v1, 4, v0")
e("s_lshr_b32 s47, s36, 3")
e("s_and_b32 s46, s36, 3")
e(f"s_mul_i32 s42, s46, {24*1152}")
e("s_add_u32 s44, s40, s42")
e("s_cmp_eq_u32 s47, 1")
e("s_cselect_b32 s54, s64, s27")
e("s_add_u32 s54, s54, s24")
e(f"s_mul_i32 s42, s46, {16*1152}")
e("s_add_u32 s45, s41, s42")
e("s_lshl_b32 s49, s46, 11")
e(f"s_mul_i32 s42, s47, {WS}")
e("s_add_u32 s49, s49, s42")
e(f"s_add_u32 s49, s49, {WOFF}")
e("s_mov_b32 s68, 0")
e("s_mov_b32 s66, 0xffff0000")

XR = 20; GP = 44; GF = 64; SA = 104; TP = 128; ON = 144; EX = 146
vm = []
def gload(i):
    e(f"buffer_load_dwordx4 v[{GP+4*i}:{GP+4*i+3}], v4, s[20:23], s{54+i} offen"); vm.append(("g", i))
def xload(i):
    e(f"s_add_u32 s67, s44, s{54+i}")
    for rg in range(3):
        r = XR + (i%2)*12 + rg*4
        e(f"buffer_load_dwordx4 v[{r}:{r+3}], v{5+rg}, s[16:19], s67 offen {XFLAG}"); vm.append(("x", i))
def wdma(i):
    so = (i % 2)*PS
    e(f"s_mul_i32 s43, s{54+i}, 576")
    e("s_add_u32 s43, s43, s45")
    e("s_add_u32 s42, s43, 9216")
    for gg in range(2):
        for c in range(3):
            e(f"s_add_u32 m0, s49, {so + c*8192 + gg*1024 - c*128}")
            e("s_nop 0")
            e(f"buffer_load_dwordx4 v{8+gg}, s[28:31], s{43-gg} offen offset:{c*128} {WFLAG} lds"); vm.append(("w", i))
def wait_min(tags):
    last = max(k for k, t in enumerate(vm) if t in tags)
    n = len([t for t in vm[last+1:] if t[1] != 4]) if tags[0][1] != 4 else len(vm)-1-last
    e(f"s_waitcnt vmcnt({min(n,63)})")
def kappa_bases():
    e("s_add_u32 s65, s64, 128")
    e("s_cmp_eq_u32 s65, 384")
    e("s_cselect_b32 s65, 0, s65")
    if ROT == 3:
        e("s_mul_i32 s42, s39, 384")
        e("s_add_u32 s25, s42, 384")
        e("s_sub_u32 s26, 768, s42")
        return
    for k in (25, 26):
        e(f"s_add_u32 s{k}, s{k-1}, 384")
        e(f"s_cmp_eq_u32 s{k}, 1152")
        e(f"s_cselect_b32 s{k}, 0, s{k}")
Bs = [24, 25, 26]; Rs = [27, 64, 65]

e("s_waitcnt lgkmcnt(0)")
srd(16, 4, 8192*1152)
srd(20, 6, 1152)
e("s_cmp_eq_u32 s47, 0")
e("s_cbranch_scc1 P_l0")
EXC = opt("exc", 1)
def exloads():
    e("s_add_u32 s48, s37, 8160")
    e("s_mul_i32 s48, s48, 1152")
    e("s_mov_b32 s60, s16")
    e("s_mov_b32 s61, s17")
    e("s_add_u32 s62, s48, 1152")
    e(f"s_min_u32 s62, s62, {8192*1152}")
    e("s_mov_b32 s63, 0x00020000")
    e(f"buffer_load_dwordx4 v[{EX}:{EX+3}], v1, s[60:63], s48 offen")
    e(f"buffer_load_dwordx4 v[{EX+4}:{EX+7}], v1, s[60:63], s48 offen offset:1024")
    e(f"buffer_load_dwordx4 v[{EX+8}:{EX+11}], v1, s[20:23], 0 offen")
    e(f"buffer_load_dwordx4 v[{EX+12}:{EX+15}], v1, s[20:23], 0 offen offset:1024")
if not EXC:
    e("s_cmp_lg_u32 s36, 8")
    e("s_cbranch_scc1 P_l00")
    exloads()
    e("s_barrier")
    e("s_branch P_extra")
lbl("P_l00")
e("s_barrier")
lbl("P_l0")
srd(28, 10, 576*1152)
e("s_cmp_lt_u32 s36, 4")
e("s_cbranch_scc1 P_l2")
gload(0); xload(0)
e("s_cmp_eq_u32 s47, 0")
e("s_cbranch_scc1 P_l1")
e("s_branch P_l3")
lbl("P_l2")
if EXC:
    e("s_cmp_lg_u32 s36, 3")
    e("s_cbranch_scc1 P_l2b")
    exloads()
    lbl("P_l2b")
e("s_cmp_ge_u32 s36, 2")
e("s_cbranch_scc1 P_l3")
e("s_cmp_eq_u32 s36, 1")
e("s_cselect_b32 s60, s8, s6")
e("s_cselect_b32 s61, s9, s7")
e("s_and_b32 s61, s61, 0xffff")
e("s_mov_b32 s62, 1152")
e("s_mov_b32 s63, 0x00020000")
e(f"s_mul_i32 s48, s36, {AUXP}")
e(f"s_add_u32 m0, s48, {AUX}")
e("s_nop 0")
e("buffer_load_dwordx4 v1, s[60:63], 0 offen lds")
e("buffer_load_dwordx4 v1, s[60:63], 0 offen offset:1024 lds")
lbl("P_l3")
wdma(0)
e("s_cmp_lt_u32 s36, 4")
e("s_cbranch_scc0 P_l1")
e("s_barrier")
e("s_branch L_cons")

lbl("P_l1")
kappa_bases()
for i in range(1, 5):
    t0, t1 = 2*i, min(2*i+1, 8)
    e(f"s_add_u32 s42, s{Bs[t0//3]}, s{Rs[t0%3]}")
    e(f"s_add_u32 s43, s{Bs[t1//3]}, s{Rs[t1%3]}")
    e("s_cmp_eq_u32 s47, 1")
    e(f"s_cselect_b32 s{54+i}, s43, s42")
if X1MODE == 2:
    e("s_cbranch_scc0 P_nx1")
    n0 = len(vm); xload(1); del vm[n0:]
    lbl("P_nx1")
srd(32, 12, 8192*1152)
e("v_lshrrev_b32 v10, 2, v3")
e("v_sub_u32 v10, 0, v10")
e("v_xor_b32 v10, v10, v2")
e("v_and_b32 v10, 3, v10")
e("v_lshlrev_b32 v10, 4, v10")
e("v_lshl_add_u32 v10, v3, 6, v10")
e("v_lshrrev_b32 v11, 2, v2")
e(f"v_mul_u32_u24 v11, {XH}, v11")
e("s_and_b32 s43, s46, 1")
e("s_lshl_b32 s43, s43, 5")
e("v_xor_b32 v10, s43, v10")
e("s_mul_i32 s42, s46, 1536")
e(f"s_mul_i32 s43, s47, {XS}")
e("s_add_u32 s42, s42, s43")
e("v_xor_b32 v12, 32, v10")
e("v_add3_u32 v10, v10, v11, s42")
e("v_add3_u32 v11, v12, v11, s42")
e(f"v_add_u32 v12, {PS}, v10")
e(f"v_add_u32 v13, {PS}, v11")
e("s_lshl_b32 s42, s47, 4")
e("s_lshl_b32 s43, s46, 2")
e("s_add_u32 s42, s42, s43")
e(f"s_add_u32 s42, s42, {FLG}")
e("v_mov_b32 v16, s42")
e("v_and_b32 v17, 3, v0")
e("v_lshlrev_b32 v17, 2, v17")
e(f"v_add_u32 v17, {FLG}, v17")
M1 = STATS in ("mfma", "mfma1"); M2 = STATS in ("mfma", "mfma2")
for i in range(0, 24, 2): e(f"v_mov_b64 v[{SA+i}:{SA+i+1}], 0")
e(f"v_mov_b32 v{ON}, 0x3f803f80"); e(f"v_mov_b32 v{ON+1}, 0x3f803f80")
def exstats():
    src, dst = EX+16, EX+18
    for mod in ["quad_perm:[1,0,3,2]", "quad_perm:[2,3,0,1]", "row_half_mirror", "row_mirror"]:
        e("s_nop 1")
        e(f"v_add_f32_dpp v{dst}, v{src}, v{src} {mod} row_mask:0xf bank_mask:0xf")
        e(f"v_add_f32_dpp v{dst+1}, v{src+1}, v{src+1} {mod} row_mask:0xf bank_mask:0xf")
        src, dst = dst, src
    e("s_nop 1")
    for r, base in ((src, 76), (src+1, 80)):
        for k in range(4): e(f"v_readlane_b32 s{base+k}, v{r}, {16*k}")
    e("s_nop 3")
    for r, base in ((src, 76), (src+1, 80)):
        e(f"v_mov_b32 v{r}, s{base}")
        for k in range(1, 4): e(f"v_add_f32 v{r}, s{base+k}, v{r}")
    finalize_stats([(src, src+1, TP)])
    e(f"v_mov_b32 v14, {STATT + 98*8}")
    e(f"ds_write_b64 v14, v[{src}:{src+1}]")
if not EXC:
    e("s_cmp_lg_u32 s36, 8")
    e("s_cbranch_scc1 P_noex")
    exstats()
lbl("P_noex")

def gunpack(i):
    for k in range(4):
        e(f"v_lshlrev_b32 v{GF+8*i+2*k}, 16, v{GP+4*i+k}")
        e(f"v_and_b32 v{GF+8*i+2*k+1}, s66, v{GP+4*i+k}")
def convert(i):
    gf = GF + 8*i
    for rg in range(3):
        regs = [XR + (i%2)*12 + rg*4 + k for k in range(4)]
        S1 = SA + rg*8; S2 = S1 + 4
        tb = TP + (rg % 2)*8
        mm = []
        for h in range(2):
            x = regs[2*h]
            if M1: mm.append(f"v_mfma_f32_4x4x4_16b_bf16 v[{S1}:{S1+3}], v[{ON}:{ON+1}], v[{x}:{x+1}], v[{S1}:{S1+3}]")
            if M2: mm.append(f"v_mfma_f32_4x4x4_16b_bf16 v[{S2}:{S2+3}], v[{x}:{x+1}], v[{x}:{x+1}], v[{S2}:{S2+3}]")
        for k in range(4):
            if mm and (len(mm) == 4 or k % 2 == 0 or (M1 and M2)): e(mm.pop(0))
            e(f"v_lshlrev_b32 v{tb+2*k}, 16, v{regs[k]}")
            e(f"v_and_b32 v{tb+2*k+1}, s66, v{regs[k]}")
        assert not mm
        for k in range(4):
            lo, hi = tb+2*k, tb+2*k+1
            if not M1:
                e(f"v_add_f32 v{S1}, v{S1}, v{lo}")
                e(f"v_add_f32 v{S1+1}, v{S1+1}, v{hi}")
            if not M2:
                e(f"v_fmac_f32 v{S2}, v{lo}, v{lo}")
                e(f"v_fmac_f32 v{S2+1}, v{hi}, v{hi}")
        for k in range(4):
            lo, hi = tb+2*k, tb+2*k+1
            e(f"v_mul_f32 v{lo}, v{lo}, v{gf+2*k}")
            e(f"v_mul_f32 v{hi}, v{hi}, v{gf+2*k+1}")
        for k in range(4):
            e(f"v_cvt_pk_bf16_f32 v{regs[k]}, v{tb+2*k}, v{tb+2*k+1}")
        if opt("w64", 0):
            e(f"ds_write_b64 v{10+2*(i%2)+(rg&1)}, v[{regs[0]}:{regs[1]}] offset:{rg*512}")
            e(f"ds_write_b64 v{10+2*(i%2)+(rg&1)}, v[{regs[2]}:{regs[3]}] offset:{rg*512+8}")
        else:
            e(f"ds_write_b128 v{10+2*(i%2)+(rg&1)}, v[{regs[0]}:{regs[3]}] offset:{rg*512}")
def capture(fn, *args):
    global out
    save = out; out = []; n0 = len(vm)
    fn(*args)
    lines = out; out = save
    tags = vm[n0:]; del vm[n0:]
    groups = []; cur = []
    for l in lines:
        cur.append(l)
        if "buffer_load" in l: groups.append((cur, tags[len(groups)])); cur = []
    assert not cur
    return groups
def convert_with(i, groups):
    global out
    save = out; out = []
    convert(i)
    lines = out; out = save
    if opt("wend", 0):
        lines = [l for l in lines if "ds_write" not in l] + (["    s_waitcnt vmcnt(%d)" % (3 if i in (1, 2) else 0)] if opt("wend", 0) == 2 and i >= 1 else []) + [l for l in lines if "ds_write" in l]
    if opt("novalu", 0) and i >= 1: lines = [l for l in lines if "ds_write" in l] + ["    s_nop 0"]*40
    if opt("nowr", 0) and i >= 1: lines = [l for l in lines if "ds_write" not in l]
    if opt("nodma", 0) and i >= 2:
        groups = [([l.replace("buffer_load_dwordx4 v8", "buffer_load_dwordx4 v[148:151], v8").replace("buffer_load_dwordx4 v9", "buffer_load_dwordx4 v[148:151], v9").replace(" lds", "") for l in g[0]], g[1]) if g is not None else None for g in groups]
    if opt("novm", 0) and i >= 2:
        groups = [([l for l in g[0] if "buffer_load" not in l], g[1]) if g is not None else None for g in groups]
    if not groups:
        out.extend(lines); return
    step = max(1, int((len(lines) - 8) * SPAN) // len(groups))
    gi = 0
    for k, l in enumerate(lines):
        if gi < len(groups) and k == gi*step:
            if groups[gi] is not None:
                out.extend(groups[gi][0]); vm.append(groups[gi][1])
            gi += 1
        out.append(l)
    assert gi == len(groups)
st2()
for i in range(5):
    if i == 4:
        e("s_cmp_eq_u32 s47, 1")
        e("s_cbranch_scc1 P_odd_done")
    if i >= 2:
        e(f"s_add_u32 s43, s47, {2*(i-2)+1}")
        spin(17, F_DONE, 18, "s43")
    if i == 0:
        e("s_cmp_eq_u32 s47, 0")
        e("s_cbranch_scc0 P_w0")
        e("s_barrier")
        e("s_waitcnt vmcnt(0)")
        lbl("P_w0")
        e(f"s_waitcnt vmcnt({6 + (3 if X1MODE == 2 else 0)})")
    else:
        wait_min([("x", i)])
    st2()
    groups = []
    if i == 0:
        gunpack(0)
        if X1MODE == 0: groups += [None]*3 + capture(xload, 1)
    elif i == 1:
        groups += capture(xload, 2)
    else:
        groups += capture(wdma, i)
        if i == 2:
            xg = capture(xload, 3)
            if opt("mixed", 1): groups = groups[0:2] + xg[0:1] + groups[2:4] + xg[1:2] + groups[4:6] + xg[2:3]
            else: groups += xg
    convert_with(i, groups)
    if i == 0 and X1MODE == 2: e("s_waitcnt vmcnt(3)")
    else: wait_min([("w", i)])
    e(f"v_mov_b32 v19, {i+1}")
    e("ds_write_b32 v16, v19")
    st2()
    if i == 0:
        if P0PRIO != PPRIO: e(f"s_setprio {PPRIO}")
        if X1MODE == 1: xload(1)
        if X1MODE == 2:
            e("s_cmp_eq_u32 s47, 1"); e("s_cbranch_scc1 P_x1done")
            xload(1)
            lbl("P_x1done")
        wdma(1)
        e(f"v_mov_b32 v19, {FLG+F_AUX}")
        spin(19, 0, 18, 1)
        e(f"v_add_u32 v19, {AUX}, v4")
        for k in range(1, 5):
            e(f"v_add_u32 v18, s{54+k}, v19")
            e(f"ds_read_b128 v[{GP+4*k}:{GP+4*k+3}], v18")
        e("s_waitcnt lgkmcnt(0)")
        for k in range(1, 5): gunpack(k)
    if i == 3:
        e("s_cmp_eq_u32 s47, 1"); e("s_cbranch_scc1 P_skipx4")
        xload(4)
        lbl("P_skipx4")
R = TP+8
def reduce8():
    e("s_nop 7")
    if M2:
        e("v_and_b32 v14, 3, v0")
        for k in range(1, 4): e(f"v_cmp_eq_u32 s[{74+2*k}:{75+2*k}], {k}, v14")
    for rg in range(3):
        S1 = SA + rg*8; S2 = S1 + 4
        if M1: e(f"v_mov_b32 v{TP+2*rg}, v{S1}")
        else: e(f"v_add_f32 v{TP+2*rg}, v{S1}, v{S1+1}")
        if M2:
            e(f"v_cndmask_b32 v{TP+2*rg+1}, v{S2}, v{S2+1}, s[76:77]")
            e(f"v_cndmask_b32 v{TP+2*rg+1}, v{TP+2*rg+1}, v{S2+2}, s[78:79]")
            e(f"v_cndmask_b32 v{TP+2*rg+1}, v{TP+2*rg+1}, v{S2+3}, s[80:81]")
        else: e(f"v_add_f32 v{TP+2*rg+1}, v{S2}, v{S2+1}")
    src, dst = TP, TP+8
    for mod in ["quad_perm:[1,0,3,2]", "quad_perm:[2,3,0,1]", "row_half_mirror"]:
        e("s_nop 1")
        for k in range(6): e(f"v_add_f32_dpp v{dst+k}, v{src+k}, v{src+k} {mod} row_mask:0xf bank_mask:0xf")
        src, dst = dst, src
    e("s_mul_i32 s42, s46, 192")
    e(f"s_add_u32 s42, s42, {STATT}")
    e("v_lshlrev_b32 v14, 3, v3")
    e("v_add_u32 v14, s42, v14")
    e("s_lshl_b32 s42, s46, 2")
    e(f"s_add_u32 s42, s42, {FLG+F_STATB}")
    e("v_mov_b32 v15, s42")
reduce8()
spin(15, 0, 18, 1)
for rg in range(3): e(f"ds_read_b64 v[{TP+2*rg}:{TP+2*rg+1}], v14 offset:{PART-STATT + rg*64}")
e("s_waitcnt lgkmcnt(0)")
for k in range(6): e(f"v_add_f32 v{R+k}, v{R+k}, v{TP+k}")
finalize_stats([(R+2*rg, R+2*rg+1, TP+rg) for rg in range(3)])
for rg in range(3): e(f"ds_write_b64 v14, v[{R+2*rg}:{R+2*rg+1}] offset:{rg*64}")
e("v_mov_b32 v19, 5")
e("ds_write_b32 v16, v19 offset:16")
st2()
e("s_branch L_store")
lbl("P_odd_done")
reduce8()
for rg in range(3): e(f"ds_write_b64 v14, v[{R+2*rg}:{R+2*rg+1}] offset:{PART-STATT + rg*64}")
e("v_mov_b32 v19, 1")
e("ds_write_b32 v15, v19")
st2()

lbl("L_store")
e("s_sub_u32 s46, s36, 4")
e("s_cmp_eq_u32 s46, 7")
e("s_cbranch_scc0 L_st1")
e("s_barrier")
e("s_branch L_fin")
lbl("L_st1")
e("s_add_u32 s47, s46, 1")
e("s_cmp_eq_u32 s46, 6")
e("s_cbranch_scc1 L_xrow")
for jj in range(3):
    e(f"v_add_u32 v2, {64*jj}, v0")
    e("v_mul_u32_u24 v3, 2731, v2")
    e("v_lshrrev_b32 v3, 16, v3")
    e("v_mul_u32_u24 v4, 24, v3")
    e("v_sub_u32 v4, v2, v4")
    e("v_lshlrev_b32 v4, 4, v4")
    e(f"v_mul_u32_u24 v5, {OUTP}, v3")
    e(f"v_add_u32 v{8+jj}, v5, v4")
    e("v_mul_u32_u24 v5, 1152, v3")
    e(f"v_add_u32 v{12+jj}, v5, v4")
e(f"s_mul_i32 s48, s46, {16*OUTP}")
e(f"s_add_u32 s48, s48, {OUTT}")
for jj in range(3): e(f"v_add_u32 v{8+jj}, s48, v{8+jj}")
e(f"s_mul_i32 s48, s46, {16*1152}")
e("s_add_u32 s48, s48, s40")
e("s_add_u32 s48, s48, s41")
e("s_add_u32 s49, s48, 9216")
e("s_barrier")
st2()
spin(17, F_OUT, 18, "s47")
st2()
for jj in range(6): e(f"ds_read_b128 v[{20+4*jj}:{23+4*jj}], v{8+jj%3} offset:{(jj//3)*8*OUTP}")
for jj in range(6):
    e(f"s_waitcnt lgkmcnt({5-jj})")
    e(f"buffer_store_dwordx4 v[{20+4*jj}:{23+4*jj}], v{12+jj%3}, s[32:35], s{48+jj//3} offen {OFLAG}")
e("s_branch L_fin")
lbl("L_xrow")
e(f"v_add_u32 v6, {OUTT + 98*OUTP}, v1")
e("s_add_u32 s48, s37, 8160")
e("s_mul_i32 s48, s48, 1152")
e("s_add_u32 s48, s48, s41")
e("s_barrier")
st2()
spin(17, F_OUT, 18, "s47")
st2()
e("s_mov_b64 exec, 0xffffff")
e("ds_read_b128 v[44:47], v6")
e("s_waitcnt lgkmcnt(0)")
e(f"buffer_store_dwordx4 v[44:47], v1, s[32:35], s48 offen {OFLAG}")
e("s_branch L_fin")

def exconv():
    e(f"v_add_u32 v14, {AUX + 2*AUXP}, v1")
    e(f"v_mov_b32 v{EX+16}, 0"); e(f"v_mov_b32 v{EX+17}, 0")
    e(f"s_waitcnt vmcnt({6 if EXC else 0})")
    for i in range(8):
        x = EX+i; g = EX+8+i; a, b, c, d = TP, TP+1, TP+2, TP+3
        e(f"v_lshlrev_b32 v{a}, 16, v{x}")
        e(f"v_and_b32 v{b}, s66, v{x}")
        e(f"v_lshlrev_b32 v{c}, 16, v{g}")
        e(f"v_and_b32 v{d}, s66, v{g}")
        e(f"v_add_f32 v{EX+16}, v{EX+16}, v{a}")
        e(f"v_fmac_f32 v{EX+17}, v{a}, v{a}")
        e(f"v_add_f32 v{EX+16}, v{EX+16}, v{b}")
        e(f"v_fmac_f32 v{EX+17}, v{b}, v{b}")
        e(f"v_mul_f32 v{a}, v{a}, v{c}")
        e(f"v_mul_f32 v{b}, v{b}, v{d}")
        e(f"v_cvt_pk_bf16_f32 v{x}, v{a}, v{b}")
    e(f"ds_write_b128 v14, v[{EX}:{EX+3}]")
    e(f"ds_write_b128 v14, v[{EX+4}:{EX+7}] offset:1024")
    e("v_mov_b32 v19, 1")
    e(f"v_mov_b32 v14, {FLG + F_AUX + 16}")
    e("ds_write_b32 v14, v19")
if not EXC:
    lbl("P_extra")
    exconv()
    e("s_branch P_l0")
ACC = 20; XF = 104; WF = 132
lbl("L_cons")
e(f"s_setprio {opt('c0prio', 0)}")
if EXC:
    e("s_cmp_lg_u32 s36, 3")
    e("s_cbranch_scc1 C_noex")
    exconv()
    exstats()
    lbl("C_noex")
kappa_bases()
for t in range(1, 9): e(f"s_add_u32 s{76+t}, s{Bs[t//3]}, s{Rs[t%3]}")
e("s_mov_b32 s85, 0")
e("v_and_b32 v6, 3, v0")
e("v_lshlrev_b32 v6, 2, v6")
e(f"v_add_u32 v6, {FLG}, v6")
e("s_lshl_b32 s48, s36, 2")
e(f"s_add_u32 s48, s48, {FLG}")
e("v_mov_b32 v7, s48")
e("v_and_b32 v1, 15, v0")
e("v_lshrrev_b32 v2, 4, v0")
e("v_lshrrev_b32 v4, 2, v1")
e("v_sub_u32 v4, 0, v4")
e("v_xor_b32 v4, v4, v2")
e("v_and_b32 v4, 3, v4")
e("v_lshlrev_b32 v4, 4, v4")
e("v_lshl_add_u32 v13, v1, 6, v4")
e("v_bfe_u32 v4, v0, 2, 2")
e("v_lshl_add_u32 v5, v2, 3, v4")
e("v_lshlrev_b32 v5, 7, v5")
e("v_and_b32 v8, 3, v0")
e("v_lshl_add_u32 v5, v8, 3, v5")
e("v_lshrrev_b32 v4, 1, v4")
e("v_and_b32 v8, 1, v2")
e("v_lshl_or_b32 v4, v8, 1, v4")
e("v_xor_b32 v4, s36, v4")
e("v_lshl_add_u32 v5, v4, 5, v5")
e(f"v_add_u32 v14, {WOFF}, v5")
e("v_min_u32 v4, 2, v1")
e(f"v_mul_u32_u24 v4, {AUXP}, v4")
e("v_lshl_add_u32 v4, v2, 4, v4")
e(f"v_add_u32 v12, {AUX}, v4")
e("v_add_u32 v15, s54, v12")
e("v_min_u32 v9, 4, v0")
e("v_lshlrev_b32 v9, 2, v9")
e(f"v_add_u32 v9, {FLG+F_AUX}, v9")
for i in range(0, 84, 2): e(f"v_mov_b64 v[{ACC+i}:{ACC+i+1}], 0")
e("v_mov_b32 v19, 0")
e("v_mov_b32 v8, 1")
e(f"s_mov_b32 s50, {PS}")
e("s_mov_b32 s53, 1")
e("s_mov_b32 s52, 1")
def xread(par, sp, T):
    x = XF + T*4
    if T < 6: return f"ds_read_b128 v[{x}:{x+3}], v13 offset:{par*XS + sp*XH + T*1024}"
    return f"ds_read_b128 v[{x}:{x+3}], v15 offset:{sp*64}"
def wreads(par, sp):
    r = []
    for t in range(3):
        w = WF + (sp*3+t)*4
        o = par*WS + t*8192 + sp*4096
        r.append(f"ds_read_b64_tr_b16 v[{w}:{w+1}], v14 offset:{o}")
        r.append(f"ds_read_b64_tr_b16 v[{w+2}:{w+3}], v14 offset:{o+512}")
    return r
def mf(sp, T, t):
    c = ACC + (T*3+t)*4; w = WF + (sp*3+t)*4; x = XF + T*4
    return f"v_mfma_f32_16x16x32_bf16 v[{c}:{c+3}], v[{w}:{w+3}], v[{x}:{x+3}], v[{c}:{c+3}]"
e("s_waitcnt vmcnt(0)")
e(f"ds_write_b32 v7, v8 offset:{F_AUX}")
e(f"s_setprio {CPRIO}")
spin(9, 0, 8, 1)
st2()
spin(6, 0, 8, 1)
st2()
def chunk_body(par):
    body = []
    w1 = wreads(par, 1)
    for T in range(7):
        for t in range(3):
            body.append(("m", [("x", 0, min(6, T + (WGRAN-1 if T % WGRAN == 0 else 0)))] + [("w", 0, 2 if WGRAN > 1 else t)], mf(0, T, t)))
            k = T*3+t-3
            if 0 <= k < 6: body.append(("r", ("w", 1, k//2), w1[k]))
        body.append(("r", ("x", 1, T), xread(par, 1, T)))
    nx = 1-par
    w0 = wreads(nx, 0)
    book = [[("FR",), "s_mov_b32 m0, s52"], ["v_add_u32 v19, 1, v19", "s_movrels_b32 s51, s76"], ["s_add_u32 s52, s52, 1"], ["v_add_u32 v15, s51, v12"]]
    if par == 1:
        book += [["s_add_u32 s53, s53, 1"], ["v_add_u32 v13, s50, v13"], ["v_add_u32 v14, s50, v14"], ["s_sub_u32 s50, 0, s50"]]
    pend = []
    for T in range(7):
        if T == BARPOS:
            assert not book
            body.append(("bar", nx))
            pend = [("r", ("w", 0, k//2), w0[k]) for k in range(6)]
            pend = pend[0:2] + [("r", ("x", 0, 0), xread(nx, 0, 0))] + pend[2:6] + [("r", ("x", 0, TT), xread(nx, 0, TT)) for TT in range(1, BARPOS)]
        for t in range(3):
            body.append(("m", [("x", 1, min(6, T + (WGRAN-1 if T % WGRAN == 0 else 0)))] + [("w", 1, 2 if WGRAN > 1 else t)], mf(1, T, t)))
            if book:
                for it in book.pop(0):
                    body.append(("r", ("f",), f"ds_read_b32 v8, v6 offset:{nx*16}") if it == ("FR",) else ("x", it))
            if pend: body.append(pend.pop(0))
        if T >= BARPOS: pend.append(("r", ("x", 0, T), xread(nx, 0, T)))
    while pend: body.append(pend.pop(0))
    return body
bodyA = chunk_body(0); bodyB = chunk_body(1)
bi = [i for i, it in enumerate(bodyB) if it[0] == "bar"][0]
init_reads = [it for it in bodyB[bi:] if it[0] == "r"]
for it in init_reads: e(it[2])
lbl("C_loop")
seq = [it[1] for it in init_reads]
lastwait = None
def emit(body):
    global lastwait
    for it in body:
        if it[0] == "r":
            e(it[2]); seq.append(it[1])
        elif it[0] == "x":
            e(it[1])
        elif it[0] == "m":
            idx = max(max(i for i, tg in enumerate(seq) if tg == need) for need in it[1])
            n = len(seq) - 1 - idx
            if lastwait is None or idx > lastwait:
                e(f"s_waitcnt lgkmcnt({min(n,15)})"); lastwait = idx
            e(it[2])
        elif it[0] == "bar":
            e("s_waitcnt lgkmcnt(0)"); lastwait = len(seq)-1
            e(f"ds_write_b32 v7, v19 offset:{F_DONE}")
            st2()
            spin(6, it[1]*16, 8, "s53", preread=True)
            st2()
emit(bodyA)
e("s_cmp_eq_u32 s53, 5")
e("s_cbranch_scc1 C_epi")
emit(bodyB)
e("s_branch C_loop")
out.extend(deferred); deferred.clear()
lbl("C_epi")
e("s_barrier")
e("s_waitcnt lgkmcnt(0)")
e(f"v_lshlrev_b32 v4, 3, v1")
e(f"v_add_u32 v4, {STATT}, v4")
ST = XF
for T in range(7): e(f"ds_read_b64 v[{ST+2*T}:{ST+2*T+1}], v4 offset:{T*128}")
e(f"v_mul_u32_u24 v5, {OUTP}, v1")
e("v_lshl_add_u32 v5, v2, 3, v5")
e("s_lshl_b32 s48, s36, 5")
e(f"s_add_u32 s48, s48, {OUTT}")
e("v_add_u32 v5, s48, v5")
C1 = XF+14; C2 = XF+26; TM = XF+38
for t in range(3):
    for r in range(4):
        a = ACC + (6*3+t)*4 + r
        e(f"v_mov_b32_dpp v{C1+t*4+r}, v{a} row_newbcast:0 row_mask:0xf bank_mask:0xf")
        e(f"v_mov_b32_dpp v{C2+t*4+r}, v{a} row_newbcast:1 row_mask:0xf bank_mask:0xf")
e("s_waitcnt lgkmcnt(0)")
n = 0
for T in range(7):
    st = ST+2*T
    for t in range(3):
        a = ACC + (T*3+t)*4
        tm = TM + (n % 3)*6; n += 1
        for h in range(2):
            e(f"v_pk_fma_f32 v[{tm+2*h}:{tm+2*h+1}], v[{C1+t*4+2*h}:{C1+t*4+2*h+1}], v[{st}:{st+1}], v[{C2+t*4+2*h}:{C2+t*4+2*h+1}] op_sel:[0,0,0] op_sel_hi:[1,0,1]")
        for h in range(2):
            e(f"v_pk_fma_f32 v[{tm+2*h}:{tm+2*h+1}], v[{a+2*h}:{a+2*h+1}], v[{st}:{st+1}], v[{tm+2*h}:{tm+2*h+1}] op_sel:[0,1,0] op_sel_hi:[1,1,1]")
        e(f"v_cvt_pk_bf16_f32 v{tm+4}, v{tm}, v{tm+1}")
        e(f"v_cvt_pk_bf16_f32 v{tm+5}, v{tm+2}, v{tm+3}")
        e(f"ds_write_b64 v5, v[{tm+4}:{tm+5}] offset:{T*16*OUTP + t*128}")
    e(f"v_mov_b32 v19, {T+1}")
    e(f"ds_write_b32 v7, v19 offset:{F_OUT}")
st2()
lbl("L_fin")
if STAMP == 2:
    e("s_mov_b64 exec, -1")
    st2(); e("s_waitcnt vmcnt(0)"); st2()
    e("s_memrealtime s[72:73]"); e("s_waitcnt lgkmcnt(0)"); e("v_writelane_b32 v167, s72, 63")
    srd(56, 14, 1<<22)
    e("s_lshl_b32 s60, s2, 12")
    e("s_lshl_b32 s61, s36, 8")
    e("s_add_u32 s60, s60, s61")
    e("v_lshlrev_b32 v1, 2, v0")
    e("buffer_store_dword v167, v1, s[56:59], s60 offen")
lbl("L_end")

text = HDR + f"""; @launch grid=(256,1,1) block=({NW*64},1,1) lds={LDS_TOTAL}
.amdgcn_target "amdgcn-amd-amdhsa--gfx950"
.text
.globl {NAME}_kernel
.p2align 8
.type {NAME}_kernel,@function
{NAME}_kernel:
""" + "\n".join(out) + f"""
    s_endpgm
.section .rodata,"a"
.p2align 6
.amdhsa_kernel {NAME}_kernel
  .amdhsa_next_free_vgpr 168
  .amdhsa_next_free_sgpr 100
  .amdhsa_accum_offset 168
  .amdhsa_group_segment_fixed_size 0
  .amdhsa_kernarg_size 56
  .amdhsa_user_sgpr_count 2
  .amdhsa_user_sgpr_kernarg_segment_ptr 1
  .amdhsa_system_sgpr_workgroup_id_x 1
.end_amdhsa_kernel
"""
open(sys.argv[1], "w").write(text)
```

```python
import sys
NAME = "standalone__layernorm_linear__sampling"
opts = dict(a.split("=", 1) for a in sys.argv[2:] if "=" in a)
def opt(k, d): return type(d)(opts.get(k, d))
STAMP = opt("stamp", 0)
STATS = opt("stats", "plain")
XFLAG = opt("xflag", ""); WFLAG = opt("wflag", ""); OFLAG = opt("oflag", "nt")
BARPOS = opt("barpos", 3)
PPRIO = opt("pprio", 0); P0PRIO = opt("p0prio", 2); CPRIO = opt("cprio", 0)
ROT = opt("rot", 1); SAFE = opt("safe", 1); WGRAN = opt("wgran", 2)
SPAN = opt("span", 1.0); X1MODE = opt("x1mode", 1); ROLEPERM = opt("roleperm", 1)
NW = 12
out = []
def e(s): out.append("    " + s)
def lbl(s): out.append(s + ":")
HDR = open("cdna_kernels/%s.s.ref" % NAME).read().split("; Override launch")[0]

XH = 6208; XS = 12416; WS = 24576; WOFF = 2*XS; PS = 2*XS + 2*WS
AUX = 2*PS; AUXP = 2080
STATT = AUX + 3*AUXP
PART = STATT + 896
FLG = (PART + 768 + 127)//128*128
LDS_TOTAL = FLG + 128
OUTT = PS; OUTP = 400
F_DONE, F_STATB, F_AUX, F_OUT = 32, 48, 64, 96

def st2():
    if STAMP != 2: return
    e("s_memtime s[70:71]")
    e("s_waitcnt lgkmcnt(0)")
    e("s_mov_b32 m0, s69"); e("s_nop 0"); e("v_writelane_b32 v167, s70, m0")
    e("s_add_u32 s69, s69, 1")
def srd(d, b, n):
    e(f"s_mov_b32 s{d}, s{b}")
    e(f"s_and_b32 s{d+1}, s{b+1}, 0xffff")
    e(f"s_mov_b32 s{d+2}, {n}")
    e(f"s_mov_b32 s{d+3}, 0x00020000")
def finalize_stats(trips):
    seq = [
     "v_mul_f32 v{m}, 0x3ae38e39, v{m}",
     "v_mul_f32 v{q}, 0x3ae38e39, v{q}",
     "v_fma_f32 v{q}, -v{m}, v{m}, v{q}",
     "v_max_f32 v{q}, 0, v{q}",
     "v_cvt_pk_bf16_f32 v{t}, v{m}, v{q}",
     "v_lshlrev_b32 v{m}, 16, v{t}",
     "v_and_b32 v{q}, 0xffff0000, v{t}",
     "v_add_f32 v{q}, 0x3727c5ac, v{q}",
     "v_cvt_pk_bf16_f32 v{t}, v{q}, v{q}",
     "v_lshlrev_b32 v{q}, 16, v{t}",
     "v_sqrt_f32 v{q}, v{q}",
     "NOP",
     "v_cvt_pk_bf16_f32 v{t}, v{q}, v{q}",
     "v_lshlrev_b32 v{q}, 16, v{t}",
     "v_rcp_f32 v{q}, v{q}",
     "NOP",
     "v_mul_f32 v{m}, v{m}, v{q}",
     "v_sub_f32 v{m}, 0, v{m}"]
    for s in seq:
        if s == "NOP": e("s_nop 0"); continue
        for (m, q, t) in trips: e(s.format(m=m, q=q, t=t))
spin_id = [0]
deferred = []
def spin(vaddr, off, vtmp, sneed, preread=False):
    global out
    k = spin_id[0]; spin_id[0] += 1
    save = None
    if preread:
        e(f"v_cmp_le_u32 vcc, {sneed}, v{vtmp}")
        e("s_cmp_eq_u64 vcc, exec")
        e(f"s_cbranch_scc0 SP_{k}")
        lbl(f"SP_ok{k}")
        save = out; out = []
    lbl(f"SP_{k}")
    e(f"ds_read_b32 v{vtmp}, v{vaddr} offset:{off}")
    e("s_waitcnt lgkmcnt(0)")
    e(f"v_cmp_le_u32 vcc, {sneed}, v{vtmp}")
    if SAFE:
        e("s_add_u32 s68, s68, 1")
        e("s_bitcmp1_b32 s68, 18")
        e(f"s_cbranch_scc1 SP_ok{k}")
    e("s_cmp_eq_u64 vcc, exec")
    e(f"s_cbranch_scc0 SP_{k}")
    if preread:
        e(f"s_branch SP_ok{k}")
        deferred.extend(out); out = save
    else:
        lbl(f"SP_ok{k}")

e("s_cmp_ge_u32 s2, 255")
e("s_cbranch_scc1 L_end")
if STAMP == 2:
    e("s_mov_b32 s69, 0"); e("v_mov_b32 v167, 0"); e("s_memrealtime s[72:73]"); st2(); e("v_writelane_b32 v167, s72, 62")
e("s_load_dwordx4 s[4:7], s[0:1], 0")
e("s_load_dwordx4 s[8:11], s[0:1], 16")
e("s_load_dwordx2 s[12:13], s[0:1], 32")
if STAMP: e("s_load_dwordx2 s[14:15], s[0:1], 48")
if P0PRIO: e(f"s_setprio {P0PRIO}")
e("v_readfirstlane_b32 s36, v0")
e("v_and_b32 v0, 63, v0")
e("s_and_b32 s3, s2, 7")
e("s_lshr_b32 s40, s2, 3")
e("s_lshl_b32 s41, s3, 1")
e("s_add_u32 s41, s41, s40")
e("s_sub_u32 s41, s41, 30")
e("s_mul_i32 s42, s3, 10")
e("s_cmp_ge_u32 s40, 30")
e("s_cselect_b32 s40, s41, s40")
e("s_cselect_b32 s42, 80, s42")
e("s_mul_i32 s41, s40, 43")
e("s_lshr_b32 s41, s41, 7")
e("s_mul_i32 s43, s41, 3")
e("s_sub_u32 s38, s40, s43")
e("s_add_u32 s37, s42, s41")
if opt("map", 0) == 1:
    e("s_mul_i32 s37, s2, 171")
    e("s_lshr_b32 s37, s37, 9")
    e("s_mul_i32 s43, s37, 3")
    e("s_sub_u32 s38, s2, s43")
    e("s_mul_i32 s41, s37, 205")
    e("s_lshr_b32 s41, s41, 11")
    e("s_mul_i32 s41, s41, 10")
    e("s_sub_u32 s41, s37, s41")
e("s_mul_i32 s42, s41, 43")
e("s_lshr_b32 s42, s42, 7")
e("s_mul_i32 s43, s42, 3")
e("s_sub_u32 s24, s41, s43")
e("s_add_u32 s27, s38, s42")
e("s_sub_u32 s43, s27, 3")
e("s_cmp_ge_u32 s27, 3")
e("s_cselect_b32 s27, s43, s27")
if ROT == 0: e("s_mov_b32 s24, 0"); e("s_mov_b32 s27, 0")
if ROT == 2: e("s_mov_b32 s24, 0")
if ROT == 3:
    e("s_mov_b32 s24, 0")
    e("s_lshr_b32 s42, s41, 1")
    e("s_add_u32 s27, s38, s42")
    e("s_mul_i32 s43, s27, 43")
    e("s_lshr_b32 s43, s43, 7")
    e("s_mul_i32 s43, s43, 3")
    e("s_sub_u32 s27, s27, s43")
    e("s_and_b32 s39, s41, 1")
e("s_mul_i32 s24, s24, 384")
e("s_lshl_b32 s27, s27, 7")
e("s_add_u32 s64, s27, 128")
e("s_cmp_eq_u32 s64, 384")
e("s_cselect_b32 s64, 0, s64")
e(f"s_mul_i32 s40, s37, {96*1152}")
e("s_mul_i32 s41, s38, 384")
e("s_lshr_b32 s36, s36, 6")
if ROLEPERM:
    e("s_xor_b32 s42, s36, 4")
    e("s_cmp_lt_u32 s36, 8")
    e("s_cselect_b32 s36, s42, s36")
e("v_and_b32 v2, 7, v0")
e("v_lshrrev_b32 v3, 3, v0")
e("v_lshlrev_b32 v4, 4, v2")
e("v_mul_u32_u24 v8, 1152, v3")
e("v_add_u32 v5, v8, v4")
e("v_add_u32 v6, 9216, v5")
e("v_add_u32 v7, 18432, v5")
e("v_and_b32 v9, 16, v0")
e("v_lshlrev_b32 v9, 1, v9")
e("v_xor_b32 v8, v5, v9")
e("v_xor_b32 v9, 64, v8")
e("v_lshlrev_b32 v10, 2, v0")
e("v_mov_b32 v11, 0")
e(f"v_add_u32 v10, {FLG - 128}, v10")
e("ds_write_b32 v10, v11")
e("v_lshlrev_b32 v1, 4, v0")
e("s_lshr_b32 s47, s36, 3")
e("s_and_b32 s46, s36, 3")
e(f"s_mul_i32 s42, s46, {24*1152}")
e("s_add_u32 s44, s40, s42")
e("s_cmp_eq_u32 s47, 1")
e("s_cselect_b32 s54, s64, s27")
e("s_add_u32 s54, s54, s24")
e(f"s_mul_i32 s42, s46, {16*1152}")
e("s_add_u32 s45, s41, s42")
e("s_lshl_b32 s49, s46, 11")
e(f"s_mul_i32 s42, s47, {WS}")
e("s_add_u32 s49, s49, s42")
e(f"s_add_u32 s49, s49, {WOFF}")
e("s_mov_b32 s68, 0")
e("s_mov_b32 s66, 0xffff0000")

XR = 20; GP = 44; GF = 64; SA = 104; TP = 128; ON = 144; EX = 146
vm = []
def gload(i):
    e(f"buffer_load_dwordx4 v[{GP+4*i}:{GP+4*i+3}], v4, s[20:23], s{54+i} offen"); vm.append(("g", i))
def xload(i):
    e(f"s_add_u32 s67, s44, s{54+i}")
    for rg in range(3):
        r = XR + (i%2)*12 + rg*4
        e(f"buffer_load_dwordx4 v[{r}:{r+3}], v{5+rg}, s[16:19], s67 offen {XFLAG}"); vm.append(("x", i))
def wdma(i):
    so = (i % 2)*PS
    e(f"s_mul_i32 s43, s{54+i}, 576")
    e("s_add_u32 s43, s43, s45")
    e("s_add_u32 s42, s43, 9216")
    for gg in range(2):
        for c in range(3):
            e(f"s_add_u32 m0, s49, {so + c*8192 + gg*1024 - c*128}")
            e("s_nop 0")
            e(f"buffer_load_dwordx4 v{8+gg}, s[28:31], s{43-gg} offen offset:{c*128} {WFLAG} lds"); vm.append(("w", i))
def wait_min(tags):
    last = max(k for k, t in enumerate(vm) if t in tags)
    n = len([t for t in vm[last+1:] if t[1] != 4]) if tags[0][1] != 4 else len(vm)-1-last
    e(f"s_waitcnt vmcnt({min(n,63)})")
def kappa_bases():
    e("s_add_u32 s65, s64, 128")
    e("s_cmp_eq_u32 s65, 384")
    e("s_cselect_b32 s65, 0, s65")
    if ROT == 3:
        e("s_mul_i32 s42, s39, 384")
        e("s_add_u32 s25, s42, 384")
        e("s_sub_u32 s26, 768, s42")
        return
    for k in (25, 26):
        e(f"s_add_u32 s{k}, s{k-1}, 384")
        e(f"s_cmp_eq_u32 s{k}, 1152")
        e(f"s_cselect_b32 s{k}, 0, s{k}")
Bs = [24, 25, 26]; Rs = [27, 64, 65]

e("s_waitcnt lgkmcnt(0)")
srd(16, 4, 8192*1152)
srd(20, 6, 1152)
e("s_cmp_eq_u32 s47, 0")
e("s_cbranch_scc1 P_l0")
EXC = opt("exc", 1)
def exloads():
    e("s_add_u32 s48, s37, 8160")
    e("s_mul_i32 s48, s48, 1152")
    e("s_mov_b32 s60, s16")
    e("s_mov_b32 s61, s17")
    e("s_add_u32 s62, s48, 1152")
    e(f"s_min_u32 s62, s62, {8192*1152}")
    e("s_mov_b32 s63, 0x00020000")
    e(f"buffer_load_dwordx4 v[{EX}:{EX+3}], v1, s[60:63], s48 offen")
    e(f"buffer_load_dwordx4 v[{EX+4}:{EX+7}], v1, s[60:63], s48 offen offset:1024")
    e(f"buffer_load_dwordx4 v[{EX+8}:{EX+11}], v1, s[20:23], 0 offen")
    e(f"buffer_load_dwordx4 v[{EX+12}:{EX+15}], v1, s[20:23], 0 offen offset:1024")
if not EXC:
    e("s_cmp_lg_u32 s36, 8")
    e("s_cbranch_scc1 P_l00")
    exloads()
    e("s_barrier")
    e("s_branch P_extra")
lbl("P_l00")
e("s_barrier")
lbl("P_l0")
srd(28, 10, 576*1152)
e("s_cmp_lt_u32 s36, 4")
e("s_cbranch_scc1 P_l2")
gload(0); xload(0)
e("s_cmp_eq_u32 s47, 0")
e("s_cbranch_scc1 P_l1")
e("s_branch P_l3")
lbl("P_l2")
if EXC:
    e("s_cmp_lg_u32 s36, 3")
    e("s_cbranch_scc1 P_l2b")
    exloads()
    lbl("P_l2b")
e("s_cmp_ge_u32 s36, 2")
e("s_cbranch_scc1 P_l3")
e("s_cmp_eq_u32 s36, 1")
e("s_cselect_b32 s60, s8, s6")
e("s_cselect_b32 s61, s9, s7")
e("s_and_b32 s61, s61, 0xffff")
e("s_mov_b32 s62, 1152")
e("s_mov_b32 s63, 0x00020000")
e(f"s_mul_i32 s48, s36, {AUXP}")
e(f"s_add_u32 m0, s48, {AUX}")
e("s_nop 0")
e("buffer_load_dwordx4 v1, s[60:63], 0 offen lds")
e("buffer_load_dwordx4 v1, s[60:63], 0 offen offset:1024 lds")
lbl("P_l3")
wdma(0)
e("s_cmp_lt_u32 s36, 4")
e("s_cbranch_scc0 P_l1")
e("s_barrier")
e("s_branch L_cons")

lbl("P_l1")
kappa_bases()
for i in range(1, 5):
    t0, t1 = 2*i, min(2*i+1, 8)
    e(f"s_add_u32 s42, s{Bs[t0//3]}, s{Rs[t0%3]}")
    e(f"s_add_u32 s43, s{Bs[t1//3]}, s{Rs[t1%3]}")
    e("s_cmp_eq_u32 s47, 1")
    e(f"s_cselect_b32 s{54+i}, s43, s42")
if X1MODE == 2:
    e("s_cbranch_scc0 P_nx1")
    n0 = len(vm); xload(1); del vm[n0:]
    lbl("P_nx1")
srd(32, 12, 8192*1152)
e("v_lshrrev_b32 v10, 2, v3")
e("v_sub_u32 v10, 0, v10")
e("v_xor_b32 v10, v10, v2")
e("v_and_b32 v10, 3, v10")
e("v_lshlrev_b32 v10, 4, v10")
e("v_lshl_add_u32 v10, v3, 6, v10")
e("v_lshrrev_b32 v11, 2, v2")
e(f"v_mul_u32_u24 v11, {XH}, v11")
e("s_and_b32 s43, s46, 1")
e("s_lshl_b32 s43, s43, 5")
e("v_xor_b32 v10, s43, v10")
e("s_mul_i32 s42, s46, 1536")
e(f"s_mul_i32 s43, s47, {XS}")
e("s_add_u32 s42, s42, s43")
e("v_xor_b32 v12, 32, v10")
e("v_add3_u32 v10, v10, v11, s42")
e("v_add3_u32 v11, v12, v11, s42")
e(f"v_add_u32 v12, {PS}, v10")
e(f"v_add_u32 v13, {PS}, v11")
e("s_lshl_b32 s42, s47, 4")
e("s_lshl_b32 s43, s46, 2")
e("s_add_u32 s42, s42, s43")
e(f"s_add_u32 s42, s42, {FLG}")
e("v_mov_b32 v16, s42")
e("v_and_b32 v17, 3, v0")
e("v_lshlrev_b32 v17, 2, v17")
e(f"v_add_u32 v17, {FLG}, v17")
M1 = STATS in ("mfma", "mfma1"); M2 = STATS in ("mfma", "mfma2")
for i in range(0, 24, 2): e(f"v_mov_b64 v[{SA+i}:{SA+i+1}], 0")
e(f"v_mov_b32 v{ON}, 0x3f803f80"); e(f"v_mov_b32 v{ON+1}, 0x3f803f80")
def exstats():
    src, dst = EX+16, EX+18
    for mod in ["quad_perm:[1,0,3,2]", "quad_perm:[2,3,0,1]", "row_half_mirror", "row_mirror"]:
        e("s_nop 1")
        e(f"v_add_f32_dpp v{dst}, v{src}, v{src} {mod} row_mask:0xf bank_mask:0xf")
        e(f"v_add_f32_dpp v{dst+1}, v{src+1}, v{src+1} {mod} row_mask:0xf bank_mask:0xf")
        src, dst = dst, src
    e("s_nop 1")
    for r, base in ((src, 76), (src+1, 80)):
        for k in range(4): e(f"v_readlane_b32 s{base+k}, v{r}, {16*k}")
    e("s_nop 3")
    for r, base in ((src, 76), (src+1, 80)):
        e(f"v_mov_b32 v{r}, s{base}")
        for k in range(1, 4): e(f"v_add_f32 v{r}, s{base+k}, v{r}")
    finalize_stats([(src, src+1, TP)])
    e(f"v_mov_b32 v14, {STATT + 98*8}")
    e(f"ds_write_b64 v14, v[{src}:{src+1}]")
if not EXC:
    e("s_cmp_lg_u32 s36, 8")
    e("s_cbranch_scc1 P_noex")
    exstats()
lbl("P_noex")

def gunpack(i):
    for k in range(4):
        e(f"v_lshlrev_b32 v{GF+8*i+2*k}, 16, v{GP+4*i+k}")
        e(f"v_and_b32 v{GF+8*i+2*k+1}, s66, v{GP+4*i+k}")
def convert(i):
    gf = GF + 8*i
    for rg in range(3):
        regs = [XR + (i%2)*12 + rg*4 + k for k in range(4)]
        S1 = SA + rg*8; S2 = S1 + 4
        tb = TP + (rg % 2)*8
        mm = []
        for h in range(2):
            x = regs[2*h]
            if M1: mm.append(f"v_mfma_f32_4x4x4_16b_bf16 v[{S1}:{S1+3}], v[{ON}:{ON+1}], v[{x}:{x+1}], v[{S1}:{S1+3}]")
            if M2: mm.append(f"v_mfma_f32_4x4x4_16b_bf16 v[{S2}:{S2+3}], v[{x}:{x+1}], v[{x}:{x+1}], v[{S2}:{S2+3}]")
        for k in range(4):
            if mm and (len(mm) == 4 or k % 2 == 0 or (M1 and M2)): e(mm.pop(0))
            e(f"v_lshlrev_b32 v{tb+2*k}, 16, v{regs[k]}")
            e(f"v_and_b32 v{tb+2*k+1}, s66, v{regs[k]}")
        assert not mm
        for k in range(4):
            lo, hi = tb+2*k, tb+2*k+1
            if not M1:
                e(f"v_add_f32 v{S1}, v{S1}, v{lo}")
                e(f"v_add_f32 v{S1+1}, v{S1+1}, v{hi}")
            if not M2:
                e(f"v_fmac_f32 v{S2}, v{lo}, v{lo}")
                e(f"v_fmac_f32 v{S2+1}, v{hi}, v{hi}")
        for k in range(4):
            lo, hi = tb+2*k, tb+2*k+1
            e(f"v_mul_f32 v{lo}, v{lo}, v{gf+2*k}")
            e(f"v_mul_f32 v{hi}, v{hi}, v{gf+2*k+1}")
        for k in range(4):
            e(f"v_cvt_pk_bf16_f32 v{regs[k]}, v{tb+2*k}, v{tb+2*k+1}")
        if opt("w64", 0):
            e(f"ds_write_b64 v{10+2*(i%2)+(rg&1)}, v[{regs[0]}:{regs[1]}] offset:{rg*512}")
            e(f"ds_write_b64 v{10+2*(i%2)+(rg&1)}, v[{regs[2]}:{regs[3]}] offset:{rg*512+8}")
        else:
            e(f"ds_write_b128 v{10+2*(i%2)+(rg&1)}, v[{regs[0]}:{regs[3]}] offset:{rg*512}")
def capture(fn, *args):
    global out
    save = out; out = []; n0 = len(vm)
    fn(*args)
    lines = out; out = save
    tags = vm[n0:]; del vm[n0:]
    groups = []; cur = []
    for l in lines:
        cur.append(l)
        if "buffer_load" in l: groups.append((cur, tags[len(groups)])); cur = []
    assert not cur
    return groups
def convert_with(i, groups):
    global out
    save = out; out = []
    convert(i)
    lines = out; out = save
    if opt("wend", 0):
        lines = [l for l in lines if "ds_write" not in l] + (["    s_waitcnt vmcnt(%d)" % (3 if i in (1, 2) else 0)] if opt("wend", 0) == 2 and i >= 1 else []) + [l for l in lines if "ds_write" in l]
    if opt("novalu", 0) and i >= 1: lines = [l for l in lines if "ds_write" in l] + ["    s_nop 0"]*40
    if opt("nowr", 0) and i >= 1: lines = [l for l in lines if "ds_write" not in l]
    if opt("nodma", 0) and i >= 2:
        groups = [([l.replace("buffer_load_dwordx4 v8", "buffer_load_dwordx4 v[148:151], v8").replace("buffer_load_dwordx4 v9", "buffer_load_dwordx4 v[148:151], v9").replace(" lds", "") for l in g[0]], g[1]) if g is not None else None for g in groups]
    if opt("novm", 0) and i >= 2:
        groups = [([l for l in g[0] if "buffer_load" not in l], g[1]) if g is not None else None for g in groups]
    if not groups:
        out.extend(lines); return
    step = max(1, int((len(lines) - 8) * SPAN) // len(groups))
    gi = 0
    for k, l in enumerate(lines):
        if gi < len(groups) and k == gi*step:
            if groups[gi] is not None:
                out.extend(groups[gi][0]); vm.append(groups[gi][1])
            gi += 1
        out.append(l)
    assert gi == len(groups)
st2()
for i in range(5):
    if i == 4:
        e("s_cmp_eq_u32 s47, 1")
        e("s_cbranch_scc1 P_odd_done")
    if i >= 2:
        e(f"s_add_u32 s43, s47, {2*(i-2)+1}")
        spin(17, F_DONE, 18, "s43")
    if i == 0:
        e("s_cmp_eq_u32 s47, 0")
        e("s_cbranch_scc0 P_w0")
        e("s_barrier")
        e("s_waitcnt vmcnt(0)")
        lbl("P_w0")
        e(f"s_waitcnt vmcnt({6 + (3 if X1MODE == 2 else 0)})")
    else:
        wait_min([("x", i)])
    st2()
    groups = []
    if i == 0:
        gunpack(0)
        if X1MODE == 0: groups += [None]*3 + capture(xload, 1)
    elif i == 1:
        groups += capture(xload, 2)
    else:
        groups += capture(wdma, i)
        if i == 2:
            xg = capture(xload, 3)
            if opt("mixed", 1): groups = groups[0:2] + xg[0:1] + groups[2:4] + xg[1:2] + groups[4:6] + xg[2:3]
            else: groups += xg
    convert_with(i, groups)
    if i == 0 and X1MODE == 2: e("s_waitcnt vmcnt(3)")
    else: wait_min([("w", i)])
    e(f"v_mov_b32 v19, {i+1}")
    e("ds_write_b32 v16, v19")
    st2()
    if i == 0:
        if P0PRIO != PPRIO: e(f"s_setprio {PPRIO}")
        if X1MODE == 1: xload(1)
        if X1MODE == 2:
            e("s_cmp_eq_u32 s47, 1"); e("s_cbranch_scc1 P_x1done")
            xload(1)
            lbl("P_x1done")
        wdma(1)
        e(f"v_mov_b32 v19, {FLG+F_AUX}")
        spin(19, 0, 18, 1)
        e(f"v_add_u32 v19, {AUX}, v4")
        for k in range(1, 5):
            e(f"v_add_u32 v18, s{54+k}, v19")
            e(f"ds_read_b128 v[{GP+4*k}:{GP+4*k+3}], v18")
        e("s_waitcnt lgkmcnt(0)")
        for k in range(1, 5): gunpack(k)
    if i == 3:
        e("s_cmp_eq_u32 s47, 1"); e("s_cbranch_scc1 P_skipx4")
        xload(4)
        lbl("P_skipx4")
R = TP+8
def reduce8():
    e("s_nop 7")
    if M2:
        e("v_and_b32 v14, 3, v0")
        for k in range(1, 4): e(f"v_cmp_eq_u32 s[{74+2*k}:{75+2*k}], {k}, v14")
    for rg in range(3):
        S1 = SA + rg*8; S2 = S1 + 4
        if M1: e(f"v_mov_b32 v{TP+2*rg}, v{S1}")
        else: e(f"v_add_f32 v{TP+2*rg}, v{S1}, v{S1+1}")
        if M2:
            e(f"v_cndmask_b32 v{TP+2*rg+1}, v{S2}, v{S2+1}, s[76:77]")
            e(f"v_cndmask_b32 v{TP+2*rg+1}, v{TP+2*rg+1}, v{S2+2}, s[78:79]")
            e(f"v_cndmask_b32 v{TP+2*rg+1}, v{TP+2*rg+1}, v{S2+3}, s[80:81]")
        else: e(f"v_add_f32 v{TP+2*rg+1}, v{S2}, v{S2+1}")
    src, dst = TP, TP+8
    for mod in ["quad_perm:[1,0,3,2]", "quad_perm:[2,3,0,1]", "row_half_mirror"]:
        e("s_nop 1")
        for k in range(6): e(f"v_add_f32_dpp v{dst+k}, v{src+k}, v{src+k} {mod} row_mask:0xf bank_mask:0xf")
        src, dst = dst, src
    e("s_mul_i32 s42, s46, 192")
    e(f"s_add_u32 s42, s42, {STATT}")
    e("v_lshlrev_b32 v14, 3, v3")
    e("v_add_u32 v14, s42, v14")
    e("s_lshl_b32 s42, s46, 2")
    e(f"s_add_u32 s42, s42, {FLG+F_STATB}")
    e("v_mov_b32 v15, s42")
reduce8()
spin(15, 0, 18, 1)
for rg in range(3): e(f"ds_read_b64 v[{TP+2*rg}:{TP+2*rg+1}], v14 offset:{PART-STATT + rg*64}")
e("s_waitcnt lgkmcnt(0)")
for k in range(6): e(f"v_add_f32 v{R+k}, v{R+k}, v{TP+k}")
finalize_stats([(R+2*rg, R+2*rg+1, TP+rg) for rg in range(3)])
for rg in range(3): e(f"ds_write_b64 v14, v[{R+2*rg}:{R+2*rg+1}] offset:{rg*64}")
e("v_mov_b32 v19, 5")
e("ds_write_b32 v16, v19 offset:16")
st2()
e("s_branch L_store")
lbl("P_odd_done")
reduce8()
for rg in range(3): e(f"ds_write_b64 v14, v[{R+2*rg}:{R+2*rg+1}] offset:{PART-STATT + rg*64}")
e("v_mov_b32 v19, 1")
e("ds_write_b32 v15, v19")
st2()

lbl("L_store")
e("s_sub_u32 s46, s36, 4")
e("s_cmp_eq_u32 s46, 7")
e("s_cbranch_scc0 L_st1")
e("s_barrier")
e("s_branch L_fin")
lbl("L_st1")
e("s_add_u32 s47, s46, 1")
e("s_cmp_eq_u32 s46, 6")
e("s_cbranch_scc1 L_xrow")
for jj in range(3):
    e(f"v_add_u32 v2, {64*jj}, v0")
    e("v_mul_u32_u24 v3, 2731, v2")
    e("v_lshrrev_b32 v3, 16, v3")
    e("v_mul_u32_u24 v4, 24, v3")
    e("v_sub_u32 v4, v2, v4")
    e("v_lshlrev_b32 v4, 4, v4")
    e(f"v_mul_u32_u24 v5, {OUTP}, v3")
    e(f"v_add_u32 v{8+jj}, v5, v4")
    e("v_mul_u32_u24 v5, 1152, v3")
    e(f"v_add_u32 v{12+jj}, v5, v4")
e(f"s_mul_i32 s48, s46, {16*OUTP}")
e(f"s_add_u32 s48, s48, {OUTT}")
for jj in range(3): e(f"v_add_u32 v{8+jj}, s48, v{8+jj}")
e(f"s_mul_i32 s48, s46, {16*1152}")
e("s_add_u32 s48, s48, s40")
e("s_add_u32 s48, s48, s41")
e("s_add_u32 s49, s48, 9216")
e("s_barrier")
st2()
spin(17, F_OUT, 18, "s47")
st2()
for jj in range(6): e(f"ds_read_b128 v[{20+4*jj}:{23+4*jj}], v{8+jj%3} offset:{(jj//3)*8*OUTP}")
for jj in range(6):
    e(f"s_waitcnt lgkmcnt({5-jj})")
    e(f"buffer_store_dwordx4 v[{20+4*jj}:{23+4*jj}], v{12+jj%3}, s[32:35], s{48+jj//3} offen {OFLAG}")
e("s_branch L_fin")
lbl("L_xrow")
e(f"v_add_u32 v6, {OUTT + 98*OUTP}, v1")
e("s_add_u32 s48, s37, 8160")
e("s_mul_i32 s48, s48, 1152")
e("s_add_u32 s48, s48, s41")
e("s_barrier")
st2()
spin(17, F_OUT, 18, "s47")
st2()
e("s_mov_b64 exec, 0xffffff")
e("ds_read_b128 v[44:47], v6")
e("s_waitcnt lgkmcnt(0)")
e(f"buffer_store_dwordx4 v[44:47], v1, s[32:35], s48 offen {OFLAG}")
e("s_branch L_fin")

def exconv():
    e(f"v_add_u32 v14, {AUX + 2*AUXP}, v1")
    e(f"v_mov_b32 v{EX+16}, 0"); e(f"v_mov_b32 v{EX+17}, 0")
    e(f"s_waitcnt vmcnt({6 if EXC else 0})")
    for i in range(8):
        x = EX+i; g = EX+8+i; a, b, c, d = TP, TP+1, TP+2, TP+3
        e(f"v_lshlrev_b32 v{a}, 16, v{x}")
        e(f"v_and_b32 v{b}, s66, v{x}")
        e(f"v_lshlrev_b32 v{c}, 16, v{g}")
        e(f"v_and_b32 v{d}, s66, v{g}")
        e(f"v_add_f32 v{EX+16}, v{EX+16}, v{a}")
        e(f"v_fmac_f32 v{EX+17}, v{a}, v{a}")
        e(f"v_add_f32 v{EX+16}, v{EX+16}, v{b}")
        e(f"v_fmac_f32 v{EX+17}, v{b}, v{b}")
        e(f"v_mul_f32 v{a}, v{a}, v{c}")
        e(f"v_mul_f32 v{b}, v{b}, v{d}")
        e(f"v_cvt_pk_bf16_f32 v{x}, v{a}, v{b}")
    e(f"ds_write_b128 v14, v[{EX}:{EX+3}]")
    e(f"ds_write_b128 v14, v[{EX+4}:{EX+7}] offset:1024")
    e("v_mov_b32 v19, 1")
    e(f"v_mov_b32 v14, {FLG + F_AUX + 16}")
    e("ds_write_b32 v14, v19")
if not EXC:
    lbl("P_extra")
    exconv()
    e("s_branch P_l0")
ACC = 20; XF = 104; WF = 132
lbl("L_cons")
e(f"s_setprio {opt('c0prio', 0)}")
if EXC:
    e("s_cmp_lg_u32 s36, 3")
    e("s_cbranch_scc1 C_noex")
    exconv()
    exstats()
    lbl("C_noex")
kappa_bases()
for t in range(1, 9): e(f"s_add_u32 s{76+t}, s{Bs[t//3]}, s{Rs[t%3]}")
e("s_mov_b32 s85, 0")
e("v_and_b32 v6, 3, v0")
e("v_lshlrev_b32 v6, 2, v6")
e(f"v_add_u32 v6, {FLG}, v6")
e("s_lshl_b32 s48, s36, 2")
e(f"s_add_u32 s48, s48, {FLG}")
e("v_mov_b32 v7, s48")
e("v_and_b32 v1, 15, v0")
e("v_lshrrev_b32 v2, 4, v0")
e("v_lshrrev_b32 v4, 2, v1")
e("v_sub_u32 v4, 0, v4")
e("v_xor_b32 v4, v4, v2")
e("v_and_b32 v4, 3, v4")
e("v_lshlrev_b32 v4, 4, v4")
e("v_lshl_add_u32 v13, v1, 6, v4")
e("v_bfe_u32 v4, v0, 2, 2")
e("v_lshl_add_u32 v5, v2, 3, v4")
e("v_lshlrev_b32 v5, 7, v5")
e("v_and_b32 v8, 3, v0")
e("v_lshl_add_u32 v5, v8, 3, v5")
e("v_lshrrev_b32 v4, 1, v4")
e("v_and_b32 v8, 1, v2")
e("v_lshl_or_b32 v4, v8, 1, v4")
e("v_xor_b32 v4, s36, v4")
e("v_lshl_add_u32 v5, v4, 5, v5")
e(f"v_add_u32 v14, {WOFF}, v5")
e("v_min_u32 v4, 2, v1")
e(f"v_mul_u32_u24 v4, {AUXP}, v4")
e("v_lshl_add_u32 v4, v2, 4, v4")
e(f"v_add_u32 v12, {AUX}, v4")
e("v_add_u32 v15, s54, v12")
e("v_min_u32 v9, 4, v0")
e("v_lshlrev_b32 v9, 2, v9")
e(f"v_add_u32 v9, {FLG+F_AUX}, v9")
for i in range(0, 84, 2): e(f"v_mov_b64 v[{ACC+i}:{ACC+i+1}], 0")
e("v_mov_b32 v19, 0")
e("v_mov_b32 v8, 1")
e(f"s_mov_b32 s50, {PS}")
e("s_mov_b32 s53, 1")
e("s_mov_b32 s52, 1")
def xread(par, sp, T):
    x = XF + T*4
    if T < 6: return f"ds_read_b128 v[{x}:{x+3}], v13 offset:{par*XS + sp*XH + T*1024}"
    return f"ds_read_b128 v[{x}:{x+3}], v15 offset:{sp*64}"
def wreads(par, sp):
    r = []
    for t in range(3):
        w = WF + (sp*3+t)*4
        o = par*WS + t*8192 + sp*4096
        r.append(f"ds_read_b64_tr_b16 v[{w}:{w+1}], v14 offset:{o}")
        r.append(f"ds_read_b64_tr_b16 v[{w+2}:{w+3}], v14 offset:{o+512}")
    return r
def mf(sp, T, t):
    c = ACC + (T*3+t)*4; w = WF + (sp*3+t)*4; x = XF + T*4
    return f"v_mfma_f32_16x16x32_bf16 v[{c}:{c+3}], v[{w}:{w+3}], v[{x}:{x+3}], v[{c}:{c+3}]"
e("s_waitcnt vmcnt(0)")
e(f"ds_write_b32 v7, v8 offset:{F_AUX}")
e(f"s_setprio {CPRIO}")
spin(9, 0, 8, 1)
st2()
spin(6, 0, 8, 1)
st2()
def chunk_body(par):
    body = []
    w1 = wreads(par, 1)
    for T in range(7):
        for t in range(3):
            body.append(("m", [("x", 0, min(6, T + (WGRAN-1 if T % WGRAN == 0 else 0)))] + [("w", 0, 2 if WGRAN > 1 else t)], mf(0, T, t)))
            k = T*3+t-3
            if 0 <= k < 6: body.append(("r", ("w", 1, k//2), w1[k]))
        body.append(("r", ("x", 1, T), xread(par, 1, T)))
    nx = 1-par
    w0 = wreads(nx, 0)
    book = [[("FR",), "s_mov_b32 m0, s52"], ["v_add_u32 v19, 1, v19", "s_movrels_b32 s51, s76"], ["s_add_u32 s52, s52, 1"], ["v_add_u32 v15, s51, v12"]]
    if par == 1:
        book += [["s_add_u32 s53, s53, 1"], ["v_add_u32 v13, s50, v13"], ["v_add_u32 v14, s50, v14"], ["s_sub_u32 s50, 0, s50"]]
    pend = []
    for T in range(7):
        if T == BARPOS:
            assert not book
            body.append(("bar", nx))
            pend = [("r", ("w", 0, k//2), w0[k]) for k in range(6)]
            pend = pend[0:2] + [("r", ("x", 0, 0), xread(nx, 0, 0))] + pend[2:6] + [("r", ("x", 0, TT), xread(nx, 0, TT)) for TT in range(1, BARPOS)]
        for t in range(3):
            body.append(("m", [("x", 1, min(6, T + (WGRAN-1 if T % WGRAN == 0 else 0)))] + [("w", 1, 2 if WGRAN > 1 else t)], mf(1, T, t)))
            if book:
                for it in book.pop(0):
                    body.append(("r", ("f",), f"ds_read_b32 v8, v6 offset:{nx*16}") if it == ("FR",) else ("x", it))
            if pend: body.append(pend.pop(0))
        if T >= BARPOS: pend.append(("r", ("x", 0, T), xread(nx, 0, T)))
    while pend: body.append(pend.pop(0))
    return body
bodyA = chunk_body(0); bodyB = chunk_body(1)
bi = [i for i, it in enumerate(bodyB) if it[0] == "bar"][0]
init_reads = [it for it in bodyB[bi:] if it[0] == "r"]
for it in init_reads: e(it[2])
lbl("C_loop")
seq = [it[1] for it in init_reads]
lastwait = None
def emit(body):
    global lastwait
    for it in body:
        if it[0] == "r":
            e(it[2]); seq.append(it[1])
        elif it[0] == "x":
            e(it[1])
        elif it[0] == "m":
            idx = max(max(i for i, tg in enumerate(seq) if tg == need) for need in it[1])
            n = len(seq) - 1 - idx
            if lastwait is None or idx > lastwait:
                e(f"s_waitcnt lgkmcnt({min(n,15)})"); lastwait = idx
            e(it[2])
        elif it[0] == "bar":
            e("s_waitcnt lgkmcnt(0)"); lastwait = len(seq)-1
            e(f"ds_write_b32 v7, v19 offset:{F_DONE}")
            st2()
            spin(6, it[1]*16, 8, "s53", preread=True)
            st2()
emit(bodyA)
e("s_cmp_eq_u32 s53, 5")
e("s_cbranch_scc1 C_epi")
emit(bodyB)
e("s_branch C_loop")
out.extend(deferred); deferred.clear()
lbl("C_epi")
e("s_barrier")
e("s_waitcnt lgkmcnt(0)")
e(f"v_lshlrev_b32 v4, 3, v1")
e(f"v_add_u32 v4, {STATT}, v4")
ST = XF
for T in range(7): e(f"ds_read_b64 v[{ST+2*T}:{ST+2*T+1}], v4 offset:{T*128}")
e(f"v_mul_u32_u24 v5, {OUTP}, v1")
e("v_lshl_add_u32 v5, v2, 3, v5")
e("s_lshl_b32 s48, s36, 5")
e(f"s_add_u32 s48, s48, {OUTT}")
e("v_add_u32 v5, s48, v5")
C1 = XF+14; C2 = XF+26; TM = XF+38
for t in range(3):
    for r in range(4):
        a = ACC + (6*3+t)*4 + r
        e(f"v_mov_b32_dpp v{C1+t*4+r}, v{a} row_newbcast:0 row_mask:0xf bank_mask:0xf")
        e(f"v_mov_b32_dpp v{C2+t*4+r}, v{a} row_newbcast:1 row_mask:0xf bank_mask:0xf")
e("s_waitcnt lgkmcnt(0)")
n = 0
for T in range(7):
    st = ST+2*T
    for t in range(3):
        a = ACC + (T*3+t)*4
        tm = TM + (n % 3)*6; n += 1
        for h in range(2):
            e(f"v_pk_fma_f32 v[{tm+2*h}:{tm+2*h+1}], v[{C1+t*4+2*h}:{C1+t*4+2*h+1}], v[{st}:{st+1}], v[{C2+t*4+2*h}:{C2+t*4+2*h+1}] op_sel:[0,0,0] op_sel_hi:[1,0,1]")
        for h in range(2):
            e(f"v_pk_fma_f32 v[{tm+2*h}:{tm+2*h+1}], v[{a+2*h}:{a+2*h+1}], v[{st}:{st+1}], v[{tm+2*h}:{tm+2*h+1}] op_sel:[0,1,0] op_sel_hi:[1,1,1]")
        e(f"v_cvt_pk_bf16_f32 v{tm+4}, v{tm}, v{tm+1}")
        e(f"v_cvt_pk_bf16_f32 v{tm+5}, v{tm+2}, v{tm+3}")
        e(f"ds_write_b64 v5, v[{tm+4}:{tm+5}] offset:{T*16*OUTP + t*128}")
    e(f"v_mov_b32 v19, {T+1}")
    e(f"ds_write_b32 v7, v19 offset:{F_OUT}")
st2()
lbl("L_fin")
if STAMP == 2:
    e("s_mov_b64 exec, -1")
    st2(); e("s_waitcnt vmcnt(0)"); st2()
    e("s_memrealtime s[72:73]"); e("s_waitcnt lgkmcnt(0)"); e("v_writelane_b32 v167, s72, 63")
    srd(56, 14, 1<<22)
    e("s_lshl_b32 s60, s2, 12")
    e("s_lshl_b32 s61, s36, 8")
    e("s_add_u32 s60, s60, s61")
    e("v_lshlrev_b32 v1, 2, v0")
    e("buffer_store_dword v167, v1, s[56:59], s60 offen")
lbl("L_end")

text = HDR + f"""; @launch grid=(256,1,1) block=({NW*64},1,1) lds={LDS_TOTAL}
.amdgcn_target "amdgcn-amd-amdhsa--gfx950"
.text
.globl {NAME}_kernel
.p2align 8
.type {NAME}_kernel,@function
{NAME}_kernel:
""" + "\n".join(out) + f"""
    s_endpgm
.section .rodata,"a"
.p2align 6
.amdhsa_kernel {NAME}_kernel
  .amdhsa_next_free_vgpr 168
  .amdhsa_next_free_sgpr 100
  .amdhsa_accum_offset 168
  .amdhsa_group_segment_fixed_size 0
  .amdhsa_kernarg_size 56
  .amdhsa_user_sgpr_count 2
  .amdhsa_user_sgpr_kernarg_segment_ptr 1
  .amdhsa_system_sgpr_workgroup_id_x 1
.end_amdhsa_kernel
"""
open(sys.argv[1], "w").write(text)
```

```python
import sys
NAME = "standalone__layernorm_linear__sampling"
opts = dict(a.split("=", 1) for a in sys.argv[2:] if "=" in a)
def opt(k, d): return type(d)(opts.get(k, d))
STAMP = opt("stamp", 0)
STATS = opt("stats", "plain")
XFLAG = opt("xflag", ""); WFLAG = opt("wflag", ""); OFLAG = opt("oflag", "nt")
BARPOS = opt("barpos", 3)
PPRIO = opt("pprio", 0); P0PRIO = opt("p0prio", 2); CPRIO = opt("cprio", 0)
ROT = opt("rot", 1); SAFE = opt("safe", 1); WGRAN = opt("wgran", 2)
SPAN = opt("span", 1.0); X1MODE = opt("x1mode", 1); ROLEPERM = opt("roleperm", 1)
NW = 12
out = []
def e(s): out.append("    " + s)
def lbl(s): out.append(s + ":")
HDR = open("cdna_kernels/%s.s.ref" % NAME).read().split("; Override launch")[0]

XH = 6208; XS = 12416; WS = 24576; WOFF = 2*XS; PS = 2*XS + 2*WS
AUX = 2*PS; AUXP = 2080
STATT = AUX + 3*AUXP
PART = STATT + 896
FLG = (PART + 768 + 127)//128*128
LDS_TOTAL = FLG + 128
OUTT = PS; OUTP = 400
F_DONE, F_STATB, F_AUX, F_OUT = 32, 48, 64, 96

def st2():
    if STAMP not in (2, 3): return
    e("s_memtime s[70:71]")
    e("s_waitcnt lgkmcnt(0)")
    e("s_mov_b32 m0, s69"); e("s_nop 0"); e("v_writelane_b32 v167, s70, m0")
    e("s_add_u32 s69, s69, 1")
def srd(d, b, n):
    e(f"s_mov_b32 s{d}, s{b}")
    e(f"s_and_b32 s{d+1}, s{b+1}, 0xffff")
    e(f"s_mov_b32 s{d+2}, {n}")
    e(f"s_mov_b32 s{d+3}, 0x00020000")
def finalize_stats(trips):
    seq = [
     "v_mul_f32 v{m}, 0x3ae38e39, v{m}",
     "v_mul_f32 v{q}, 0x3ae38e39, v{q}",
     "v_fma_f32 v{q}, -v{m}, v{m}, v{q}",
     "v_max_f32 v{q}, 0, v{q}",
     "v_cvt_pk_bf16_f32 v{t}, v{m}, v{q}",
     "v_lshlrev_b32 v{m}, 16, v{t}",
     "v_and_b32 v{q}, 0xffff0000, v{t}",
     "v_add_f32 v{q}, 0x3727c5ac, v{q}",
     "v_cvt_pk_bf16_f32 v{t}, v{q}, v{q}",
     "v_lshlrev_b32 v{q}, 16, v{t}",
     "v_sqrt_f32 v{q}, v{q}",
     "NOP",
     "v_cvt_pk_bf16_f32 v{t}, v{q}, v{q}",
     "v_lshlrev_b32 v{q}, 16, v{t}",
     "v_rcp_f32 v{q}, v{q}",
     "NOP",
     "v_mul_f32 v{m}, v{m}, v{q}",
     "v_sub_f32 v{m}, 0, v{m}"]
    for s in seq:
        if s == "NOP": e("s_nop 0"); continue
        for (m, q, t) in trips: e(s.format(m=m, q=q, t=t))
spin_id = [0]
deferred = []
def spin(vaddr, off, vtmp, sneed, preread=False):
    global out
    k = spin_id[0]; spin_id[0] += 1
    save = None
    if preread:
        e(f"v_cmp_le_u32 vcc, {sneed}, v{vtmp}")
        e("s_cmp_eq_u64 vcc, exec")
        e(f"s_cbranch_scc0 SP_{k}")
        lbl(f"SP_ok{k}")
        save = out; out = []
    lbl(f"SP_{k}")
    e(f"ds_read_b32 v{vtmp}, v{vaddr} offset:{off}")
    e("s_waitcnt lgkmcnt(0)")
    e(f"v_cmp_le_u32 vcc, {sneed}, v{vtmp}")
    if SAFE:
        e("s_add_u32 s68, s68, 1")
        e("s_bitcmp1_b32 s68, 18")
        e(f"s_cbranch_scc1 SP_ok{k}")
    e("s_cmp_eq_u64 vcc, exec")
    e(f"s_cbranch_scc0 SP_{k}")
    if preread:
        e(f"s_branch SP_ok{k}")
        deferred.extend(out); out = save
    else:
        lbl(f"SP_ok{k}")

e("s_cmp_ge_u32 s2, 255")
e("s_cbranch_scc1 L_end")
if STAMP in (2, 3):
    e("s_mov_b32 s69, 0"); e("v_mov_b32 v167, 0"); e("s_memrealtime s[72:73]"); st2(); e("v_writelane_b32 v167, s72, 62")
e("s_load_dwordx4 s[4:7], s[0:1], 0")
e("s_load_dwordx4 s[8:11], s[0:1], 16")
e("s_load_dwordx2 s[12:13], s[0:1], 32")
if STAMP: e(f"s_load_dwordx2 s[14:15], s[0:1], {48 if STAMP == 2 else 40}")
if P0PRIO: e(f"s_setprio {P0PRIO}")
e("v_readfirstlane_b32 s36, v0")
e("v_and_b32 v0, 63, v0")
e("s_and_b32 s3, s2, 7")
e("s_lshr_b32 s40, s2, 3")
e("s_lshl_b32 s41, s3, 1")
e("s_add_u32 s41, s41, s40")
e("s_sub_u32 s41, s41, 30")
e("s_mul_i32 s42, s3, 10")
e("s_cmp_ge_u32 s40, 30")
e("s_cselect_b32 s40, s41, s40")
e("s_cselect_b32 s42, 80, s42")
e("s_mul_i32 s41, s40, 43")
e("s_lshr_b32 s41, s41, 7")
e("s_mul_i32 s43, s41, 3")
e("s_sub_u32 s38, s40, s43")
e("s_add_u32 s37, s42, s41")
if opt("map", 0) == 1:
    e("s_mul_i32 s37, s2, 171")
    e("s_lshr_b32 s37, s37, 9")
    e("s_mul_i32 s43, s37, 3")
    e("s_sub_u32 s38, s2, s43")
    e("s_mul_i32 s41, s37, 205")
    e("s_lshr_b32 s41, s41, 11")
    e("s_mul_i32 s41, s41, 10")
    e("s_sub_u32 s41, s37, s41")
e("s_mul_i32 s42, s41, 43")
e("s_lshr_b32 s42, s42, 7")
e("s_mul_i32 s43, s42, 3")
e("s_sub_u32 s24, s41, s43")
e("s_add_u32 s27, s38, s42")
e("s_sub_u32 s43, s27, 3")
e("s_cmp_ge_u32 s27, 3")
e("s_cselect_b32 s27, s43, s27")
if ROT == 0: e("s_mov_b32 s24, 0"); e("s_mov_b32 s27, 0")
if ROT == 2: e("s_mov_b32 s24, 0")
if ROT == 3:
    e("s_mov_b32 s24, 0")
    e("s_lshr_b32 s42, s41, 1")
    e("s_add_u32 s27, s38, s42")
    e("s_mul_i32 s43, s27, 43")
    e("s_lshr_b32 s43, s43, 7")
    e("s_mul_i32 s43, s43, 3")
    e("s_sub_u32 s27, s27, s43")
    e("s_and_b32 s39, s41, 1")
e("s_mul_i32 s24, s24, 384")
e("s_lshl_b32 s27, s27, 7")
e("s_add_u32 s64, s27, 128")
e("s_cmp_eq_u32 s64, 384")
e("s_cselect_b32 s64, 0, s64")
e(f"s_mul_i32 s40, s37, {96*1152}")
e("s_mul_i32 s41, s38, 384")
e("s_lshr_b32 s36, s36, 6")
if ROLEPERM:
    e("s_xor_b32 s42, s36, 4")
    e("s_cmp_lt_u32 s36, 8")
    e("s_cselect_b32 s36, s42, s36")
e("v_and_b32 v2, 7, v0")
e("v_lshrrev_b32 v3, 3, v0")
e("v_lshlrev_b32 v4, 4, v2")
e("v_mul_u32_u24 v8, 1152, v3")
e("v_add_u32 v5, v8, v4")
e("v_add_u32 v6, 9216, v5")
e("v_add_u32 v7, 18432, v5")
e("v_and_b32 v9, 16, v0")
e("v_lshlrev_b32 v9, 1, v9")
e("v_xor_b32 v8, v5, v9")
e("v_xor_b32 v9, 64, v8")
e("v_lshlrev_b32 v10, 2, v0")
e("v_mov_b32 v11, 0")
e(f"v_add_u32 v10, {FLG - 128}, v10")
e("ds_write_b32 v10, v11")
e("v_lshlrev_b32 v1, 4, v0")
e("s_lshr_b32 s47, s36, 3")
e("s_and_b32 s46, s36, 3")
e(f"s_mul_i32 s42, s46, {24*1152}")
e("s_add_u32 s44, s40, s42")
e("s_cmp_eq_u32 s47, 1")
e("s_cselect_b32 s54, s64, s27")
e("s_add_u32 s54, s54, s24")
e(f"s_mul_i32 s42, s46, {16*1152}")
e("s_add_u32 s45, s41, s42")
e("s_lshl_b32 s49, s46, 11")
e(f"s_mul_i32 s42, s47, {WS}")
e("s_add_u32 s49, s49, s42")
e(f"s_add_u32 s49, s49, {WOFF}")
e("s_mov_b32 s68, 0")
e("s_mov_b32 s66, 0xffff0000")

XR = 20; GP = 44; GF = 64; SA = 104; TP = 128; ON = 144; EX = 146
vm = []
def gload(i):
    e(f"buffer_load_dwordx4 v[{GP+4*i}:{GP+4*i+3}], v4, s[20:23], s{54+i} offen"); vm.append(("g", i))
def xload(i):
    e(f"s_add_u32 s67, s44, s{54+i}")
    for rg in range(3):
        r = XR + (i%2)*12 + rg*4
        e(f"buffer_load_dwordx4 v[{r}:{r+3}], v{5+rg}, s[16:19], s67 offen {XFLAG}"); vm.append(("x", i))
def wdma(i):
    so = (i % 2)*PS
    e(f"s_mul_i32 s43, s{54+i}, 576")
    e("s_add_u32 s43, s43, s45")
    e("s_add_u32 s42, s43, 9216")
    for gg in range(2):
        for c in range(3):
            e(f"s_add_u32 m0, s49, {so + c*8192 + gg*1024 - c*128}")
            e("s_nop 0")
            e(f"buffer_load_dwordx4 v{8+gg}, s[28:31], s{43-gg} offen offset:{c*128} {WFLAG} lds"); vm.append(("w", i))
def wait_min(tags):
    last = max(k for k, t in enumerate(vm) if t in tags)
    n = len([t for t in vm[last+1:] if t[1] != 4]) if tags[0][1] != 4 else len(vm)-1-last
    e(f"s_waitcnt vmcnt({min(n,63)})")
def kappa_bases():
    e("s_add_u32 s65, s64, 128")
    e("s_cmp_eq_u32 s65, 384")
    e("s_cselect_b32 s65, 0, s65")
    if ROT == 3:
        e("s_mul_i32 s42, s39, 384")
        e("s_add_u32 s25, s42, 384")
        e("s_sub_u32 s26, 768, s42")
        return
    for k in (25, 26):
        e(f"s_add_u32 s{k}, s{k-1}, 384")
        e(f"s_cmp_eq_u32 s{k}, 1152")
        e(f"s_cselect_b32 s{k}, 0, s{k}")
Bs = [24, 25, 26]; Rs = [27, 64, 65]

e("s_waitcnt lgkmcnt(0)")
srd(16, 4, 8192*1152)
srd(20, 6, 1152)
e("s_cmp_eq_u32 s47, 0")
e("s_cbranch_scc1 P_l0")
EXC = opt("exc", 1)
def exloads():
    e("s_add_u32 s48, s37, 8160")
    e("s_mul_i32 s48, s48, 1152")
    e("s_mov_b32 s60, s16")
    e("s_mov_b32 s61, s17")
    e("s_add_u32 s62, s48, 1152")
    e(f"s_min_u32 s62, s62, {8192*1152}")
    e("s_mov_b32 s63, 0x00020000")
    e(f"buffer_load_dwordx4 v[{EX}:{EX+3}], v1, s[60:63], s48 offen")
    e(f"buffer_load_dwordx4 v[{EX+4}:{EX+7}], v1, s[60:63], s48 offen offset:1024")
    e(f"buffer_load_dwordx4 v[{EX+8}:{EX+11}], v1, s[20:23], 0 offen")
    e(f"buffer_load_dwordx4 v[{EX+12}:{EX+15}], v1, s[20:23], 0 offen offset:1024")
if not EXC:
    e("s_cmp_lg_u32 s36, 8")
    e("s_cbranch_scc1 P_l00")
    exloads()
    e("s_barrier")
    e("s_branch P_extra")
lbl("P_l00")
e("s_barrier")
lbl("P_l0")
srd(28, 10, 576*1152)
e("s_cmp_lt_u32 s36, 4")
e("s_cbranch_scc1 P_l2")
gload(0); xload(0)
e("s_cmp_eq_u32 s47, 0")
e("s_cbranch_scc1 P_l1")
e("s_branch P_l3")
lbl("P_l2")
if EXC:
    e("s_cmp_lg_u32 s36, 3")
    e("s_cbranch_scc1 P_l2b")
    exloads()
    lbl("P_l2b")
e("s_cmp_ge_u32 s36, 2")
e("s_cbranch_scc1 P_l3")
e("s_cmp_eq_u32 s36, 1")
e("s_cselect_b32 s60, s8, s6")
e("s_cselect_b32 s61, s9, s7")
e("s_and_b32 s61, s61, 0xffff")
e("s_mov_b32 s62, 1152")
e("s_mov_b32 s63, 0x00020000")
e(f"s_mul_i32 s48, s36, {AUXP}")
e(f"s_add_u32 m0, s48, {AUX}")
e("s_nop 0")
e("buffer_load_dwordx4 v1, s[60:63], 0 offen lds")
e("buffer_load_dwordx4 v1, s[60:63], 0 offen offset:1024 lds")
lbl("P_l3")
wdma(0)
e("s_cmp_lt_u32 s36, 4")
e("s_cbranch_scc0 P_l1")
e("s_barrier")
e("s_branch L_cons")

lbl("P_l1")
kappa_bases()
for i in range(1, 5):
    t0, t1 = 2*i, min(2*i+1, 8)
    e(f"s_add_u32 s42, s{Bs[t0//3]}, s{Rs[t0%3]}")
    e(f"s_add_u32 s43, s{Bs[t1//3]}, s{Rs[t1%3]}")
    e("s_cmp_eq_u32 s47, 1")
    e(f"s_cselect_b32 s{54+i}, s43, s42")
if X1MODE == 2:
    e("s_cbranch_scc0 P_nx1")
    n0 = len(vm); xload(1); del vm[n0:]
    lbl("P_nx1")
srd(32, 12, 8192*1152)
e("v_lshrrev_b32 v10, 2, v3")
e("v_sub_u32 v10, 0, v10")
e("v_xor_b32 v10, v10, v2")
e("v_and_b32 v10, 3, v10")
e("v_lshlrev_b32 v10, 4, v10")
e("v_lshl_add_u32 v10, v3, 6, v10")
e("v_lshrrev_b32 v11, 2, v2")
e(f"v_mul_u32_u24 v11, {XH}, v11")
e("s_and_b32 s43, s46, 1")
e("s_lshl_b32 s43, s43, 5")
e("v_xor_b32 v10, s43, v10")
e("s_mul_i32 s42, s46, 1536")
e(f"s_mul_i32 s43, s47, {XS}")
e("s_add_u32 s42, s42, s43")
e("v_xor_b32 v12, 32, v10")
e("v_add3_u32 v10, v10, v11, s42")
e("v_add3_u32 v11, v12, v11, s42")
e(f"v_add_u32 v12, {PS}, v10")
e(f"v_add_u32 v13, {PS}, v11")
e("s_lshl_b32 s42, s47, 4")
e("s_lshl_b32 s43, s46, 2")
e("s_add_u32 s42, s42, s43")
e(f"s_add_u32 s42, s42, {FLG}")
e("v_mov_b32 v16, s42")
e("v_and_b32 v17, 3, v0")
e("v_lshlrev_b32 v17, 2, v17")
e(f"v_add_u32 v17, {FLG}, v17")
M1 = STATS in ("mfma", "mfma1"); M2 = STATS in ("mfma", "mfma2")
for i in range(0, 24, 2): e(f"v_mov_b64 v[{SA+i}:{SA+i+1}], 0")
e(f"v_mov_b32 v{ON}, 0x3f803f80"); e(f"v_mov_b32 v{ON+1}, 0x3f803f80")
def exstats():
    src, dst = EX+16, EX+18
    for mod in ["quad_perm:[1,0,3,2]", "quad_perm:[2,3,0,1]", "row_half_mirror", "row_mirror"]:
        e("s_nop 1")
        e(f"v_add_f32_dpp v{dst}, v{src}, v{src} {mod} row_mask:0xf bank_mask:0xf")
        e(f"v_add_f32_dpp v{dst+1}, v{src+1}, v{src+1} {mod} row_mask:0xf bank_mask:0xf")
        src, dst = dst, src
    e("s_nop 1")
    for r, base in ((src, 76), (src+1, 80)):
        for k in range(4): e(f"v_readlane_b32 s{base+k}, v{r}, {16*k}")
    e("s_nop 3")
    for r, base in ((src, 76), (src+1, 80)):
        e(f"v_mov_b32 v{r}, s{base}")
        for k in range(1, 4): e(f"v_add_f32 v{r}, s{base+k}, v{r}")
    finalize_stats([(src, src+1, TP)])
    e(f"v_mov_b32 v14, {STATT + 98*8}")
    e(f"ds_write_b64 v14, v[{src}:{src+1}]")
if not EXC:
    e("s_cmp_lg_u32 s36, 8")
    e("s_cbranch_scc1 P_noex")
    exstats()
lbl("P_noex")

def gunpack(i):
    for k in range(4):
        e(f"v_lshlrev_b32 v{GF+8*i+2*k}, 16, v{GP+4*i+k}")
        e(f"v_and_b32 v{GF+8*i+2*k+1}, s66, v{GP+4*i+k}")
def convert(i):
    gf = GF + 8*i
    for rg in range(3):
        regs = [XR + (i%2)*12 + rg*4 + k for k in range(4)]
        S1 = SA + rg*8; S2 = S1 + 4
        tb = TP + (rg % 2)*8
        mm = []
        for h in range(2):
            x = regs[2*h]
            if M1: mm.append(f"v_mfma_f32_4x4x4_16b_bf16 v[{S1}:{S1+3}], v[{ON}:{ON+1}], v[{x}:{x+1}], v[{S1}:{S1+3}]")
            if M2: mm.append(f"v_mfma_f32_4x4x4_16b_bf16 v[{S2}:{S2+3}], v[{x}:{x+1}], v[{x}:{x+1}], v[{S2}:{S2+3}]")
        for k in range(4):
            if mm and (len(mm) == 4 or k % 2 == 0 or (M1 and M2)): e(mm.pop(0))
            e(f"v_lshlrev_b32 v{tb+2*k}, 16, v{regs[k]}")
            e(f"v_and_b32 v{tb+2*k+1}, s66, v{regs[k]}")
        assert not mm
        for k in range(4):
            lo, hi = tb+2*k, tb+2*k+1
            if not M1:
                e(f"v_add_f32 v{S1}, v{S1}, v{lo}")
                e(f"v_add_f32 v{S1+1}, v{S1+1}, v{hi}")
            if not M2:
                e(f"v_fmac_f32 v{S2}, v{lo}, v{lo}")
                e(f"v_fmac_f32 v{S2+1}, v{hi}, v{hi}")
        for k in range(4):
            lo, hi = tb+2*k, tb+2*k+1
            e(f"v_mul_f32 v{lo}, v{lo}, v{gf+2*k}")
            e(f"v_mul_f32 v{hi}, v{hi}, v{gf+2*k+1}")
        for k in range(4):
            e(f"v_cvt_pk_bf16_f32 v{regs[k]}, v{tb+2*k}, v{tb+2*k+1}")
        if opt("w64", 0):
            e(f"ds_write_b64 v{10+2*(i%2)+(rg&1)}, v[{regs[0]}:{regs[1]}] offset:{rg*512}")
            e(f"ds_write_b64 v{10+2*(i%2)+(rg&1)}, v[{regs[2]}:{regs[3]}] offset:{rg*512+8}")
        else:
            e(f"ds_write_b128 v{10+2*(i%2)+(rg&1)}, v[{regs[0]}:{regs[3]}] offset:{rg*512}")
def capture(fn, *args):
    global out
    save = out; out = []; n0 = len(vm)
    fn(*args)
    lines = out; out = save
    tags = vm[n0:]; del vm[n0:]
    groups = []; cur = []
    for l in lines:
        cur.append(l)
        if "buffer_load" in l: groups.append((cur, tags[len(groups)])); cur = []
    assert not cur
    return groups
def convert_with(i, groups):
    global out
    save = out; out = []
    convert(i)
    lines = out; out = save
    if opt("wend", 0):
        lines = [l for l in lines if "ds_write" not in l] + (["    s_waitcnt vmcnt(%d)" % (3 if i in (1, 2) else 0)] if opt("wend", 0) == 2 and i >= 1 else []) + [l for l in lines if "ds_write" in l]
    if opt("novalu", 0) and i >= 1: lines = [l for l in lines if "ds_write" in l] + ["    s_nop 0"]*40
    if opt("nowr", 0) and i >= 1: lines = [l for l in lines if "ds_write" not in l]
    if opt("nodma", 0) and i >= 2:
        groups = [([l.replace("buffer_load_dwordx4 v8", "buffer_load_dwordx4 v[148:151], v8").replace("buffer_load_dwordx4 v9", "buffer_load_dwordx4 v[148:151], v9").replace(" lds", "") for l in g[0]], g[1]) if g is not None else None for g in groups]
    if opt("novm", 0) and i >= 2:
        groups = [([l for l in g[0] if "buffer_load" not in l], g[1]) if g is not None else None for g in groups]
    if not groups:
        out.extend(lines); return
    step = max(1, int((len(lines) - 8) * SPAN) // len(groups))
    gi = 0
    for k, l in enumerate(lines):
        if gi < len(groups) and k == gi*step:
            if groups[gi] is not None:
                out.extend(groups[gi][0]); vm.append(groups[gi][1])
            gi += 1
        out.append(l)
    assert gi == len(groups)
st2()
for i in range(5):
    if i == 4:
        e("s_cmp_eq_u32 s47, 1")
        e("s_cbranch_scc1 P_odd_done")
    if i >= 2:
        e(f"s_add_u32 s43, s47, {2*(i-2)+1}")
        spin(17, F_DONE, 18, "s43")
    if i == 0:
        e("s_cmp_eq_u32 s47, 0")
        e("s_cbranch_scc0 P_w0")
        e("s_barrier")
        e("s_waitcnt vmcnt(0)")
        lbl("P_w0")
        e(f"s_waitcnt vmcnt({6 + (3 if X1MODE == 2 else 0)})")
    else:
        wait_min([("x", i)])
    st2()
    groups = []
    if i == 0:
        gunpack(0)
        if X1MODE == 0: groups += [None]*3 + capture(xload, 1)
    elif i == 1:
        groups += capture(xload, 2)
    else:
        groups += capture(wdma, i)
        if i == 2:
            xg = capture(xload, 3)
            if opt("mixed", 1): groups = groups[0:2] + xg[0:1] + groups[2:4] + xg[1:2] + groups[4:6] + xg[2:3]
            else: groups += xg
    convert_with(i, groups)
    if i == 0 and X1MODE == 2: e("s_waitcnt vmcnt(3)")
    else: wait_min([("w", i)])
    e(f"v_mov_b32 v19, {i+1}")
    e("ds_write_b32 v16, v19")
    st2()
    if i == 0:
        if P0PRIO != PPRIO: e(f"s_setprio {PPRIO}")
        if X1MODE == 1: xload(1)
        if X1MODE == 2:
            e("s_cmp_eq_u32 s47, 1"); e("s_cbranch_scc1 P_x1done")
            xload(1)
            lbl("P_x1done")
        wdma(1)
        e(f"v_mov_b32 v19, {FLG+F_AUX}")
        spin(19, 0, 18, 1)
        e(f"v_add_u32 v19, {AUX}, v4")
        for k in range(1, 5):
            e(f"v_add_u32 v18, s{54+k}, v19")
            e(f"ds_read_b128 v[{GP+4*k}:{GP+4*k+3}], v18")
        e("s_waitcnt lgkmcnt(0)")
        for k in range(1, 5): gunpack(k)
    if i == 3:
        e("s_cmp_eq_u32 s47, 1"); e("s_cbranch_scc1 P_skipx4")
        xload(4)
        lbl("P_skipx4")
R = TP+8
def reduce8():
    e("s_nop 7")
    if M2:
        e("v_and_b32 v14, 3, v0")
        for k in range(1, 4): e(f"v_cmp_eq_u32 s[{74+2*k}:{75+2*k}], {k}, v14")
    for rg in range(3):
        S1 = SA + rg*8; S2 = S1 + 4
        if M1: e(f"v_mov_b32 v{TP+2*rg}, v{S1}")
        else: e(f"v_add_f32 v{TP+2*rg}, v{S1}, v{S1+1}")
        if M2:
            e(f"v_cndmask_b32 v{TP+2*rg+1}, v{S2}, v{S2+1}, s[76:77]")
            e(f"v_cndmask_b32 v{TP+2*rg+1}, v{TP+2*rg+1}, v{S2+2}, s[78:79]")
            e(f"v_cndmask_b32 v{TP+2*rg+1}, v{TP+2*rg+1}, v{S2+3}, s[80:81]")
        else: e(f"v_add_f32 v{TP+2*rg+1}, v{S2}, v{S2+1}")
    src, dst = TP, TP+8
    for mod in ["quad_perm:[1,0,3,2]", "quad_perm:[2,3,0,1]", "row_half_mirror"]:
        e("s_nop 1")
        for k in range(6): e(f"v_add_f32_dpp v{dst+k}, v{src+k}, v{src+k} {mod} row_mask:0xf bank_mask:0xf")
        src, dst = dst, src
    e("s_mul_i32 s42, s46, 192")
    e(f"s_add_u32 s42, s42, {STATT}")
    e("v_lshlrev_b32 v14, 3, v3")
    e("v_add_u32 v14, s42, v14")
    e("s_lshl_b32 s42, s46, 2")
    e(f"s_add_u32 s42, s42, {FLG+F_STATB}")
    e("v_mov_b32 v15, s42")
reduce8()
spin(15, 0, 18, 1)
for rg in range(3): e(f"ds_read_b64 v[{TP+2*rg}:{TP+2*rg+1}], v14 offset:{PART-STATT + rg*64}")
e("s_waitcnt lgkmcnt(0)")
for k in range(6): e(f"v_add_f32 v{R+k}, v{R+k}, v{TP+k}")
finalize_stats([(R+2*rg, R+2*rg+1, TP+rg) for rg in range(3)])
for rg in range(3): e(f"ds_write_b64 v14, v[{R+2*rg}:{R+2*rg+1}] offset:{rg*64}")
e("v_mov_b32 v19, 5")
e("ds_write_b32 v16, v19 offset:16")
st2()
e("s_branch L_store")
lbl("P_odd_done")
reduce8()
for rg in range(3): e(f"ds_write_b64 v14, v[{R+2*rg}:{R+2*rg+1}] offset:{PART-STATT + rg*64}")
e("v_mov_b32 v19, 1")
e("ds_write_b32 v15, v19")
st2()

lbl("L_store")
e("s_sub_u32 s46, s36, 4")
e("s_cmp_eq_u32 s46, 7")
e("s_cbranch_scc0 L_st1")
e("s_barrier")
e("s_branch L_fin")
lbl("L_st1")
e("s_add_u32 s47, s46, 1")
e("s_cmp_eq_u32 s46, 6")
e("s_cbranch_scc1 L_xrow")
for jj in range(3):
    e(f"v_add_u32 v2, {64*jj}, v0")
    e("v_mul_u32_u24 v3, 2731, v2")
    e("v_lshrrev_b32 v3, 16, v3")
    e("v_mul_u32_u24 v4, 24, v3")
    e("v_sub_u32 v4, v2, v4")
    e("v_lshlrev_b32 v4, 4, v4")
    e(f"v_mul_u32_u24 v5, {OUTP}, v3")
    e(f"v_add_u32 v{8+jj}, v5, v4")
    e("v_mul_u32_u24 v5, 1152, v3")
    e(f"v_add_u32 v{12+jj}, v5, v4")
e(f"s_mul_i32 s48, s46, {16*OUTP}")
e(f"s_add_u32 s48, s48, {OUTT}")
for jj in range(3): e(f"v_add_u32 v{8+jj}, s48, v{8+jj}")
e(f"s_mul_i32 s48, s46, {16*1152}")
e("s_add_u32 s48, s48, s40")
e("s_add_u32 s48, s48, s41")
e("s_add_u32 s49, s48, 9216")
e("s_barrier")
st2()
spin(17, F_OUT, 18, "s47")
st2()
for jj in range(6): e(f"ds_read_b128 v[{20+4*jj}:{23+4*jj}], v{8+jj%3} offset:{(jj//3)*8*OUTP}")
for jj in range(6):
    e(f"s_waitcnt lgkmcnt({5-jj})")
    e(f"buffer_store_dwordx4 v[{20+4*jj}:{23+4*jj}], v{12+jj%3}, s[32:35], s{48+jj//3} offen {OFLAG}")
e("s_branch L_fin")
lbl("L_xrow")
e(f"v_add_u32 v6, {OUTT + 98*OUTP}, v1")
e("s_add_u32 s48, s37, 8160")
e("s_mul_i32 s48, s48, 1152")
e("s_add_u32 s48, s48, s41")
e("s_barrier")
st2()
spin(17, F_OUT, 18, "s47")
st2()
e("s_mov_b64 exec, 0xffffff")
e("ds_read_b128 v[44:47], v6")
e("s_waitcnt lgkmcnt(0)")
e(f"buffer_store_dwordx4 v[44:47], v1, s[32:35], s48 offen {OFLAG}")
e("s_branch L_fin")

def exconv():
    e(f"v_add_u32 v14, {AUX + 2*AUXP}, v1")
    e(f"v_mov_b32 v{EX+16}, 0"); e(f"v_mov_b32 v{EX+17}, 0")
    e(f"s_waitcnt vmcnt({6 if EXC else 0})")
    for i in range(8):
        x = EX+i; g = EX+8+i; a, b, c, d = TP, TP+1, TP+2, TP+3
        e(f"v_lshlrev_b32 v{a}, 16, v{x}")
        e(f"v_and_b32 v{b}, s66, v{x}")
        e(f"v_lshlrev_b32 v{c}, 16, v{g}")
        e(f"v_and_b32 v{d}, s66, v{g}")
        e(f"v_add_f32 v{EX+16}, v{EX+16}, v{a}")
        e(f"v_fmac_f32 v{EX+17}, v{a}, v{a}")
        e(f"v_add_f32 v{EX+16}, v{EX+16}, v{b}")
        e(f"v_fmac_f32 v{EX+17}, v{b}, v{b}")
        e(f"v_mul_f32 v{a}, v{a}, v{c}")
        e(f"v_mul_f32 v{b}, v{b}, v{d}")
        e(f"v_cvt_pk_bf16_f32 v{x}, v{a}, v{b}")
    e(f"ds_write_b128 v14, v[{EX}:{EX+3}]")
    e(f"ds_write_b128 v14, v[{EX+4}:{EX+7}] offset:1024")
    e("v_mov_b32 v19, 1")
    e(f"v_mov_b32 v14, {FLG + F_AUX + 16}")
    e("ds_write_b32 v14, v19")
if not EXC:
    lbl("P_extra")
    exconv()
    e("s_branch P_l0")
ACC = 20; XF = 104; WF = 132
lbl("L_cons")
e(f"s_setprio {opt('c0prio', 0)}")
if EXC:
    e("s_cmp_lg_u32 s36, 3")
    e("s_cbranch_scc1 C_noex")
    exconv()
    exstats()
    lbl("C_noex")
kappa_bases()
for t in range(1, 9): e(f"s_add_u32 s{76+t}, s{Bs[t//3]}, s{Rs[t%3]}")
e("s_mov_b32 s85, 0")
e("v_and_b32 v6, 3, v0")
e("v_lshlrev_b32 v6, 2, v6")
e(f"v_add_u32 v6, {FLG}, v6")
e("s_lshl_b32 s48, s36, 2")
e(f"s_add_u32 s48, s48, {FLG}")
e("v_mov_b32 v7, s48")
e("v_and_b32 v1, 15, v0")
e("v_lshrrev_b32 v2, 4, v0")
e("v_lshrrev_b32 v4, 2, v1")
e("v_sub_u32 v4, 0, v4")
e("v_xor_b32 v4, v4, v2")
e("v_and_b32 v4, 3, v4")
e("v_lshlrev_b32 v4, 4, v4")
e("v_lshl_add_u32 v13, v1, 6, v4")
e("v_bfe_u32 v4, v0, 2, 2")
e("v_lshl_add_u32 v5, v2, 3, v4")
e("v_lshlrev_b32 v5, 7, v5")
e("v_and_b32 v8, 3, v0")
e("v_lshl_add_u32 v5, v8, 3, v5")
e("v_lshrrev_b32 v4, 1, v4")
e("v_and_b32 v8, 1, v2")
e("v_lshl_or_b32 v4, v8, 1, v4")
e("v_xor_b32 v4, s36, v4")
e("v_lshl_add_u32 v5, v4, 5, v5")
e(f"v_add_u32 v14, {WOFF}, v5")
e("v_min_u32 v4, 2, v1")
e(f"v_mul_u32_u24 v4, {AUXP}, v4")
e("v_lshl_add_u32 v4, v2, 4, v4")
e(f"v_add_u32 v12, {AUX}, v4")
e("v_add_u32 v15, s54, v12")
e("v_min_u32 v9, 4, v0")
e("v_lshlrev_b32 v9, 2, v9")
e(f"v_add_u32 v9, {FLG+F_AUX}, v9")
for i in range(0, 84, 2): e(f"v_mov_b64 v[{ACC+i}:{ACC+i+1}], 0")
e("v_mov_b32 v19, 0")
e("v_mov_b32 v8, 1")
e(f"s_mov_b32 s50, {PS}")
e("s_mov_b32 s53, 1")
e("s_mov_b32 s52, 1")
def xread(par, sp, T):
    x = XF + T*4
    if T < 6: return f"ds_read_b128 v[{x}:{x+3}], v13 offset:{par*XS + sp*XH + T*1024}"
    return f"ds_read_b128 v[{x}:{x+3}], v15 offset:{sp*64}"
def wreads(par, sp):
    r = []
    for t in range(3):
        w = WF + (sp*3+t)*4
        o = par*WS + t*8192 + sp*4096
        r.append(f"ds_read_b64_tr_b16 v[{w}:{w+1}], v14 offset:{o}")
        r.append(f"ds_read_b64_tr_b16 v[{w+2}:{w+3}], v14 offset:{o+512}")
    return r
def mf(sp, T, t):
    c = ACC + (T*3+t)*4; w = WF + (sp*3+t)*4; x = XF + T*4
    return f"v_mfma_f32_16x16x32_bf16 v[{c}:{c+3}], v[{w}:{w+3}], v[{x}:{x+3}], v[{c}:{c+3}]"
e("s_waitcnt vmcnt(0)")
e(f"ds_write_b32 v7, v8 offset:{F_AUX}")
e(f"s_setprio {CPRIO}")
spin(9, 0, 8, 1)
st2()
spin(6, 0, 8, 1)
st2()
def chunk_body(par):
    body = []
    w1 = wreads(par, 1)
    for T in range(7):
        for t in range(3):
            body.append(("m", [("x", 0, min(6, T + (WGRAN-1 if T % WGRAN == 0 else 0)))] + [("w", 0, 2 if WGRAN > 1 else t)], mf(0, T, t)))
            k = T*3+t-3
            if 0 <= k < 6: body.append(("r", ("w", 1, k//2), w1[k]))
        body.append(("r", ("x", 1, T), xread(par, 1, T)))
    nx = 1-par
    w0 = wreads(nx, 0)
    book = [[("FR",), "s_mov_b32 m0, s52"], ["v_add_u32 v19, 1, v19", "s_movrels_b32 s51, s76"], ["s_add_u32 s52, s52, 1"], ["v_add_u32 v15, s51, v12"]]
    if par == 1:
        book += [["s_add_u32 s53, s53, 1"], ["v_add_u32 v13, s50, v13"], ["v_add_u32 v14, s50, v14"], ["s_sub_u32 s50, 0, s50"]]
    pend = []
    for T in range(7):
        if T == BARPOS:
            assert not book
            body.append(("bar", nx))
            pend = [("r", ("w", 0, k//2), w0[k]) for k in range(6)]
            pend = pend[0:2] + [("r", ("x", 0, 0), xread(nx, 0, 0))] + pend[2:6] + [("r", ("x", 0, TT), xread(nx, 0, TT)) for TT in range(1, BARPOS)]
        for t in range(3):
            body.append(("m", [("x", 1, min(6, T + (WGRAN-1 if T % WGRAN == 0 else 0)))] + [("w", 1, 2 if WGRAN > 1 else t)], mf(1, T, t)))
            if book:
                for it in book.pop(0):
                    body.append(("r", ("f",), f"ds_read_b32 v8, v6 offset:{nx*16}") if it == ("FR",) else ("x", it))
            if pend: body.append(pend.pop(0))
        if T >= BARPOS: pend.append(("r", ("x", 0, T), xread(nx, 0, T)))
    while pend: body.append(pend.pop(0))
    return body
bodyA = chunk_body(0); bodyB = chunk_body(1)
bi = [i for i, it in enumerate(bodyB) if it[0] == "bar"][0]
init_reads = [it for it in bodyB[bi:] if it[0] == "r"]
for it in init_reads: e(it[2])
lbl("C_loop")
seq = [it[1] for it in init_reads]
lastwait = None
def emit(body):
    global lastwait
    for it in body:
        if it[0] == "r":
            e(it[2]); seq.append(it[1])
        elif it[0] == "x":
            e(it[1])
        elif it[0] == "m":
            idx = max(max(i for i, tg in enumerate(seq) if tg == need) for need in it[1])
            n = len(seq) - 1 - idx
            if lastwait is None or idx > lastwait:
                e(f"s_waitcnt lgkmcnt({min(n,15)})"); lastwait = idx
            e(it[2])
        elif it[0] == "bar":
            e("s_waitcnt lgkmcnt(0)"); lastwait = len(seq)-1
            e(f"ds_write_b32 v7, v19 offset:{F_DONE}")
            st2()
            spin(6, it[1]*16, 8, "s53", preread=True)
            st2()
emit(bodyA)
e("s_cmp_eq_u32 s53, 5")
e("s_cbranch_scc1 C_epi")
emit(bodyB)
e("s_branch C_loop")
out.extend(deferred); deferred.clear()
lbl("C_epi")
e("s_barrier")
e("s_waitcnt lgkmcnt(0)")
e(f"v_lshlrev_b32 v4, 3, v1")
e(f"v_add_u32 v4, {STATT}, v4")
ST = XF
for T in range(7): e(f"ds_read_b64 v[{ST+2*T}:{ST+2*T+1}], v4 offset:{T*128}")
e(f"v_mul_u32_u24 v5, {OUTP}, v1")
e("v_lshl_add_u32 v5, v2, 3, v5")
e("s_lshl_b32 s48, s36, 5")
e(f"s_add_u32 s48, s48, {OUTT}")
e("v_add_u32 v5, s48, v5")
C1 = XF+14; C2 = XF+26; TM = XF+38
for t in range(3):
    for r in range(4):
        a = ACC + (6*3+t)*4 + r
        e(f"v_mov_b32_dpp v{C1+t*4+r}, v{a} row_newbcast:0 row_mask:0xf bank_mask:0xf")
        e(f"v_mov_b32_dpp v{C2+t*4+r}, v{a} row_newbcast:1 row_mask:0xf bank_mask:0xf")
e("s_waitcnt lgkmcnt(0)")
n = 0
for T in range(7):
    st = ST+2*T
    for t in range(3):
        a = ACC + (T*3+t)*4
        tm = TM + (n % 3)*6; n += 1
        for h in range(2):
            e(f"v_pk_fma_f32 v[{tm+2*h}:{tm+2*h+1}], v[{C1+t*4+2*h}:{C1+t*4+2*h+1}], v[{st}:{st+1}], v[{C2+t*4+2*h}:{C2+t*4+2*h+1}] op_sel:[0,0,0] op_sel_hi:[1,0,1]")
        for h in range(2):
            e(f"v_pk_fma_f32 v[{tm+2*h}:{tm+2*h+1}], v[{a+2*h}:{a+2*h+1}], v[{st}:{st+1}], v[{tm+2*h}:{tm+2*h+1}] op_sel:[0,1,0] op_sel_hi:[1,1,1]")
        e(f"v_cvt_pk_bf16_f32 v{tm+4}, v{tm}, v{tm+1}")
        e(f"v_cvt_pk_bf16_f32 v{tm+5}, v{tm+2}, v{tm+3}")
        e(f"ds_write_b64 v5, v[{tm+4}:{tm+5}] offset:{T*16*OUTP + t*128}")
    e(f"v_mov_b32 v19, {T+1}")
    e(f"ds_write_b32 v7, v19 offset:{F_OUT}")
st2()
lbl("L_fin")
if STAMP == 3:
    e("s_mov_b64 exec, -1")
    st2(); e("s_waitcnt vmcnt(0)"); st2()
    e("s_memrealtime s[74:75]")
    srd(56, 14, 256)
    e("v_readlane_b32 s72, v167, 62")
    e("s_waitcnt lgkmcnt(0)")
    e("s_cmp_lg_u32 s36, 9")
    e("s_cbranch_scc1 L_d2")
    e("s_sub_u32 s73, s74, s72")
    e("s_not_b32 s72, s72")
    e("v_mov_b32 v1, 0"); e("v_mov_b32 v2, s72"); e("v_mov_b32 v3, s74"); e("v_mov_b32 v4, s73")
    e("s_mov_b64 exec, 1")
    e("buffer_atomic_umax v2, v1, s[56:59], 0 offen")
    e("buffer_atomic_umax v3, v1, s[56:59], 0 offen offset:4")
    e("buffer_atomic_add v4, v1, s[56:59], 0 offen offset:8")
    e("s_branch L_end")
    lbl("L_d2")
    e("s_cmp_lg_u32 s2, 100")
    e("s_cbranch_scc1 L_end")
    e("s_cmp_lg_u32 s36, 0")
    e("s_cbranch_scc1 L_end")
    e("v_readlane_b32 s70, v167, 0")
    e("s_nop 3")
    e("v_subrev_u32 v167, s70, v167")
    e("v_lshlrev_b32 v1, 1, v0")
    e("v_add_u32 v1, 8, v1")
    e("s_mov_b32 exec_lo, 0x555554")
    e("s_mov_b32 exec_hi, 0")
    e("buffer_store_dword v167, v1, s[56:59], 0 offen")
if STAMP == 2:
    e("s_mov_b64 exec, -1")
    st2(); e("s_waitcnt vmcnt(0)"); st2()
    e("s_memrealtime s[72:73]"); e("s_waitcnt lgkmcnt(0)"); e("v_writelane_b32 v167, s72, 63")
    srd(56, 14, 1<<22)
    e("s_lshl_b32 s60, s2, 12")
    e("s_lshl_b32 s61, s36, 8")
    e("s_add_u32 s60, s60, s61")
    e("v_lshlrev_b32 v1, 2, v0")
    e("buffer_store_dword v167, v1, s[56:59], s60 offen")
lbl("L_end")

text = HDR + f"""; @launch grid=(256,1,1) block=({NW*64},1,1) lds={LDS_TOTAL}
.amdgcn_target "amdgcn-amd-amdhsa--gfx950"
.text
.globl {NAME}_kernel
.p2align 8
.type {NAME}_kernel,@function
{NAME}_kernel:
""" + "\n".join(out) + f"""
    s_endpgm
.section .rodata,"a"
.p2align 6
.amdhsa_kernel {NAME}_kernel
  .amdhsa_next_free_vgpr 168
  .amdhsa_next_free_sgpr 100
  .amdhsa_accum_offset 168
  .amdhsa_group_segment_fixed_size 0
  .amdhsa_kernarg_size 56
  .amdhsa_user_sgpr_count 2
  .amdhsa_user_sgpr_kernarg_segment_ptr 1
  .amdhsa_system_sgpr_workgroup_id_x 1
.end_amdhsa_kernel
"""
open(sys.argv[1], "w").write(text)
```

```python
import sys
NAME = "standalone__layernorm_linear__sampling"
opts = dict(a.split("=", 1) for a in sys.argv[2:] if "=" in a)
def opt(k, d): return type(d)(opts.get(k, d))
STAMP = opt("stamp", 0)
STATS = opt("stats", "plain")
XFLAG = opt("xflag", ""); WFLAG = opt("wflag", ""); OFLAG = opt("oflag", "nt")
BARPOS = opt("barpos", 3)
PPRIO = opt("pprio", 0); P0PRIO = opt("p0prio", 2); CPRIO = opt("cprio", 0)
ROT = opt("rot", 1); SAFE = opt("safe", 1); WGRAN = opt("wgran", 2)
SPAN = opt("span", 1.0); X1MODE = opt("x1mode", 1); ROLEPERM = opt("roleperm", 1)
NW = 12
out = []
def e(s): out.append("    " + s)
def lbl(s): out.append(s + ":")
HDR = open("cdna_kernels/%s.s.ref" % NAME).read().split("; Override launch")[0]

XH = 6208; XS = 12416; WS = 24576; WOFF = 2*XS; PS = 2*XS + 2*WS
AUX = 2*PS; AUXP = 2080
STATT = AUX + 3*AUXP
PART = STATT + 896
FLG = (PART + 768 + 127)//128*128
LDS_TOTAL = FLG + 128
OUTT = PS; OUTP = 400
F_DONE, F_STATB, F_AUX, F_OUT = 32, 48, 64, 96

def st2():
    if STAMP not in (2, 3): return
    e("s_memtime s[70:71]")
    e("s_waitcnt lgkmcnt(0)")
    e("s_mov_b32 m0, s69"); e("s_nop 0"); e("v_writelane_b32 v167, s70, m0")
    e("s_add_u32 s69, s69, 1")
def srd(d, b, n):
    e(f"s_mov_b32 s{d}, s{b}")
    e(f"s_and_b32 s{d+1}, s{b+1}, 0xffff")
    e(f"s_mov_b32 s{d+2}, {n}")
    e(f"s_mov_b32 s{d+3}, 0x00020000")
def finalize_stats(trips):
    seq = [
     "v_mul_f32 v{m}, 0x3ae38e39, v{m}",
     "v_mul_f32 v{q}, 0x3ae38e39, v{q}",
     "v_fma_f32 v{q}, -v{m}, v{m}, v{q}",
     "v_max_f32 v{q}, 0, v{q}",
     "v_cvt_pk_bf16_f32 v{t}, v{m}, v{q}",
     "v_lshlrev_b32 v{m}, 16, v{t}",
     "v_and_b32 v{q}, 0xffff0000, v{t}",
     "v_add_f32 v{q}, 0x3727c5ac, v{q}",
     "v_cvt_pk_bf16_f32 v{t}, v{q}, v{q}",
     "v_lshlrev_b32 v{q}, 16, v{t}",
     "v_sqrt_f32 v{q}, v{q}",
     "NOP",
     "v_cvt_pk_bf16_f32 v{t}, v{q}, v{q}",
     "v_lshlrev_b32 v{q}, 16, v{t}",
     "v_rcp_f32 v{q}, v{q}",
     "NOP",
     "v_mul_f32 v{m}, v{m}, v{q}",
     "v_sub_f32 v{m}, 0, v{m}"]
    for s in seq:
        if s == "NOP": e("s_nop 0"); continue
        for (m, q, t) in trips: e(s.format(m=m, q=q, t=t))
spin_id = [0]
deferred = []
def spin(vaddr, off, vtmp, sneed, preread=False):
    global out
    k = spin_id[0]; spin_id[0] += 1
    save = None
    if preread:
        e(f"v_cmp_le_u32 vcc, {sneed}, v{vtmp}")
        e("s_cmp_eq_u64 vcc, exec")
        e(f"s_cbranch_scc0 SP_{k}")
        lbl(f"SP_ok{k}")
        save = out; out = []
    lbl(f"SP_{k}")
    e(f"ds_read_b32 v{vtmp}, v{vaddr} offset:{off}")
    e("s_waitcnt lgkmcnt(0)")
    e(f"v_cmp_le_u32 vcc, {sneed}, v{vtmp}")
    if SAFE:
        e("s_add_u32 s68, s68, 1")
        e("s_bitcmp1_b32 s68, 18")
        e(f"s_cbranch_scc1 SP_ok{k}")
    e("s_cmp_eq_u64 vcc, exec")
    e(f"s_cbranch_scc0 SP_{k}")
    if preread:
        e(f"s_branch SP_ok{k}")
        deferred.extend(out); out = save
    else:
        lbl(f"SP_ok{k}")

e("s_cmp_ge_u32 s2, 255")
e("s_cbranch_scc1 L_end")
if STAMP in (2, 3):
    e("s_mov_b32 s69, 0"); e("v_mov_b32 v167, 0"); e("s_memrealtime s[72:73]"); st2(); e("v_writelane_b32 v167, s72, 62")
DIAG = opt("diag", 0)
if DIAG: e("s_memrealtime s[86:87]")
e("s_load_dwordx4 s[4:7], s[0:1], 0")
e("s_load_dwordx4 s[8:11], s[0:1], 16")
e("s_load_dwordx2 s[12:13], s[0:1], 32")
if STAMP: e(f"s_load_dwordx2 s[14:15], s[0:1], {48 if STAMP == 2 else 40}")
if P0PRIO: e(f"s_setprio {P0PRIO}")
e("v_readfirstlane_b32 s36, v0")
e("v_and_b32 v0, 63, v0")
e("s_and_b32 s3, s2, 7")
e("s_lshr_b32 s40, s2, 3")
e("s_lshl_b32 s41, s3, 1")
e("s_add_u32 s41, s41, s40")
e("s_sub_u32 s41, s41, 30")
e("s_mul_i32 s42, s3, 10")
e("s_cmp_ge_u32 s40, 30")
e("s_cselect_b32 s40, s41, s40")
e("s_cselect_b32 s42, 80, s42")
e("s_mul_i32 s41, s40, 43")
e("s_lshr_b32 s41, s41, 7")
e("s_mul_i32 s43, s41, 3")
e("s_sub_u32 s38, s40, s43")
e("s_add_u32 s37, s42, s41")
if opt("map", 0) == 1:
    e("s_mul_i32 s37, s2, 171")
    e("s_lshr_b32 s37, s37, 9")
    e("s_mul_i32 s43, s37, 3")
    e("s_sub_u32 s38, s2, s43")
    e("s_mul_i32 s41, s37, 205")
    e("s_lshr_b32 s41, s41, 11")
    e("s_mul_i32 s41, s41, 10")
    e("s_sub_u32 s41, s37, s41")
e("s_mul_i32 s42, s41, 43")
e("s_lshr_b32 s42, s42, 7")
e("s_mul_i32 s43, s42, 3")
e("s_sub_u32 s24, s41, s43")
e("s_add_u32 s27, s38, s42")
e("s_sub_u32 s43, s27, 3")
e("s_cmp_ge_u32 s27, 3")
e("s_cselect_b32 s27, s43, s27")
if ROT == 0: e("s_mov_b32 s24, 0"); e("s_mov_b32 s27, 0")
if ROT == 2: e("s_mov_b32 s24, 0")
if ROT == 3:
    e("s_mov_b32 s24, 0")
    e("s_lshr_b32 s42, s41, 1")
    e("s_add_u32 s27, s38, s42")
    e("s_mul_i32 s43, s27, 43")
    e("s_lshr_b32 s43, s43, 7")
    e("s_mul_i32 s43, s43, 3")
    e("s_sub_u32 s27, s27, s43")
    e("s_and_b32 s39, s41, 1")
e("s_mul_i32 s24, s24, 384")
e("s_lshl_b32 s27, s27, 7")
e("s_add_u32 s64, s27, 128")
e("s_cmp_eq_u32 s64, 384")
e("s_cselect_b32 s64, 0, s64")
e(f"s_mul_i32 s40, s37, {96*1152}")
e("s_mul_i32 s41, s38, 384")
e("s_lshr_b32 s36, s36, 6")
if ROLEPERM:
    e("s_xor_b32 s42, s36, 4")
    e("s_cmp_lt_u32 s36, 8")
    e("s_cselect_b32 s36, s42, s36")
e("v_and_b32 v2, 7, v0")
e("v_lshrrev_b32 v3, 3, v0")
e("v_lshlrev_b32 v4, 4, v2")
e("v_mul_u32_u24 v8, 1152, v3")
e("v_add_u32 v5, v8, v4")
e("v_add_u32 v6, 9216, v5")
e("v_add_u32 v7, 18432, v5")
e("v_and_b32 v9, 16, v0")
e("v_lshlrev_b32 v9, 1, v9")
e("v_xor_b32 v8, v5, v9")
e("v_xor_b32 v9, 64, v8")
e("v_lshlrev_b32 v10, 2, v0")
e("v_mov_b32 v11, 0")
e(f"v_add_u32 v10, {FLG - 128}, v10")
e("ds_write_b32 v10, v11")
e("v_lshlrev_b32 v1, 4, v0")
e("s_lshr_b32 s47, s36, 3")
e("s_and_b32 s46, s36, 3")
e(f"s_mul_i32 s42, s46, {24*1152}")
e("s_add_u32 s44, s40, s42")
e("s_cmp_eq_u32 s47, 1")
e("s_cselect_b32 s54, s64, s27")
e("s_add_u32 s54, s54, s24")
e(f"s_mul_i32 s42, s46, {16*1152}")
e("s_add_u32 s45, s41, s42")
e("s_lshl_b32 s49, s46, 11")
e(f"s_mul_i32 s42, s47, {WS}")
e("s_add_u32 s49, s49, s42")
e(f"s_add_u32 s49, s49, {WOFF}")
e("s_mov_b32 s68, 0")
e("s_mov_b32 s66, 0xffff0000")

XR = 20; GP = 44; GF = 64; SA = 104; TP = 128; ON = 144; EX = 146
vm = []
def gload(i):
    e(f"buffer_load_dwordx4 v[{GP+4*i}:{GP+4*i+3}], v4, s[20:23], s{54+i} offen"); vm.append(("g", i))
def xload(i):
    e(f"s_add_u32 s67, s44, s{54+i}")
    for rg in range(3):
        r = XR + (i%2)*12 + rg*4
        e(f"buffer_load_dwordx4 v[{r}:{r+3}], v{5+rg}, s[16:19], s67 offen {XFLAG}"); vm.append(("x", i))
def wdma(i):
    so = (i % 2)*PS
    e(f"s_mul_i32 s43, s{54+i}, 576")
    e("s_add_u32 s43, s43, s45")
    e("s_add_u32 s42, s43, 9216")
    for gg in range(2):
        for c in range(3):
            e(f"s_add_u32 m0, s49, {so + c*8192 + gg*1024 - c*128}")
            e("s_nop 0")
            e(f"buffer_load_dwordx4 v{8+gg}, s[28:31], s{43-gg} offen offset:{c*128} {WFLAG} lds"); vm.append(("w", i))
def wait_min(tags):
    last = max(k for k, t in enumerate(vm) if t in tags)
    n = len([t for t in vm[last+1:] if t[1] != 4]) if tags[0][1] != 4 else len(vm)-1-last
    e(f"s_waitcnt vmcnt({min(n,63)})")
def kappa_bases():
    e("s_add_u32 s65, s64, 128")
    e("s_cmp_eq_u32 s65, 384")
    e("s_cselect_b32 s65, 0, s65")
    if ROT == 3:
        e("s_mul_i32 s42, s39, 384")
        e("s_add_u32 s25, s42, 384")
        e("s_sub_u32 s26, 768, s42")
        return
    for k in (25, 26):
        e(f"s_add_u32 s{k}, s{k-1}, 384")
        e(f"s_cmp_eq_u32 s{k}, 1152")
        e(f"s_cselect_b32 s{k}, 0, s{k}")
Bs = [24, 25, 26]; Rs = [27, 64, 65]

e("s_waitcnt lgkmcnt(0)")
srd(16, 4, 8192*1152)
srd(20, 6, 1152)
e("s_cmp_eq_u32 s47, 0")
e("s_cbranch_scc1 P_l0")
EXC = opt("exc", 1)
def exloads():
    e("s_add_u32 s48, s37, 8160")
    e("s_mul_i32 s48, s48, 1152")
    e("s_mov_b32 s60, s16")
    e("s_mov_b32 s61, s17")
    e("s_add_u32 s62, s48, 1152")
    e(f"s_min_u32 s62, s62, {8192*1152}")
    e("s_mov_b32 s63, 0x00020000")
    e(f"buffer_load_dwordx4 v[{EX}:{EX+3}], v1, s[60:63], s48 offen")
    e(f"buffer_load_dwordx4 v[{EX+4}:{EX+7}], v1, s[60:63], s48 offen offset:1024")
    e(f"buffer_load_dwordx4 v[{EX+8}:{EX+11}], v1, s[20:23], 0 offen")
    e(f"buffer_load_dwordx4 v[{EX+12}:{EX+15}], v1, s[20:23], 0 offen offset:1024")
if not EXC:
    e("s_cmp_lg_u32 s36, 8")
    e("s_cbranch_scc1 P_l00")
    exloads()
    e("s_barrier")
    e("s_branch P_extra")
lbl("P_l00")
e("s_barrier")
lbl("P_l0")
srd(28, 10, 576*1152)
e("s_cmp_lt_u32 s36, 4")
e("s_cbranch_scc1 P_l2")
gload(0); xload(0)
e("s_cmp_eq_u32 s47, 0")
e("s_cbranch_scc1 P_l1")
e("s_branch P_l3")
lbl("P_l2")
if EXC:
    e("s_cmp_lg_u32 s36, 3")
    e("s_cbranch_scc1 P_l2b")
    exloads()
    lbl("P_l2b")
e("s_cmp_ge_u32 s36, 2")
e("s_cbranch_scc1 P_l3")
e("s_cmp_eq_u32 s36, 1")
e("s_cselect_b32 s60, s8, s6")
e("s_cselect_b32 s61, s9, s7")
e("s_and_b32 s61, s61, 0xffff")
e("s_mov_b32 s62, 1152")
e("s_mov_b32 s63, 0x00020000")
e(f"s_mul_i32 s48, s36, {AUXP}")
e(f"s_add_u32 m0, s48, {AUX}")
e("s_nop 0")
e("buffer_load_dwordx4 v1, s[60:63], 0 offen lds")
e("buffer_load_dwordx4 v1, s[60:63], 0 offen offset:1024 lds")
lbl("P_l3")
wdma(0)
e("s_cmp_lt_u32 s36, 4")
e("s_cbranch_scc0 P_l1")
e("s_barrier")
e("s_branch L_cons")

lbl("P_l1")
kappa_bases()
for i in range(1, 5):
    t0, t1 = 2*i, min(2*i+1, 8)
    e(f"s_add_u32 s42, s{Bs[t0//3]}, s{Rs[t0%3]}")
    e(f"s_add_u32 s43, s{Bs[t1//3]}, s{Rs[t1%3]}")
    e("s_cmp_eq_u32 s47, 1")
    e(f"s_cselect_b32 s{54+i}, s43, s42")
if X1MODE == 2:
    e("s_cbranch_scc0 P_nx1")
    n0 = len(vm); xload(1); del vm[n0:]
    lbl("P_nx1")
srd(32, 12, 8192*1152)
e("v_lshrrev_b32 v10, 2, v3")
e("v_sub_u32 v10, 0, v10")
e("v_xor_b32 v10, v10, v2")
e("v_and_b32 v10, 3, v10")
e("v_lshlrev_b32 v10, 4, v10")
e("v_lshl_add_u32 v10, v3, 6, v10")
e("v_lshrrev_b32 v11, 2, v2")
e(f"v_mul_u32_u24 v11, {XH}, v11")
e("s_and_b32 s43, s46, 1")
e("s_lshl_b32 s43, s43, 5")
e("v_xor_b32 v10, s43, v10")
e("s_mul_i32 s42, s46, 1536")
e(f"s_mul_i32 s43, s47, {XS}")
e("s_add_u32 s42, s42, s43")
e("v_xor_b32 v12, 32, v10")
e("v_add3_u32 v10, v10, v11, s42")
e("v_add3_u32 v11, v12, v11, s42")
e(f"v_add_u32 v12, {PS}, v10")
e(f"v_add_u32 v13, {PS}, v11")
e("s_lshl_b32 s42, s47, 4")
e("s_lshl_b32 s43, s46, 2")
e("s_add_u32 s42, s42, s43")
e(f"s_add_u32 s42, s42, {FLG}")
e("v_mov_b32 v16, s42")
e("v_and_b32 v17, 3, v0")
e("v_lshlrev_b32 v17, 2, v17")
e(f"v_add_u32 v17, {FLG}, v17")
M1 = STATS in ("mfma", "mfma1"); M2 = STATS in ("mfma", "mfma2")
for i in range(0, 24, 2): e(f"v_mov_b64 v[{SA+i}:{SA+i+1}], 0")
e(f"v_mov_b32 v{ON}, 0x3f803f80"); e(f"v_mov_b32 v{ON+1}, 0x3f803f80")
def exstats():
    src, dst = EX+16, EX+18
    for mod in ["quad_perm:[1,0,3,2]", "quad_perm:[2,3,0,1]", "row_half_mirror", "row_mirror"]:
        e("s_nop 1")
        e(f"v_add_f32_dpp v{dst}, v{src}, v{src} {mod} row_mask:0xf bank_mask:0xf")
        e(f"v_add_f32_dpp v{dst+1}, v{src+1}, v{src+1} {mod} row_mask:0xf bank_mask:0xf")
        src, dst = dst, src
    e("s_nop 1")
    for r, base in ((src, 76), (src+1, 80)):
        for k in range(4): e(f"v_readlane_b32 s{base+k}, v{r}, {16*k}")
    e("s_nop 3")
    for r, base in ((src, 76), (src+1, 80)):
        e(f"v_mov_b32 v{r}, s{base}")
        for k in range(1, 4): e(f"v_add_f32 v{r}, s{base+k}, v{r}")
    finalize_stats([(src, src+1, TP)])
    e(f"v_mov_b32 v14, {STATT + 98*8}")
    e(f"ds_write_b64 v14, v[{src}:{src+1}]")
if not EXC:
    e("s_cmp_lg_u32 s36, 8")
    e("s_cbranch_scc1 P_noex")
    exstats()
lbl("P_noex")

def gunpack(i):
    for k in range(4):
        e(f"v_lshlrev_b32 v{GF+8*i+2*k}, 16, v{GP+4*i+k}")
        e(f"v_and_b32 v{GF+8*i+2*k+1}, s66, v{GP+4*i+k}")
def convert(i):
    gf = GF + 8*i
    for rg in range(3):
        regs = [XR + (i%2)*12 + rg*4 + k for k in range(4)]
        S1 = SA + rg*8; S2 = S1 + 4
        tb = TP + (rg % 2)*8
        mm = []
        for h in range(2):
            x = regs[2*h]
            if M1: mm.append(f"v_mfma_f32_4x4x4_16b_bf16 v[{S1}:{S1+3}], v[{ON}:{ON+1}], v[{x}:{x+1}], v[{S1}:{S1+3}]")
            if M2: mm.append(f"v_mfma_f32_4x4x4_16b_bf16 v[{S2}:{S2+3}], v[{x}:{x+1}], v[{x}:{x+1}], v[{S2}:{S2+3}]")
        for k in range(4):
            if mm and (len(mm) == 4 or k % 2 == 0 or (M1 and M2)): e(mm.pop(0))
            e(f"v_lshlrev_b32 v{tb+2*k}, 16, v{regs[k]}")
            e(f"v_and_b32 v{tb+2*k+1}, s66, v{regs[k]}")
        assert not mm
        for k in range(4):
            lo, hi = tb+2*k, tb+2*k+1
            if not M1:
                e(f"v_add_f32 v{S1}, v{S1}, v{lo}")
                e(f"v_add_f32 v{S1+1}, v{S1+1}, v{hi}")
            if not M2:
                e(f"v_fmac_f32 v{S2}, v{lo}, v{lo}")
                e(f"v_fmac_f32 v{S2+1}, v{hi}, v{hi}")
        for k in range(4):
            lo, hi = tb+2*k, tb+2*k+1
            e(f"v_mul_f32 v{lo}, v{lo}, v{gf+2*k}")
            e(f"v_mul_f32 v{hi}, v{hi}, v{gf+2*k+1}")
        for k in range(4):
            e(f"v_cvt_pk_bf16_f32 v{regs[k]}, v{tb+2*k}, v{tb+2*k+1}")
        if opt("w64", 0):
            e(f"ds_write_b64 v{10+2*(i%2)+(rg&1)}, v[{regs[0]}:{regs[1]}] offset:{rg*512}")
            e(f"ds_write_b64 v{10+2*(i%2)+(rg&1)}, v[{regs[2]}:{regs[3]}] offset:{rg*512+8}")
        else:
            e(f"ds_write_b128 v{10+2*(i%2)+(rg&1)}, v[{regs[0]}:{regs[3]}] offset:{rg*512}")
def capture(fn, *args):
    global out
    save = out; out = []; n0 = len(vm)
    fn(*args)
    lines = out; out = save
    tags = vm[n0:]; del vm[n0:]
    groups = []; cur = []
    for l in lines:
        cur.append(l)
        if "buffer_load" in l: groups.append((cur, tags[len(groups)])); cur = []
    assert not cur
    return groups
def convert_with(i, groups):
    global out
    save = out; out = []
    convert(i)
    lines = out; out = save
    if opt("wend", 0):
        lines = [l for l in lines if "ds_write" not in l] + (["    s_waitcnt vmcnt(%d)" % (3 if i in (1, 2) else 0)] if opt("wend", 0) == 2 and i >= 1 else []) + [l for l in lines if "ds_write" in l]
    if opt("novalu", 0) and i >= 1: lines = [l for l in lines if "ds_write" in l] + ["    s_nop 0"]*40
    if opt("nowr", 0) and i >= 1: lines = [l for l in lines if "ds_write" not in l]
    if opt("nodma", 0) and i >= 2:
        groups = [([l.replace("buffer_load_dwordx4 v8", "buffer_load_dwordx4 v[148:151], v8").replace("buffer_load_dwordx4 v9", "buffer_load_dwordx4 v[148:151], v9").replace(" lds", "") for l in g[0]], g[1]) if g is not None else None for g in groups]
    if opt("novm", 0) and i >= 2:
        groups = [([l for l in g[0] if "buffer_load" not in l], g[1]) if g is not None else None for g in groups]
    if not groups:
        out.extend(lines); return
    step = max(1, int((len(lines) - 8) * SPAN) // len(groups))
    gi = 0
    for k, l in enumerate(lines):
        if gi < len(groups) and k == gi*step:
            if groups[gi] is not None:
                out.extend(groups[gi][0]); vm.append(groups[gi][1])
            gi += 1
        out.append(l)
    assert gi == len(groups)
st2()
for i in range(5):
    if i == 4:
        e("s_cmp_eq_u32 s47, 1")
        e("s_cbranch_scc1 P_odd_done")
    if i >= 2:
        e(f"s_add_u32 s43, s47, {2*(i-2)+1}")
        spin(17, F_DONE, 18, "s43")
    if i == 0:
        e("s_cmp_eq_u32 s47, 0")
        e("s_cbranch_scc0 P_w0")
        e("s_barrier")
        e("s_waitcnt vmcnt(0)")
        lbl("P_w0")
        e(f"s_waitcnt vmcnt({6 + (3 if X1MODE == 2 else 0)})")
    else:
        wait_min([("x", i)])
    st2()
    groups = []
    if i == 0:
        gunpack(0)
        if X1MODE == 0: groups += [None]*3 + capture(xload, 1)
    elif i == 1:
        groups += capture(xload, 2)
    else:
        groups += capture(wdma, i)
        if i == 2:
            xg = capture(xload, 3)
            if opt("mixed", 1): groups = groups[0:2] + xg[0:1] + groups[2:4] + xg[1:2] + groups[4:6] + xg[2:3]
            else: groups += xg
    convert_with(i, groups)
    if i == 0 and X1MODE == 2: e("s_waitcnt vmcnt(3)")
    else: wait_min([("w", i)])
    e(f"v_mov_b32 v19, {i+1}")
    e("ds_write_b32 v16, v19")
    st2()
    if i == 0:
        if P0PRIO != PPRIO: e(f"s_setprio {PPRIO}")
        if X1MODE == 1: xload(1)
        if X1MODE == 2:
            e("s_cmp_eq_u32 s47, 1"); e("s_cbranch_scc1 P_x1done")
            xload(1)
            lbl("P_x1done")
        wdma(1)
        e(f"v_mov_b32 v19, {FLG+F_AUX}")
        spin(19, 0, 18, 1)
        e(f"v_add_u32 v19, {AUX}, v4")
        for k in range(1, 5):
            e(f"v_add_u32 v18, s{54+k}, v19")
            e(f"ds_read_b128 v[{GP+4*k}:{GP+4*k+3}], v18")
        e("s_waitcnt lgkmcnt(0)")
        for k in range(1, 5): gunpack(k)
    if i == 3:
        e("s_cmp_eq_u32 s47, 1"); e("s_cbranch_scc1 P_skipx4")
        xload(4)
        lbl("P_skipx4")
R = TP+8
def reduce8():
    e("s_nop 7")
    if M2:
        e("v_and_b32 v14, 3, v0")
        for k in range(1, 4): e(f"v_cmp_eq_u32 s[{74+2*k}:{75+2*k}], {k}, v14")
    for rg in range(3):
        S1 = SA + rg*8; S2 = S1 + 4
        if M1: e(f"v_mov_b32 v{TP+2*rg}, v{S1}")
        else: e(f"v_add_f32 v{TP+2*rg}, v{S1}, v{S1+1}")
        if M2:
            e(f"v_cndmask_b32 v{TP+2*rg+1}, v{S2}, v{S2+1}, s[76:77]")
            e(f"v_cndmask_b32 v{TP+2*rg+1}, v{TP+2*rg+1}, v{S2+2}, s[78:79]")
            e(f"v_cndmask_b32 v{TP+2*rg+1}, v{TP+2*rg+1}, v{S2+3}, s[80:81]")
        else: e(f"v_add_f32 v{TP+2*rg+1}, v{S2}, v{S2+1}")
    src, dst = TP, TP+8
    for mod in ["quad_perm:[1,0,3,2]", "quad_perm:[2,3,0,1]", "row_half_mirror"]:
        e("s_nop 1")
        for k in range(6): e(f"v_add_f32_dpp v{dst+k}, v{src+k}, v{src+k} {mod} row_mask:0xf bank_mask:0xf")
        src, dst = dst, src
    e("s_mul_i32 s42, s46, 192")
    e(f"s_add_u32 s42, s42, {STATT}")
    e("v_lshlrev_b32 v14, 3, v3")
    e("v_add_u32 v14, s42, v14")
    e("s_lshl_b32 s42, s46, 2")
    e(f"s_add_u32 s42, s42, {FLG+F_STATB}")
    e("v_mov_b32 v15, s42")
reduce8()
spin(15, 0, 18, 1)
for rg in range(3): e(f"ds_read_b64 v[{TP+2*rg}:{TP+2*rg+1}], v14 offset:{PART-STATT + rg*64}")
e("s_waitcnt lgkmcnt(0)")
for k in range(6): e(f"v_add_f32 v{R+k}, v{R+k}, v{TP+k}")
finalize_stats([(R+2*rg, R+2*rg+1, TP+rg) for rg in range(3)])
for rg in range(3): e(f"ds_write_b64 v14, v[{R+2*rg}:{R+2*rg+1}] offset:{rg*64}")
e("v_mov_b32 v19, 5")
e("ds_write_b32 v16, v19 offset:16")
st2()
e("s_branch L_store")
lbl("P_odd_done")
reduce8()
for rg in range(3): e(f"ds_write_b64 v14, v[{R+2*rg}:{R+2*rg+1}] offset:{PART-STATT + rg*64}")
e("v_mov_b32 v19, 1")
e("ds_write_b32 v15, v19")
st2()

lbl("L_store")
e("s_sub_u32 s46, s36, 4")
e("s_cmp_eq_u32 s46, 7")
e("s_cbranch_scc0 L_st1")
e("s_barrier")
e("s_branch L_fin")
lbl("L_st1")
e("s_add_u32 s47, s46, 1")
e("s_cmp_eq_u32 s46, 6")
e("s_cbranch_scc1 L_xrow")
for jj in range(3):
    e(f"v_add_u32 v2, {64*jj}, v0")
    e("v_mul_u32_u24 v3, 2731, v2")
    e("v_lshrrev_b32 v3, 16, v3")
    e("v_mul_u32_u24 v4, 24, v3")
    e("v_sub_u32 v4, v2, v4")
    e("v_lshlrev_b32 v4, 4, v4")
    e(f"v_mul_u32_u24 v5, {OUTP}, v3")
    e(f"v_add_u32 v{8+jj}, v5, v4")
    e("v_mul_u32_u24 v5, 1152, v3")
    e(f"v_add_u32 v{12+jj}, v5, v4")
e(f"s_mul_i32 s48, s46, {16*OUTP}")
e(f"s_add_u32 s48, s48, {OUTT}")
for jj in range(3): e(f"v_add_u32 v{8+jj}, s48, v{8+jj}")
e(f"s_mul_i32 s48, s46, {16*1152}")
e("s_add_u32 s48, s48, s40")
e("s_add_u32 s48, s48, s41")
e("s_add_u32 s49, s48, 9216")
e("s_barrier")
st2()
spin(17, F_OUT, 18, "s47")
st2()
for jj in range(6): e(f"ds_read_b128 v[{20+4*jj}:{23+4*jj}], v{8+jj%3} offset:{(jj//3)*8*OUTP}")
for jj in range(6):
    e(f"s_waitcnt lgkmcnt({5-jj})")
    e(f"buffer_store_dwordx4 v[{20+4*jj}:{23+4*jj}], v{12+jj%3}, s[32:35], s{48+jj//3} offen {OFLAG}")
e("s_branch L_fin")
lbl("L_xrow")
e(f"v_add_u32 v6, {OUTT + 98*OUTP}, v1")
e("s_add_u32 s48, s37, 8160")
e("s_mul_i32 s48, s48, 1152")
e("s_add_u32 s48, s48, s41")
e("s_barrier")
st2()
spin(17, F_OUT, 18, "s47")
st2()
e("s_mov_b64 exec, 0xffffff")
e("ds_read_b128 v[44:47], v6")
e("s_waitcnt lgkmcnt(0)")
e(f"buffer_store_dwordx4 v[44:47], v1, s[32:35], s48 offen {OFLAG}")
e("s_branch L_fin")

def exconv():
    e(f"v_add_u32 v14, {AUX + 2*AUXP}, v1")
    e(f"v_mov_b32 v{EX+16}, 0"); e(f"v_mov_b32 v{EX+17}, 0")
    e(f"s_waitcnt vmcnt({6 if EXC else 0})")
    for i in range(8):
        x = EX+i; g = EX+8+i; a, b, c, d = TP, TP+1, TP+2, TP+3
        e(f"v_lshlrev_b32 v{a}, 16, v{x}")
        e(f"v_and_b32 v{b}, s66, v{x}")
        e(f"v_lshlrev_b32 v{c}, 16, v{g}")
        e(f"v_and_b32 v{d}, s66, v{g}")
        e(f"v_add_f32 v{EX+16}, v{EX+16}, v{a}")
        e(f"v_fmac_f32 v{EX+17}, v{a}, v{a}")
        e(f"v_add_f32 v{EX+16}, v{EX+16}, v{b}")
        e(f"v_fmac_f32 v{EX+17}, v{b}, v{b}")
        e(f"v_mul_f32 v{a}, v{a}, v{c}")
        e(f"v_mul_f32 v{b}, v{b}, v{d}")
        e(f"v_cvt_pk_bf16_f32 v{x}, v{a}, v{b}")
    e(f"ds_write_b128 v14, v[{EX}:{EX+3}]")
    e(f"ds_write_b128 v14, v[{EX+4}:{EX+7}] offset:1024")
    e("v_mov_b32 v19, 1")
    e(f"v_mov_b32 v14, {FLG + F_AUX + 16}")
    e("ds_write_b32 v14, v19")
if not EXC:
    lbl("P_extra")
    exconv()
    e("s_branch P_l0")
ACC = 20; XF = 104; WF = 132
lbl("L_cons")
e(f"s_setprio {opt('c0prio', 0)}")
if EXC:
    e("s_cmp_lg_u32 s36, 3")
    e("s_cbranch_scc1 C_noex")
    exconv()
    exstats()
    lbl("C_noex")
kappa_bases()
for t in range(1, 9): e(f"s_add_u32 s{76+t}, s{Bs[t//3]}, s{Rs[t%3]}")
e("s_mov_b32 s85, 0")
e("v_and_b32 v6, 3, v0")
e("v_lshlrev_b32 v6, 2, v6")
e(f"v_add_u32 v6, {FLG}, v6")
e("s_lshl_b32 s48, s36, 2")
e(f"s_add_u32 s48, s48, {FLG}")
e("v_mov_b32 v7, s48")
e("v_and_b32 v1, 15, v0")
e("v_lshrrev_b32 v2, 4, v0")
e("v_lshrrev_b32 v4, 2, v1")
e("v_sub_u32 v4, 0, v4")
e("v_xor_b32 v4, v4, v2")
e("v_and_b32 v4, 3, v4")
e("v_lshlrev_b32 v4, 4, v4")
e("v_lshl_add_u32 v13, v1, 6, v4")
e("v_bfe_u32 v4, v0, 2, 2")
e("v_lshl_add_u32 v5, v2, 3, v4")
e("v_lshlrev_b32 v5, 7, v5")
e("v_and_b32 v8, 3, v0")
e("v_lshl_add_u32 v5, v8, 3, v5")
e("v_lshrrev_b32 v4, 1, v4")
e("v_and_b32 v8, 1, v2")
e("v_lshl_or_b32 v4, v8, 1, v4")
e("v_xor_b32 v4, s36, v4")
e("v_lshl_add_u32 v5, v4, 5, v5")
e(f"v_add_u32 v14, {WOFF}, v5")
e("v_min_u32 v4, 2, v1")
e(f"v_mul_u32_u24 v4, {AUXP}, v4")
e("v_lshl_add_u32 v4, v2, 4, v4")
e(f"v_add_u32 v12, {AUX}, v4")
e("v_add_u32 v15, s54, v12")
e("v_min_u32 v9, 4, v0")
e("v_lshlrev_b32 v9, 2, v9")
e(f"v_add_u32 v9, {FLG+F_AUX}, v9")
for i in range(0, 84, 2): e(f"v_mov_b64 v[{ACC+i}:{ACC+i+1}], 0")
e("v_mov_b32 v19, 0")
e("v_mov_b32 v8, 1")
e(f"s_mov_b32 s50, {PS}")
e("s_mov_b32 s53, 1")
e("s_mov_b32 s52, 1")
def xread(par, sp, T):
    x = XF + T*4
    if T < 6: return f"ds_read_b128 v[{x}:{x+3}], v13 offset:{par*XS + sp*XH + T*1024}"
    return f"ds_read_b128 v[{x}:{x+3}], v15 offset:{sp*64}"
def wreads(par, sp):
    r = []
    for t in range(3):
        w = WF + (sp*3+t)*4
        o = par*WS + t*8192 + sp*4096
        r.append(f"ds_read_b64_tr_b16 v[{w}:{w+1}], v14 offset:{o}")
        r.append(f"ds_read_b64_tr_b16 v[{w+2}:{w+3}], v14 offset:{o+512}")
    return r
def mf(sp, T, t):
    c = ACC + (T*3+t)*4; w = WF + (sp*3+t)*4; x = XF + T*4
    return f"v_mfma_f32_16x16x32_bf16 v[{c}:{c+3}], v[{w}:{w+3}], v[{x}:{x+3}], v[{c}:{c+3}]"
e("s_waitcnt vmcnt(0)")
e(f"ds_write_b32 v7, v8 offset:{F_AUX}")
e(f"s_setprio {CPRIO}")
spin(9, 0, 8, 1)
st2()
spin(6, 0, 8, 1)
st2()
if DIAG: e("s_memrealtime s[88:89]"); e("s_waitcnt lgkmcnt(0)")
def chunk_body(par):
    body = []
    w1 = wreads(par, 1)
    for T in range(7):
        for t in range(3):
            body.append(("m", [("x", 0, min(6, T + (WGRAN-1 if T % WGRAN == 0 else 0)))] + [("w", 0, 2 if WGRAN > 1 else t)], mf(0, T, t)))
            k = T*3+t-3
            if 0 <= k < 6: body.append(("r", ("w", 1, k//2), w1[k]))
        body.append(("r", ("x", 1, T), xread(par, 1, T)))
    nx = 1-par
    w0 = wreads(nx, 0)
    book = [[("FR",), "s_mov_b32 m0, s52"], ["v_add_u32 v19, 1, v19", "s_movrels_b32 s51, s76"], ["s_add_u32 s52, s52, 1"], ["v_add_u32 v15, s51, v12"]]
    if par == 1:
        book += [["s_add_u32 s53, s53, 1"], ["v_add_u32 v13, s50, v13"], ["v_add_u32 v14, s50, v14"], ["s_sub_u32 s50, 0, s50"]]
    pend = []
    for T in range(7):
        if T == BARPOS:
            assert not book
            body.append(("bar", nx))
            pend = [("r", ("w", 0, k//2), w0[k]) for k in range(6)]
            pend = pend[0:2] + [("r", ("x", 0, 0), xread(nx, 0, 0))] + pend[2:6] + [("r", ("x", 0, TT), xread(nx, 0, TT)) for TT in range(1, BARPOS)]
        for t in range(3):
            body.append(("m", [("x", 1, min(6, T + (WGRAN-1 if T % WGRAN == 0 else 0)))] + [("w", 1, 2 if WGRAN > 1 else t)], mf(1, T, t)))
            if book:
                for it in book.pop(0):
                    body.append(("r", ("f",), f"ds_read_b32 v8, v6 offset:{nx*16}") if it == ("FR",) else ("x", it))
            if pend: body.append(pend.pop(0))
        if T >= BARPOS: pend.append(("r", ("x", 0, T), xread(nx, 0, T)))
    while pend: body.append(pend.pop(0))
    return body
bodyA = chunk_body(0); bodyB = chunk_body(1)
bi = [i for i, it in enumerate(bodyB) if it[0] == "bar"][0]
init_reads = [it for it in bodyB[bi:] if it[0] == "r"]
for it in init_reads: e(it[2])
lbl("C_loop")
seq = [it[1] for it in init_reads]
lastwait = None
def emit(body):
    global lastwait
    for it in body:
        if it[0] == "r":
            e(it[2]); seq.append(it[1])
        elif it[0] == "x":
            e(it[1])
        elif it[0] == "m":
            idx = max(max(i for i, tg in enumerate(seq) if tg == need) for need in it[1])
            n = len(seq) - 1 - idx
            if lastwait is None or idx > lastwait:
                e(f"s_waitcnt lgkmcnt({min(n,15)})"); lastwait = idx
            e(it[2])
        elif it[0] == "bar":
            e("s_waitcnt lgkmcnt(0)"); lastwait = len(seq)-1
            e(f"ds_write_b32 v7, v19 offset:{F_DONE}")
            st2()
            spin(6, it[1]*16, 8, "s53", preread=True)
            st2()
emit(bodyA)
e("s_cmp_eq_u32 s53, 5")
e("s_cbranch_scc1 C_epi")
emit(bodyB)
e("s_branch C_loop")
out.extend(deferred); deferred.clear()
lbl("C_epi")
if DIAG: e("s_memrealtime s[90:91]")
e("s_barrier")
e("s_waitcnt lgkmcnt(0)")
e(f"v_lshlrev_b32 v4, 3, v1")
e(f"v_add_u32 v4, {STATT}, v4")
ST = XF
for T in range(7): e(f"ds_read_b64 v[{ST+2*T}:{ST+2*T+1}], v4 offset:{T*128}")
e(f"v_mul_u32_u24 v5, {OUTP}, v1")
e("v_lshl_add_u32 v5, v2, 3, v5")
e("s_lshl_b32 s48, s36, 5")
e(f"s_add_u32 s48, s48, {OUTT}")
e("v_add_u32 v5, s48, v5")
C1 = XF+14; C2 = XF+26; TM = XF+38
for t in range(3):
    for r in range(4):
        a = ACC + (6*3+t)*4 + r
        e(f"v_mov_b32_dpp v{C1+t*4+r}, v{a} row_newbcast:0 row_mask:0xf bank_mask:0xf")
        e(f"v_mov_b32_dpp v{C2+t*4+r}, v{a} row_newbcast:1 row_mask:0xf bank_mask:0xf")
e("s_waitcnt lgkmcnt(0)")
n = 0
for T in range(7):
    st = ST+2*T
    for t in range(3):
        a = ACC + (T*3+t)*4
        tm = TM + (n % 3)*6; n += 1
        for h in range(2):
            e(f"v_pk_fma_f32 v[{tm+2*h}:{tm+2*h+1}], v[{C1+t*4+2*h}:{C1+t*4+2*h+1}], v[{st}:{st+1}], v[{C2+t*4+2*h}:{C2+t*4+2*h+1}] op_sel:[0,0,0] op_sel_hi:[1,0,1]")
        for h in range(2):
            e(f"v_pk_fma_f32 v[{tm+2*h}:{tm+2*h+1}], v[{a+2*h}:{a+2*h+1}], v[{st}:{st+1}], v[{tm+2*h}:{tm+2*h+1}] op_sel:[0,1,0] op_sel_hi:[1,1,1]")
        e(f"v_cvt_pk_bf16_f32 v{tm+4}, v{tm}, v{tm+1}")
        e(f"v_cvt_pk_bf16_f32 v{tm+5}, v{tm+2}, v{tm+3}")
        e(f"ds_write_b64 v5, v[{tm+4}:{tm+5}] offset:{T*16*OUTP + t*128}")
    e(f"v_mov_b32 v19, {T+1}")
    e(f"ds_write_b32 v7, v19 offset:{F_OUT}")
st2()
if DIAG in (2, 3):
    e("s_memrealtime s[92:93]"); e("s_waitcnt lgkmcnt(0)")
    if DIAG == 2: e("s_sub_u32 s94, s88, s86")
    else: e("s_sub_u32 s94, s90, s88")
    e("s_lshl_b32 s94, s94, 1")
    lbl("DG_a")
    e("s_memrealtime s[96:97]"); e("s_waitcnt lgkmcnt(0)")
    e("s_sub_u32 s95, s96, s92")
    e("s_cmp_lt_u32 s95, s94")
    e("s_cbranch_scc1 DG_a")
lbl("L_fin")
if DIAG == 1:
    e("s_waitcnt vmcnt(0)")
    e("s_memrealtime s[92:93]"); e("s_waitcnt lgkmcnt(0)")
    e("s_sub_u32 s94, s92, s86")
    lbl("DG_b")
    e("s_memrealtime s[96:97]"); e("s_waitcnt lgkmcnt(0)")
    e("s_sub_u32 s95, s96, s92")
    e("s_cmp_lt_u32 s95, s94")
    e("s_cbranch_scc1 DG_b")
if STAMP == 3:
    e("s_mov_b64 exec, -1")
    st2(); e("s_waitcnt vmcnt(0)"); st2()
    e("s_memrealtime s[74:75]")
    srd(56, 14, 256)
    e("v_readlane_b32 s72, v167, 62")
    e("s_waitcnt lgkmcnt(0)")
    e("s_cmp_lg_u32 s36, 9")
    e("s_cbranch_scc1 L_d2")
    e("s_sub_u32 s73, s74, s72")
    e("s_not_b32 s72, s72")
    e("v_mov_b32 v1, 0"); e("v_mov_b32 v2, s72"); e("v_mov_b32 v3, s74"); e("v_mov_b32 v4, s73")
    e("s_mov_b64 exec, 1")
    e("buffer_atomic_umax v2, v1, s[56:59], 0 offen")
    e("buffer_atomic_umax v3, v1, s[56:59], 0 offen offset:4")
    e("buffer_atomic_add v4, v1, s[56:59], 0 offen offset:8")
    e("s_branch L_end")
    lbl("L_d2")
    e("s_cmp_lg_u32 s2, 100")
    e("s_cbranch_scc1 L_end")
    e("s_cmp_lg_u32 s36, 0")
    e("s_cbranch_scc1 L_end")
    e("v_readlane_b32 s70, v167, 0")
    e("s_nop 3")
    e("v_subrev_u32 v167, s70, v167")
    e("v_lshlrev_b32 v1, 1, v0")
    e("v_add_u32 v1, 8, v1")
    e("s_mov_b32 exec_lo, 0x555554")
    e("s_mov_b32 exec_hi, 0")
    e("buffer_store_dword v167, v1, s[56:59], 0 offen")
if STAMP == 2:
    e("s_mov_b64 exec, -1")
    st2(); e("s_waitcnt vmcnt(0)"); st2()
    e("s_memrealtime s[72:73]"); e("s_waitcnt lgkmcnt(0)"); e("v_writelane_b32 v167, s72, 63")
    srd(56, 14, 1<<22)
    e("s_lshl_b32 s60, s2, 12")
    e("s_lshl_b32 s61, s36, 8")
    e("s_add_u32 s60, s60, s61")
    e("v_lshlrev_b32 v1, 2, v0")
    e("buffer_store_dword v167, v1, s[56:59], s60 offen")
lbl("L_end")

text = HDR + f"""; @launch grid=(256,1,1) block=({NW*64},1,1) lds={LDS_TOTAL}
.amdgcn_target "amdgcn-amd-amdhsa--gfx950"
.text
.globl {NAME}_kernel
.p2align 8
.type {NAME}_kernel,@function
{NAME}_kernel:
""" + "\n".join(out) + f"""
    s_endpgm
.section .rodata,"a"
.p2align 6
.amdhsa_kernel {NAME}_kernel
  .amdhsa_next_free_vgpr 168
  .amdhsa_next_free_sgpr 100
  .amdhsa_accum_offset 168
  .amdhsa_group_segment_fixed_size 0
  .amdhsa_kernarg_size 56
  .amdhsa_user_sgpr_count 2
  .amdhsa_user_sgpr_kernarg_segment_ptr 1
  .amdhsa_system_sgpr_workgroup_id_x 1
.end_amdhsa_kernel
"""
open(sys.argv[1], "w").write(text)
```

```python
import sys
NAME = "standalone__layernorm_linear__sampling"
opts = dict(a.split("=", 1) for a in sys.argv[2:] if "=" in a)
def opt(k, d): return type(d)(opts.get(k, d))
STAMP = opt("stamp", 0)
STATS = opt("stats", "plain")
XFLAG = opt("xflag", ""); WFLAG = opt("wflag", ""); OFLAG = opt("oflag", "nt")
BARPOS = opt("barpos", 3)
PPRIO = opt("pprio", 0); P0PRIO = opt("p0prio", 2); CPRIO = opt("cprio", 1)
ROT = opt("rot", 0); SAFE = opt("safe", 1); WGRAN = opt("wgran", 2)
SPAN = opt("span", 1.0); X1MODE = opt("x1mode", 1); ROLEPERM = opt("roleperm", 1)
NW = 12
out = []
def e(s): out.append("    " + s)
def lbl(s): out.append(s + ":")
HDR = open("cdna_kernels/%s.s.ref" % NAME).read().split("; Override launch")[0]

XH = 6208; XS = 12416; WS = 24576; WOFF = 2*XS; PS = 2*XS + 2*WS
AUX = 2*PS; AUXP = 2080
STATT = AUX + 3*AUXP
PART = STATT + 896
FLG = (PART + 768 + 127)//128*128
LDS_TOTAL = FLG + 128
OUTT = PS; OUTP = 400
F_DONE, F_STATB, F_AUX, F_OUT, F_CONV = 32, 48, 64, 80, 96
SER = opt("ser", 0)
B0 = opt("b0", 1)
CVPRIO = opt("cvprio", -1); CVPRIO = None if CVPRIO < 0 else CVPRIO

def st2(force=False):
    if STAMP not in (2, 3): return
    if opt("light", 0) and not force: return
    e("s_memtime s[70:71]")
    e("s_waitcnt lgkmcnt(0)")
    e("s_mov_b32 m0, s69"); e("s_nop 0"); e("v_writelane_b32 v167, s70, m0")
    e("s_add_u32 s69, s69, 1")
def srd(d, b, n):
    e(f"s_mov_b32 s{d}, s{b}")
    e(f"s_and_b32 s{d+1}, s{b+1}, 0xffff")
    e(f"s_mov_b32 s{d+2}, {n}")
    e(f"s_mov_b32 s{d+3}, 0x00020000")
def finalize_stats(trips):
    seq = [
     "v_mul_f32 v{m}, 0x3ae38e39, v{m}",
     "v_mul_f32 v{q}, 0x3ae38e39, v{q}",
     "v_fma_f32 v{q}, -v{m}, v{m}, v{q}",
     "v_max_f32 v{q}, 0, v{q}",
     "v_cvt_pk_bf16_f32 v{t}, v{m}, v{q}",
     "v_lshlrev_b32 v{m}, 16, v{t}",
     "v_and_b32 v{q}, 0xffff0000, v{t}",
     "v_add_f32 v{q}, 0x3727c5ac, v{q}",
     "v_cvt_pk_bf16_f32 v{t}, v{q}, v{q}",
     "v_lshlrev_b32 v{q}, 16, v{t}",
     "v_sqrt_f32 v{q}, v{q}",
     "NOP",
     "v_cvt_pk_bf16_f32 v{t}, v{q}, v{q}",
     "v_lshlrev_b32 v{q}, 16, v{t}",
     "v_rcp_f32 v{q}, v{q}",
     "NOP",
     "v_mul_f32 v{m}, v{m}, v{q}",
     "v_sub_f32 v{m}, 0, v{m}"]
    for s in seq:
        if s == "NOP": e("s_nop 0"); continue
        for (m, q, t) in trips: e(s.format(m=m, q=q, t=t))
spin_id = [0]
deferred = []
def spin(vaddr, off, vtmp, sneed, preread=False):
    global out
    k = spin_id[0]; spin_id[0] += 1
    save = None
    if preread:
        e(f"v_cmp_le_u32 vcc, {sneed}, v{vtmp}")
        e("s_cmp_eq_u64 vcc, exec")
        e(f"s_cbranch_scc0 SP_{k}")
        lbl(f"SP_ok{k}")
        save = out; out = []
    lbl(f"SP_{k}")
    if opt("slp", 0) and not preread: e(f"s_sleep {opt('slp', 0)}")
    e(f"ds_read_b32 v{vtmp}, v{vaddr} offset:{off}")
    e("s_waitcnt lgkmcnt(0)")
    e(f"v_cmp_le_u32 vcc, {sneed}, v{vtmp}")
    if SAFE:
        e("s_add_u32 s68, s68, 1")
        e("s_bitcmp1_b32 s68, 18")
        e(f"s_cbranch_scc1 SP_ok{k}")
    e("s_cmp_eq_u64 vcc, exec")
    e(f"s_cbranch_scc0 SP_{k}")
    if preread:
        e(f"s_branch SP_ok{k}")
        deferred.extend(out); out = save
    else:
        lbl(f"SP_ok{k}")

e("s_cmp_ge_u32 s2, 255")
e("s_cbranch_scc1 L_end")
if STAMP in (2, 3):
    e("s_mov_b32 s69, 0"); e("v_mov_b32 v167, 0"); e("s_memrealtime s[72:73]"); st2(True); e("v_writelane_b32 v167, s72, 62")
DIAG = opt("diag", 0)
if DIAG: e("s_memrealtime s[86:87]")
e("s_load_dwordx4 s[4:7], s[0:1], 0")
e("s_load_dwordx4 s[8:11], s[0:1], 16")
e("s_load_dwordx2 s[12:13], s[0:1], 32")
if STAMP: e(f"s_load_dwordx2 s[14:15], s[0:1], {48 if STAMP == 2 else 40}")
e("v_readfirstlane_b32 s36, v0")
e("v_and_b32 v0, 63, v0")
e("s_and_b32 s3, s2, 7")
e("s_lshr_b32 s40, s2, 3")
e("s_lshl_b32 s41, s3, 1")
e("s_add_u32 s41, s41, s40")
e("s_sub_u32 s41, s41, 30")
e("s_mul_i32 s42, s3, 10")
e("s_cmp_ge_u32 s40, 30")
e("s_cselect_b32 s40, s41, s40")
e("s_cselect_b32 s42, 80, s42")
e("s_mul_i32 s41, s40, 43")
e("s_lshr_b32 s41, s41, 7")
e("s_mul_i32 s43, s41, 3")
e("s_sub_u32 s38, s40, s43")
e("s_add_u32 s37, s42, s41")
if opt("map", 0) == 1:
    e("s_mul_i32 s37, s2, 171")
    e("s_lshr_b32 s37, s37, 9")
    e("s_mul_i32 s43, s37, 3")
    e("s_sub_u32 s38, s2, s43")
    e("s_mul_i32 s41, s37, 205")
    e("s_lshr_b32 s41, s41, 11")
    e("s_mul_i32 s41, s41, 10")
    e("s_sub_u32 s41, s37, s41")
e("s_mul_i32 s42, s41, 43")
e("s_lshr_b32 s42, s42, 7")
e("s_mul_i32 s43, s42, 3")
e("s_sub_u32 s24, s41, s43")
e("s_add_u32 s27, s38, s42")
e("s_sub_u32 s43, s27, 3")
e("s_cmp_ge_u32 s27, 3")
e("s_cselect_b32 s27, s43, s27")
if ROT == 0: e("s_mov_b32 s24, 0"); e("s_mov_b32 s27, 0")
if ROT == 2: e("s_mov_b32 s24, 0")
if ROT == 3:
    e("s_mov_b32 s24, 0")
    e("s_lshr_b32 s42, s41, 1")
    e("s_add_u32 s27, s38, s42")
    e("s_mul_i32 s43, s27, 43")
    e("s_lshr_b32 s43, s43, 7")
    e("s_mul_i32 s43, s43, 3")
    e("s_sub_u32 s27, s27, s43")
    e("s_and_b32 s39, s41, 1")
e("s_mul_i32 s24, s24, 384")
e("s_lshl_b32 s27, s27, 7")
e("s_add_u32 s64, s27, 128")
e("s_cmp_eq_u32 s64, 384")
e("s_cselect_b32 s64, 0, s64")
e(f"s_mul_i32 s40, s37, {96*1152}")
e("s_mul_i32 s41, s38, 384")
e("s_lshr_b32 s36, s36, 6")
if ROLEPERM:
    e("s_xor_b32 s42, s36, 4")
    e("s_cmp_lt_u32 s36, 8")
    e("s_cselect_b32 s36, s42, s36")
LADDER = opt("ladder", "3210")
if LADDER != "0":
    e(f"s_setprio {LADDER[0]}")
elif P0PRIO:
    e("s_cmp_ge_u32 s36, 8")
    e("s_cbranch_scc1 L_prio")
    e(f"s_setprio {P0PRIO}")
    lbl("L_prio")
e("v_and_b32 v2, 7, v0")
e("v_lshrrev_b32 v3, 3, v0")
e("v_lshlrev_b32 v4, 4, v2")
e("v_mul_u32_u24 v8, 1152, v3")
e("v_add_u32 v5, v8, v4")
e("v_add_u32 v6, 9216, v5")
e("v_add_u32 v7, 18432, v5")
e("v_and_b32 v9, 16, v0")
e("v_lshlrev_b32 v9, 1, v9")
e("v_xor_b32 v8, v5, v9")
e("v_xor_b32 v9, 64, v8")
e("v_lshlrev_b32 v10, 2, v0")
e("v_mov_b32 v11, 0")
e(f"v_add_u32 v10, {FLG - 128}, v10")
e("ds_write_b32 v10, v11")
e("v_lshlrev_b32 v1, 4, v0")
e("s_lshr_b32 s47, s36, 3")
e("s_and_b32 s46, s36, 3")
e(f"s_mul_i32 s42, s46, {24*1152}")
e("s_add_u32 s44, s40, s42")
e("s_cmp_eq_u32 s47, 1")
e("s_cselect_b32 s54, s64, s27")
e("s_add_u32 s54, s54, s24")
e(f"s_mul_i32 s42, s46, {16*1152}")
e("s_add_u32 s45, s41, s42")
e("s_lshl_b32 s49, s46, 11")
e(f"s_mul_i32 s42, s47, {WS}")
e("s_add_u32 s49, s49, s42")
e(f"s_add_u32 s49, s49, {WOFF}")
e("s_mov_b32 s68, 0")
e("s_mov_b32 s66, 0xffff0000")

XR = 20; GP = 44; GF = 64; SA = 104; TP = 128; ON = 144; EX = 146
vm = []
def gload(i):
    e(f"buffer_load_dwordx4 v[{GP+4*i}:{GP+4*i+3}], v4, s[20:23], s{54+i} offen"); vm.append(("g", i))
def xload(i):
    e(f"s_add_u32 s67, s44, s{54+i}")
    for rg in range(3):
        r = XR + (i%2)*12 + rg*4
        e(f"buffer_load_dwordx4 v[{r}:{r+3}], v{5+rg}, s[16:19], s67 offen {XFLAG}"); vm.append(("x", i))
def wdma(i):
    so = (i % 2)*PS
    e(f"s_mul_i32 s43, s{54+i}, 576")
    e("s_add_u32 s43, s43, s45")
    e("s_add_u32 s42, s43, 9216")
    for gg in range(2):
        for c in range(3):
            e(f"s_add_u32 m0, s49, {so + c*8192 + gg*1024 - c*128}")
            e("s_nop 0")
            e(f"buffer_load_dwordx4 v{8+gg}, s[28:31], s{43-gg} offen offset:{c*128} {WFLAG} lds"); vm.append(("w", i))
def wait_min(tags):
    last = max(k for k, t in enumerate(vm) if t in tags)
    n = len([t for t in vm[last+1:] if t[1] != 4]) if tags[0][1] != 4 else len(vm)-1-last
    e(f"s_waitcnt vmcnt({min(n,63)})")
def kappa_bases():
    e("s_add_u32 s65, s64, 128")
    e("s_cmp_eq_u32 s65, 384")
    e("s_cselect_b32 s65, 0, s65")
    if ROT == 3:
        e("s_mul_i32 s42, s39, 384")
        e("s_add_u32 s25, s42, 384")
        e("s_sub_u32 s26, 768, s42")
        return
    for k in (25, 26):
        e(f"s_add_u32 s{k}, s{k-1}, 384")
        e(f"s_cmp_eq_u32 s{k}, 1152")
        e(f"s_cselect_b32 s{k}, 0, s{k}")
Bs = [24, 25, 26]; Rs = [27, 64, 65]

e("s_waitcnt lgkmcnt(0)")
srd(16, 4, 8192*1152)
srd(20, 6, 1152)
EXC = opt("exc", 1)
def exloads():
    e("s_add_u32 s48, s37, 8160")
    e("s_mul_i32 s48, s48, 1152")
    e("s_mov_b32 s60, s16")
    e("s_mov_b32 s61, s17")
    e("s_add_u32 s62, s48, 1152")
    e(f"s_min_u32 s62, s62, {8192*1152}")
    e("s_mov_b32 s63, 0x00020000")
    e(f"buffer_load_dwordx4 v[{EX}:{EX+3}], v1, s[60:63], s48 offen")
    e(f"buffer_load_dwordx4 v[{EX+4}:{EX+7}], v1, s[60:63], s48 offen offset:1024")
srd(28, 10, 576*1152)
e("s_cmp_lt_u32 s36, 4")
e("s_cbranch_scc1 P_l2")
gload(0); xload(0)
if B0:
    e("s_branch P_l1")
else:
    e("s_cmp_eq_u32 s47, 0")
    e("s_cbranch_scc1 P_l1")
    e("s_branch P_l3")
lbl("P_l2")
e("s_add_u32 s48, s37, 8160")
e("s_mul_i32 s48, s48, 1152")
e("s_mul_i32 s42, s36, 288")
e("v_lshlrev_b32 v10, 3, v0")
e("v_add_u32 v10, s42, v10")
e(f"buffer_load_dwordx2 v[{EX}:{EX+1}], v10, s[16:19], s48 offen")
e(f"buffer_load_dwordx2 v[{EX+2}:{EX+3}], v10, s[20:23], 0 offen")
e("s_cmp_ge_u32 s36, 2")
e("s_cbranch_scc1 P_l3")
e("s_cmp_eq_u32 s36, 1")
e("s_cselect_b32 s60, s8, s6")
e("s_cselect_b32 s61, s9, s7")
e("s_and_b32 s61, s61, 0xffff")
e("s_mov_b32 s62, 1152")
e("s_mov_b32 s63, 0x00020000")
e(f"s_mul_i32 s48, s36, {AUXP}")
e(f"s_add_u32 m0, s48, {AUX}")
e("s_nop 0")
e("buffer_load_dwordx4 v1, s[60:63], 0 offen lds")
e("buffer_load_dwordx4 v1, s[60:63], 0 offen offset:1024 lds")
lbl("P_l3")
wdma(0)
e("s_cmp_lt_u32 s36, 4")
e("s_cbranch_scc1 L_cons")

lbl("P_l1")
kappa_bases()
for i in range(1, 5):
    t0, t1 = 2*i, min(2*i+1, 8)
    e(f"s_add_u32 s42, s{Bs[t0//3]}, s{Rs[t0%3]}")
    e(f"s_add_u32 s43, s{Bs[t1//3]}, s{Rs[t1%3]}")
    e("s_cmp_eq_u32 s47, 1")
    e(f"s_cselect_b32 s{54+i}, s43, s42")
if X1MODE == 2:
    e("s_cbranch_scc0 P_nx1")
    n0 = len(vm); xload(1); del vm[n0:]
    lbl("P_nx1")
srd(32, 12, 8192*1152)
e("v_lshrrev_b32 v10, 2, v3")
e("v_sub_u32 v10, 0, v10")
e("v_xor_b32 v10, v10, v2")
e("v_and_b32 v10, 3, v10")
e("v_lshlrev_b32 v10, 4, v10")
e("v_lshl_add_u32 v10, v3, 6, v10")
e("v_lshrrev_b32 v11, 2, v2")
e(f"v_mul_u32_u24 v11, {XH}, v11")
e("s_and_b32 s43, s46, 1")
e("s_lshl_b32 s43, s43, 5")
e("v_xor_b32 v10, s43, v10")
e("s_mul_i32 s42, s46, 1536")
e(f"s_mul_i32 s43, s47, {XS}")
e("s_add_u32 s42, s42, s43")
e("v_xor_b32 v12, 32, v10")
e("v_add3_u32 v10, v10, v11, s42")
e("v_add3_u32 v11, v12, v11, s42")
e(f"v_add_u32 v12, {PS}, v10")
e(f"v_add_u32 v13, {PS}, v11")
e("s_lshl_b32 s42, s47, 4")
e("s_lshl_b32 s43, s46, 2")
e("s_add_u32 s42, s42, s43")
e(f"s_add_u32 s42, s42, {FLG}")
e("v_mov_b32 v16, s42")
e("v_xor_b32 v15, 16, v16")
e(f"v_add_u32 v15, {F_CONV}, v15")
e("v_and_b32 v17, 3, v0")
e("v_lshlrev_b32 v17, 2, v17")
e(f"v_add_u32 v17, {FLG}, v17")
M1 = STATS in ("mfma", "mfma1"); M2 = STATS in ("mfma", "mfma2")
DB = STATS == "db"
for i in range(0, 24, 2): e(f"v_mov_b64 v[{SA+i}:{SA+i+1}], 0")
e(f"v_mov_b32 v{ON}, 0x3f803f80"); e(f"v_mov_b32 v{ON+1}, 0x3f803f80")
def exstats():
    src, dst = EX+16, EX+18
    for mod in ["quad_perm:[1,0,3,2]", "quad_perm:[2,3,0,1]", "row_half_mirror", "row_mirror"]:
        e("s_nop 1")
        e(f"v_add_f32_dpp v{dst}, v{src}, v{src} {mod} row_mask:0xf bank_mask:0xf")
        e(f"v_add_f32_dpp v{dst+1}, v{src+1}, v{src+1} {mod} row_mask:0xf bank_mask:0xf")
        src, dst = dst, src
    e("s_nop 1")
    for r, base in ((src, 76), (src+1, 80)):
        for k in range(4): e(f"v_readlane_b32 s{base+k}, v{r}, {16*k}")
    e("s_nop 3")
    for r, base in ((src, 76), (src+1, 80)):
        e(f"v_mov_b32 v{r}, s{base}")
        for k in range(1, 4): e(f"v_add_f32 v{r}, s{base+k}, v{r}")
    finalize_stats([(src, src+1, TP)])
    e(f"v_mov_b32 v14, {STATT + 98*8}")
    e(f"ds_write_b64 v14, v[{src}:{src+1}]")
if not EXC:
    e("s_cmp_lg_u32 s36, 8")
    e("s_cbranch_scc1 P_noex")
    exstats()
lbl("P_noex")

def gunpack(i):
    for k in range(4):
        e(f"v_lshlrev_b32 v{GF+8*i+2*k}, 16, v{GP+4*i+k}")
        e(f"v_and_b32 v{GF+8*i+2*k+1}, s66, v{GP+4*i+k}")
def convert(i):
    gf = GF + 8*i
    for rg in range(3):
        regs = [XR + (i%2)*12 + rg*4 + k for k in range(4)]
        S1 = SA + rg*8; S2 = S1 + 4
        tb = TP + (rg % 2)*8
        mm = []
        for h in range(2):
            x = regs[2*h]
            if M1: mm.append(f"v_mfma_f32_4x4x4_16b_bf16 v[{S1}:{S1+3}], v[{ON}:{ON+1}], v[{x}:{x+1}], v[{S1}:{S1+3}]")
            if M2: mm.append(f"v_mfma_f32_4x4x4_16b_bf16 v[{S2}:{S2+3}], v[{x}:{x+1}], v[{x}:{x+1}], v[{S2}:{S2+3}]")
        for k in range(4):
            if mm and (len(mm) == 4 or k % 2 == 0 or (M1 and M2)): e(mm.pop(0))
            e(f"v_lshlrev_b32 v{tb+2*k}, 16, v{regs[k]}")
            e(f"v_and_b32 v{tb+2*k+1}, s66, v{regs[k]}")
        assert not mm
        for k in range(4):
            lo, hi = tb+2*k, tb+2*k+1
            if DB: continue
            if not M1:
                e(f"v_add_f32 v{S1}, v{S1}, v{lo}")
                e(f"v_add_f32 v{S1+1}, v{S1+1}, v{hi}")
            if not M2:
                e(f"v_fmac_f32 v{S2}, v{lo}, v{lo}")
                e(f"v_fmac_f32 v{S2+1}, v{hi}, v{hi}")
        for k in range(4):
            lo, hi = tb+2*k, tb+2*k+1
            e(f"v_mul_f32 v{lo}, v{lo}, v{gf+2*k}")
            e(f"v_mul_f32 v{hi}, v{hi}, v{gf+2*k+1}")
        for k in range(4):
            e(f"v_cvt_pk_bf16_f32 v{regs[k]}, v{tb+2*k}, v{tb+2*k+1}")
        if opt("w64", 0):
            e(f"ds_write_b64 v{10+2*(i%2)+(rg&1)}, v[{regs[0]}:{regs[1]}] offset:{rg*512}")
            e(f"ds_write_b64 v{10+2*(i%2)+(rg&1)}, v[{regs[2]}:{regs[3]}] offset:{rg*512+8}")
        else:
            e(f"ds_write_b128 v{10+2*(i%2)+(rg&1)}, v[{regs[0]}:{regs[3]}] offset:{rg*512}")
def capture(fn, *args):
    global out
    save = out; out = []; n0 = len(vm)
    fn(*args)
    lines = out; out = save
    tags = vm[n0:]; del vm[n0:]
    groups = []; cur = []
    for l in lines:
        cur.append(l)
        if "buffer_load" in l: groups.append((cur, tags[len(groups)])); cur = []
    assert not cur
    return groups
def convert_with(i, groups):
    global out
    save = out; out = []
    convert(i)
    lines = out; out = save
    if opt("wend", 0):
        lines = [l for l in lines if "ds_write" not in l] + (["    s_waitcnt vmcnt(%d)" % (3 if i in (1, 2) else 0)] if opt("wend", 0) == 2 and i >= 1 else []) + [l for l in lines if "ds_write" in l]
    if opt("novalu", 0) and i >= 1: lines = [l for l in lines if "ds_write" in l] + ["    s_nop 0"]*40
    if opt("nowr", 0) and i >= 1: lines = [l for l in lines if "ds_write" not in l]
    if opt("nodma", 0) and i >= 2:
        groups = [([l.replace("buffer_load_dwordx4 v8", "buffer_load_dwordx4 v[148:151], v8").replace("buffer_load_dwordx4 v9", "buffer_load_dwordx4 v[148:151], v9").replace(" lds", "") for l in g[0]], g[1]) if g is not None else None for g in groups]
    if opt("novm", 0) and i >= 2:
        groups = [([l for l in g[0] if "buffer_load" not in l], g[1]) if g is not None else None for g in groups]
    if not groups:
        out.extend(lines); return
    step = max(1, int((len(lines) - 8) * SPAN) // len(groups))
    gi = 0
    for k, l in enumerate(lines):
        if gi < len(groups) and k == gi*step:
            if groups[gi] is not None:
                out.extend(groups[gi][0]); vm.append(groups[gi][1])
            gi += 1
        out.append(l)
    assert gi == len(groups)
st2()
for i in range(5):
    if i == 4:
        e("s_cmp_eq_u32 s47, 1")
        e("s_cbranch_scc1 P_odd_done")
    if i >= 2:
        e(f"s_add_u32 s43, s47, {2*(i-2)+1}")
        spin(17, F_DONE, 18, "s43")
    if i == 0:
        e("s_cmp_eq_u32 s47, 0")
        e("s_cbranch_scc1 P_w0e")
        e("s_barrier")
        if B0:
            n0 = len(vm); wdma(0); del vm[n0:]
        e(f"s_waitcnt vmcnt({6 + (3 if X1MODE == 2 and not B0 else 0)})")
        if SER: spin(15, 0, 18, 1)
        e("s_branch P_w0")
        lbl("P_w0e")
        e("s_waitcnt vmcnt(0)")
        lbl("P_w0")
    else:
        wait_min([("x", i)])
        if SER:
            e(f"s_add_u32 s43, s47, {i}")
            spin(15, 0, 18, "s43")
    if CVPRIO is not None: e(f"s_setprio {CVPRIO}")
    st2()
    groups = []
    if i == 0:
        gunpack(0)
        if X1MODE == 0: groups += [None]*3 + capture(xload, 1)
    elif i == 1:
        if opt("w1in", 1): groups += capture(wdma, 1)
        groups += capture(xload, 2)
    else:
        groups += capture(wdma, i)
        if i == 2:
            xg = capture(xload, 3)
            if opt("mixed", 0): groups = groups[0:2] + xg[0:1] + groups[2:4] + xg[1:2] + groups[4:6] + xg[2:3]
            else: groups += xg
    if DB:
        e(f"s_setprio {opt('dbprio', 3)}")
        for k in range(4):
            for rg in range(3):
                x = XR + (i%2)*12 + rg*4 + k; S1 = SA + rg*8; S2 = S1 + 4
                e(f"v_dot2c_f32_bf16 v{S1+(k&1)}, v{x}, v{ON}")
                e(f"v_dot2c_f32_bf16 v{S2+(k&1)}, v{x}, v{x}")
        e(f"s_setprio {LADDER[min(i, len(LADDER)-1)]}")
    convert_with(i, groups)
    if i == 0:
        e("s_cmp_eq_u32 s47, 0")
        e("s_cbranch_scc0 P_b0")
        e("s_waitcnt lgkmcnt(0)")
        e("s_barrier")
        lbl("P_b0")
    e(f"v_mov_b32 v19, {i+1}")
    if SER: e(f"ds_write_b32 v16, v19 offset:{F_CONV}")
    if CVPRIO is not None: e(f"s_setprio {PPRIO}")
    if i == 0 and X1MODE == 2: e("s_waitcnt vmcnt(3)")
    else: wait_min([("w", i)])
    e("ds_write_b32 v16, v19")
    st2()
    if LADDER != "0" and i+1 < len(LADDER): e(f"s_setprio {LADDER[i+1]}")
    if i == 0:
        if LADDER == "0" and P0PRIO != PPRIO: e(f"s_setprio {PPRIO}")
        if X1MODE == 1: xload(1)
        if X1MODE == 2:
            e("s_cmp_eq_u32 s47, 1"); e("s_cbranch_scc1 P_x1done")
            xload(1)
            lbl("P_x1done")
        if not opt("w1in", 1): wdma(1)
        if not B0:
            e(f"v_mov_b32 v19, {FLG+F_AUX}")
            spin(19, 0, 18, 1)
        e(f"v_add_u32 v19, {AUX}, v4")
        for k in range(1, 5):
            e(f"v_add_u32 v18, s{54+k}, v19")
            e(f"ds_read_b128 v[{GP+4*k}:{GP+4*k+3}], v18")
        e("s_waitcnt lgkmcnt(0)")
        for k in range(1, 5): gunpack(k)
    if i == 3:
        e("s_cmp_eq_u32 s47, 1"); e("s_cbranch_scc1 P_skipx4")
        xload(4)
        lbl("P_skipx4")
R = TP+8
def reduce8():
    e("s_nop 7")
    if M2:
        e("v_and_b32 v14, 3, v0")
        for k in range(1, 4): e(f"v_cmp_eq_u32 s[{74+2*k}:{75+2*k}], {k}, v14")
    for rg in range(3):
        S1 = SA + rg*8; S2 = S1 + 4
        if M1: e(f"v_mov_b32 v{TP+2*rg}, v{S1}")
        else: e(f"v_add_f32 v{TP+2*rg}, v{S1}, v{S1+1}")
        if M2:
            e(f"v_cndmask_b32 v{TP+2*rg+1}, v{S2}, v{S2+1}, s[76:77]")
            e(f"v_cndmask_b32 v{TP+2*rg+1}, v{TP+2*rg+1}, v{S2+2}, s[78:79]")
            e(f"v_cndmask_b32 v{TP+2*rg+1}, v{TP+2*rg+1}, v{S2+3}, s[80:81]")
        else: e(f"v_add_f32 v{TP+2*rg+1}, v{S2}, v{S2+1}")
    src, dst = TP, TP+8
    for mod in ["quad_perm:[1,0,3,2]", "quad_perm:[2,3,0,1]", "row_half_mirror"]:
        e("s_nop 1")
        for k in range(6): e(f"v_add_f32_dpp v{dst+k}, v{src+k}, v{src+k} {mod} row_mask:0xf bank_mask:0xf")
        src, dst = dst, src
    e("s_mul_i32 s42, s46, 192")
    e(f"s_add_u32 s42, s42, {STATT}")
    e("v_lshlrev_b32 v14, 3, v3")
    e("v_add_u32 v14, s42, v14")
    e("s_lshl_b32 s42, s46, 2")
    e(f"s_add_u32 s42, s42, {FLG+F_STATB}")
    e("v_mov_b32 v15, s42")
reduce8()
spin(15, 0, 18, 1)
for rg in range(3): e(f"ds_read_b64 v[{TP+2*rg}:{TP+2*rg+1}], v14 offset:{PART-STATT + rg*64}")
e("s_waitcnt lgkmcnt(0)")
for k in range(6): e(f"v_add_f32 v{R+k}, v{R+k}, v{TP+k}")
finalize_stats([(R+2*rg, R+2*rg+1, TP+rg) for rg in range(3)])
for rg in range(3): e(f"ds_write_b64 v14, v[{R+2*rg}:{R+2*rg+1}] offset:{rg*64}")
e("v_mov_b32 v19, 5")
e("ds_write_b32 v16, v19 offset:16")
st2()
e("s_branch L_store")
lbl("P_odd_done")
reduce8()
for rg in range(3): e(f"ds_write_b64 v14, v[{R+2*rg}:{R+2*rg+1}] offset:{PART-STATT + rg*64}")
e("v_mov_b32 v19, 1")
e("ds_write_b32 v15, v19")
st2()

lbl("L_store")
e("s_sub_u32 s46, s36, 4")
e("s_cmp_eq_u32 s46, 7")
e("s_cbranch_scc0 L_st1")
exloads()
e(f"v_mov_b32 v{EX+16}, 0"); e(f"v_mov_b32 v{EX+17}, 0")
e("s_waitcnt vmcnt(0)")
for i in range(8):
    x = EX+i; a_, b_ = TP, TP+1
    e(f"v_lshlrev_b32 v{a_}, 16, v{x}")
    e(f"v_and_b32 v{b_}, s66, v{x}")
    e(f"v_add_f32 v{EX+16}, v{EX+16}, v{a_}")
    e(f"v_fmac_f32 v{EX+17}, v{a_}, v{a_}")
    e(f"v_add_f32 v{EX+16}, v{EX+16}, v{b_}")
    e(f"v_fmac_f32 v{EX+17}, v{b_}, v{b_}")
exstats()
e("s_waitcnt lgkmcnt(0)")
e("s_barrier")
e("s_branch L_fin")
lbl("L_st1")
e("s_add_u32 s47, s46, 1")
e("s_cmp_eq_u32 s46, 6")
e("s_cbranch_scc1 L_xrow")
for jj in range(3):
    e(f"v_add_u32 v2, {64*jj}, v0")
    e("v_mul_u32_u24 v3, 2731, v2")
    e("v_lshrrev_b32 v3, 16, v3")
    e("v_mul_u32_u24 v4, 24, v3")
    e("v_sub_u32 v4, v2, v4")
    e("v_lshlrev_b32 v4, 4, v4")
    e(f"v_mul_u32_u24 v5, {OUTP}, v3")
    e(f"v_add_u32 v{8+jj}, v5, v4")
    e("v_mul_u32_u24 v5, 1152, v3")
    e(f"v_add_u32 v{12+jj}, v5, v4")
e(f"s_mul_i32 s48, s46, {16*OUTP}")
e(f"s_add_u32 s48, s48, {OUTT}")
for jj in range(3): e(f"v_add_u32 v{8+jj}, s48, v{8+jj}")
e(f"s_mul_i32 s48, s46, {16*1152}")
e("s_add_u32 s48, s48, s40")
e("s_add_u32 s48, s48, s41")
e("s_add_u32 s49, s48, 9216")
e("s_waitcnt lgkmcnt(0)")
e("s_barrier")
st2()
spin(17, F_OUT, 18, "s47")
st2()
for jj in range(6): e(f"ds_read_b128 v[{20+4*jj}:{23+4*jj}], v{8+jj%3} offset:{(jj//3)*8*OUTP}")
for jj in range(6):
    e(f"s_waitcnt lgkmcnt({5-jj})")
    e(f"buffer_store_dwordx4 v[{20+4*jj}:{23+4*jj}], v{12+jj%3}, s[32:35], s{48+jj//3} offen {OFLAG}")
e("s_branch L_fin")
lbl("L_xrow")
e(f"v_add_u32 v6, {OUTT + 98*OUTP}, v1")
e("s_add_u32 s48, s37, 8160")
e("s_mul_i32 s48, s48, 1152")
e("s_add_u32 s48, s48, s41")
e("s_waitcnt lgkmcnt(0)")
e("s_barrier")
st2()
spin(17, F_OUT, 18, "s47")
st2()
e("s_mov_b64 exec, 0xffffff")
e("ds_read_b128 v[44:47], v6")
e("s_waitcnt lgkmcnt(0)")
e(f"buffer_store_dwordx4 v[44:47], v1, s[32:35], s48 offen {OFLAG}")
e("s_branch L_fin")

def exconv():
    e(f"v_add_u32 v14, {AUX + 2*AUXP}, v1")
    e(f"v_mov_b32 v{EX+16}, 0"); e(f"v_mov_b32 v{EX+17}, 0")
    e(f"s_waitcnt vmcnt({6 if EXC else 0})")
    for i in range(8):
        x = EX+i; g = EX+8+i; a, b, c, d = TP, TP+1, TP+2, TP+3
        e(f"v_lshlrev_b32 v{a}, 16, v{x}")
        e(f"v_and_b32 v{b}, s66, v{x}")
        e(f"v_lshlrev_b32 v{c}, 16, v{g}")
        e(f"v_and_b32 v{d}, s66, v{g}")
        e(f"v_add_f32 v{EX+16}, v{EX+16}, v{a}")
        e(f"v_fmac_f32 v{EX+17}, v{a}, v{a}")
        e(f"v_add_f32 v{EX+16}, v{EX+16}, v{b}")
        e(f"v_fmac_f32 v{EX+17}, v{b}, v{b}")
        e(f"v_mul_f32 v{a}, v{a}, v{c}")
        e(f"v_mul_f32 v{b}, v{b}, v{d}")
        e(f"v_cvt_pk_bf16_f32 v{x}, v{a}, v{b}")
    e(f"ds_write_b128 v14, v[{EX}:{EX+3}]")
    e(f"ds_write_b128 v14, v[{EX+4}:{EX+7}] offset:1024")
    e("v_mov_b32 v19, 1")
    e(f"v_mov_b32 v14, {FLG + F_AUX + 16}")
    e("ds_write_b32 v14, v19")
if not EXC:
    lbl("P_extra")
    exconv()
    e("s_branch P_l0")
ACC = 20; XF = 104; WF = 132
lbl("L_cons")
e(f"s_setprio {opt('c0prio', 0)}")
kappa_bases()
for t in range(1, 9): e(f"s_add_u32 s{76+t}, s{Bs[t//3]}, s{Rs[t%3]}")
e("s_mov_b32 s85, 0")
e("v_and_b32 v6, 3, v0")
e("v_lshlrev_b32 v6, 2, v6")
e(f"v_add_u32 v6, {FLG}, v6")
e("s_lshl_b32 s48, s36, 2")
e(f"s_add_u32 s48, s48, {FLG}")
e("v_mov_b32 v7, s48")
e("v_and_b32 v1, 15, v0")
e("v_lshrrev_b32 v2, 4, v0")
e("v_lshrrev_b32 v4, 2, v1")
e("v_sub_u32 v4, 0, v4")
e("v_xor_b32 v4, v4, v2")
e("v_and_b32 v4, 3, v4")
e("v_lshlrev_b32 v4, 4, v4")
e("v_lshl_add_u32 v13, v1, 6, v4")
e("v_bfe_u32 v4, v0, 2, 2")
e("v_lshl_add_u32 v5, v2, 3, v4")
e("v_lshlrev_b32 v5, 7, v5")
e("v_and_b32 v8, 3, v0")
e("v_lshl_add_u32 v5, v8, 3, v5")
e("v_lshrrev_b32 v4, 1, v4")
e("v_and_b32 v8, 1, v2")
e("v_lshl_or_b32 v4, v8, 1, v4")
e("v_xor_b32 v4, s36, v4")
e("v_lshl_add_u32 v5, v4, 5, v5")
e(f"v_add_u32 v14, {WOFF}, v5")
e("v_min_u32 v4, 2, v1")
e(f"v_mul_u32_u24 v4, {AUXP}, v4")
e("v_lshl_add_u32 v4, v2, 4, v4")
e(f"v_add_u32 v12, {AUX}, v4")
e("v_add_u32 v15, s54, v12")
e(f"v_add_u32 v16, {PS}, v13")
e(f"v_add_u32 v17, {PS}, v14")
for i in range(0, 84, 2): e(f"v_mov_b64 v[{ACC+i}:{ACC+i+1}], 0")
e("v_mov_b32 v19, 0")
e("v_mov_b32 v8, 1")
e(f"s_mov_b32 s50, {PS}")
e("s_mov_b32 s53, 1")
e("s_mov_b32 s52, 1")
e("s_mov_b32 s98, 0x00070007")
e("s_mov_b32 s99, 0x00070007")
e(f"v_mov_b64 v[{XF+24}:{XF+25}], 0"); e(f"v_mov_b64 v[{XF+26}:{XF+27}], 0")
def xread(par, sp, T, alt=0, aux=15):
    x = XF + T*4
    if T < 6: return f"ds_read_b128 v[{x}:{x+3}], v{16 if alt else 13} offset:{par*XS + sp*XH + T*1024}"
    return f"ds_read_b128 v[{x}:{x+3}], v{aux} offset:{sp*64}"
def wreads(par, sp, alt=0):
    r = []
    for t in range(3):
        w = WF + (sp*3+t)*4
        o = par*WS + t*8192 + sp*4096
        r.append(f"ds_read_b64_tr_b16 v[{w}:{w+1}], v{17 if alt else 14} offset:{o}")
        r.append(f"ds_read_b64_tr_b16 v[{w+2}:{w+3}], v{17 if alt else 14} offset:{o+512}")
    return r
def mf(sp, T, t):
    c = ACC + (T*3+t)*4; w = WF + (sp*3+t)*4; x = XF + T*4
    return f"v_mfma_f32_16x16x32_bf16 v[{c}:{c+3}], v[{w}:{w+3}], v[{x}:{x+3}], v[{c}:{c+3}]"
e(f"v_add_u32 v10, {AUX + 2*AUXP}, v10")
e("s_waitcnt vmcnt(6)")
for k in range(2):
    a_, b_, c_, d_ = EX+4, EX+5, EX+6, EX+7
    e(f"v_lshlrev_b32 v{a_}, 16, v{EX+k}")
    e(f"v_and_b32 v{b_}, s66, v{EX+k}")
    e(f"v_lshlrev_b32 v{c_}, 16, v{EX+2+k}")
    e(f"v_and_b32 v{d_}, s66, v{EX+2+k}")
    e(f"v_mul_f32 v{a_}, v{a_}, v{c_}")
    e(f"v_mul_f32 v{b_}, v{b_}, v{d_}")
    e(f"v_cvt_pk_bf16_f32 v{EX+k}, v{a_}, v{b_}")
e("s_mov_b32 exec_hi, 0xf")
e(f"ds_write_b64 v10, v[{EX}:{EX+1}]")
e("s_mov_b32 exec_hi, -1")
if B0:
    e("s_waitcnt vmcnt(0) lgkmcnt(0)")
    e(f"s_setprio {CPRIO}")
    st2()
    e("s_barrier")
    st2()
else:
    e("s_barrier")
    e("s_waitcnt vmcnt(0)")
    e(f"ds_write_b32 v7, v8 offset:{F_AUX}")
    e(f"s_setprio {CPRIO}")
    spin(6, F_AUX, 8, 1)
    st2()
    spin(6, 0, 8, 1)
    st2()
if DIAG: e("s_memrealtime s[88:89]"); e("s_waitcnt lgkmcnt(0)")
if STAMP == 2: e("s_memrealtime s[72:73]"); e("s_memtime s[74:75]"); e("s_waitcnt lgkmcnt(0)"); e("v_writelane_b32 v167, s72, 60"); e("v_writelane_b32 v167, s74, 58")
CHK = opt("chk", 0)
DNP = opt("dnp", 3)
def chunk_body(par):
    nx = 1-par; alt = par
    auxc = 15 if par == 0 else 18; auxn = 18 if par == 0 else 15
    body = []
    def need(sp, T): return [("x", sp, min(6, T + (WGRAN-1 if T % WGRAN == 0 else 0))), ("w", sp, 2)]
    w1 = wreads(par, 1)
    fill0 = {}
    if par == 0:
        fill0[0] = ["v_swap_b32 v13, v16"]; fill0[1] = ["v_swap_b32 v14, v17"]
    fill0[9] = ["s_mov_b32 m0, s52"]; fill0[10] = ["s_movrels_b32 s51, s76"]; fill0[12] = [f"v_add_u32 v{auxn}, s51, v12"]; fill0[13] = ["s_add_u32 s52, s52, 1"]
    if par == 1: fill0[15] = ["s_add_u32 s53, s53, 1"]; fill0[16] = ["s_mov_b32 s59, s53"]
    else: fill0[15] = ["s_min_u32 s59, s53, 4"]
    frpos = 3*(7+CHK) - 8
    for sp in range(2):
        wn = w1 if sp == 0 else wreads(nx, 0, alt)
        wstart = 3 if sp == 0 else 3*max(CHK, 1)
        pend = []
        for T in range(7):
            if sp == 1 and T == CHK: body.append(("chk", nx))
            if sp == 1 and T == DNP: body.append(("done",))
            for t in range(3):
                k = T*3+t
                body.append(("m", need(sp, T), mf(sp, T, t)))
                if sp == 0:
                    for it in fill0.get(k, []): body.append(("x", it))
                if sp*21 + k == frpos: body.append(("r", ("f",), f"ds_read_b32 v8, v6 offset:{nx*16}"))
                if sp*21 + k == 3*(7+CHK) - 2: body.append(("cmp",))
                if sp == 1 and k == 3*DNP - 2: body.append(("x", "v_add_u32 v19, 1, v19"))
                if 0 <= k - wstart < 6: body.append(("r", ("w", 1-sp, (k-wstart)//2), wn[k-wstart]))
                elif pend and (sp == 0 or T >= CHK): body.append(pend.pop(0))
            rd = ("r", ("x", 1, T), xread(par, 1, T, 0, auxc)) if sp == 0 else ("r", ("x", 0, T), xread(nx, 0, T, alt, auxn))
            if sp == 0 or (T >= CHK and not pend): body.append(rd)
            else: pend.append(rd)
        while pend: body.append(pend.pop(0))
    return body
bodyA = chunk_body(0); bodyB = chunk_body(1)
bi = [i for i, it in enumerate(bodyB) if it[0] == "chk"][0]
init_reads = [it for it in bodyB[bi:] if it[0] == "r"]
e("v_swap_b32 v13, v16"); e("v_swap_b32 v14, v17")
for it in init_reads: e(it[2])
lbl("C_loop")
seq = [it[1] for it in init_reads]
lastwait = None
def waitfor(tags):
    global lastwait
    idx = max(max(i for i, tg in enumerate(seq) if tg == need) for need in tags)
    n = len(seq) - 1 - idx
    if lastwait is None or idx > lastwait:
        e(f"s_waitcnt lgkmcnt({min(n,15)})"); lastwait = idx
def emit(body):
    global out
    for it in body:
        if it[0] == "r":
            e(it[2]); seq.append(it[1])
        elif it[0] == "x":
            e(it[1])
        elif it[0] == "m":
            waitfor(it[1]); e(it[2])
        elif it[0] == "cmp":
            waitfor([("f",)])
            e("v_cmp_le_u32 vcc, s59, v8")
        elif it[0] == "chk":
            k = spin_id[0]; spin_id[0] += 1
            st2()
            e("s_cmp_eq_u64 vcc, exec")
            e(f"s_cbranch_scc0 SP_{k}")
            lbl(f"SP_ok{k}")
            st2()
            save = out; out = []
            lbl(f"SP_{k}")
            e(f"ds_read_b32 v8, v6 offset:{it[1]*16}")
            e("s_waitcnt lgkmcnt(0)")
            e("v_cmp_le_u32 vcc, s59, v8")
            if SAFE:
                e("s_add_u32 s68, s68, 1"); e("s_bitcmp1_b32 s68, 18"); e(f"s_cbranch_scc1 SP_ok{k}")
            e("s_cmp_eq_u64 vcc, exec")
            e(f"s_cbranch_scc0 SP_{k}")
            e(f"s_branch SP_ok{k}")
            deferred.extend(out); out = save
        elif it[0] == "done":
            waitfor([("x", 1, 6), ("w", 1, 2)])
            e(f"ds_write_b32 v7, v19 offset:{F_DONE}"); seq.append(("d",))
emit(bodyA)
e("s_cmp_eq_u32 s53, 5")
e("s_cbranch_scc1 C_epi")
emit(bodyB)
e("s_branch C_loop")
out.extend(deferred); deferred.clear()
lbl("C_epi")
if DIAG: e("s_memrealtime s[90:91]")
if STAMP == 2: e("s_memrealtime s[72:73]"); e("s_memtime s[74:75]"); e("s_waitcnt lgkmcnt(0)"); e("v_writelane_b32 v167, s72, 61"); e("v_writelane_b32 v167, s74, 59")
e("s_barrier")
e("s_waitcnt lgkmcnt(0)")
e(f"v_lshlrev_b32 v4, 3, v1")
e(f"v_add_u32 v4, {STATT}, v4")
ST = XF
for T in range(7): e(f"ds_read_b64 v[{ST+2*T}:{ST+2*T+1}], v4 offset:{T*128}")
e(f"v_mul_u32_u24 v5, {OUTP}, v1")
e("v_lshl_add_u32 v5, v2, 3, v5")
e("s_lshl_b32 s48, s36, 5")
e(f"s_add_u32 s48, s48, {OUTT}")
e("v_add_u32 v5, s48, v5")
C1 = XF+14; C2 = XF+26; TM = XF+38
for t in range(3):
    for r in range(4):
        a = ACC + (6*3+t)*4 + r
        e(f"v_mov_b32_dpp v{C1+t*4+r}, v{a} row_newbcast:0 row_mask:0xf bank_mask:0xf")
        e(f"v_mov_b32_dpp v{C2+t*4+r}, v{a} row_newbcast:1 row_mask:0xf bank_mask:0xf")
e("s_waitcnt lgkmcnt(0)")
n = 0
for T in range(7):
    st = ST+2*T
    for t in range(3):
        a = ACC + (T*3+t)*4
        tm = TM + (n % 3)*6; n += 1
        for h in range(2):
            e(f"v_pk_fma_f32 v[{tm+2*h}:{tm+2*h+1}], v[{C1+t*4+2*h}:{C1+t*4+2*h+1}], v[{st}:{st+1}], v[{C2+t*4+2*h}:{C2+t*4+2*h+1}] op_sel:[0,0,0] op_sel_hi:[1,0,1]")
        for h in range(2):
            e(f"v_pk_fma_f32 v[{tm+2*h}:{tm+2*h+1}], v[{a+2*h}:{a+2*h+1}], v[{st}:{st+1}], v[{tm+2*h}:{tm+2*h+1}] op_sel:[0,1,0] op_sel_hi:[1,1,1]")
        e(f"v_cvt_pk_bf16_f32 v{tm+4}, v{tm}, v{tm+1}")
        e(f"v_cvt_pk_bf16_f32 v{tm+5}, v{tm+2}, v{tm+3}")
        e(f"ds_write_b64 v5, v[{tm+4}:{tm+5}] offset:{T*16*OUTP + t*128}")
    e(f"v_mov_b32 v19, {T+1}")
    e(f"ds_write_b32 v7, v19 offset:{F_OUT}")
st2()
if DIAG in (2, 3):
    e("s_memrealtime s[92:93]"); e("s_waitcnt lgkmcnt(0)")
    if DIAG == 2: e("s_sub_u32 s94, s88, s86")
    else: e("s_sub_u32 s94, s90, s88")
    e("s_lshl_b32 s94, s94, 1")
    lbl("DG_a")
    e("s_memrealtime s[96:97]"); e("s_waitcnt lgkmcnt(0)")
    e("s_sub_u32 s95, s96, s92")
    e("s_cmp_lt_u32 s95, s94")
    e("s_cbranch_scc1 DG_a")
lbl("L_fin")
if DIAG == 1:
    e("s_waitcnt vmcnt(0)")
    e("s_memrealtime s[92:93]"); e("s_waitcnt lgkmcnt(0)")
    e("s_sub_u32 s94, s92, s86")
    lbl("DG_b")
    e("s_memrealtime s[96:97]"); e("s_waitcnt lgkmcnt(0)")
    e("s_sub_u32 s95, s96, s92")
    e("s_cmp_lt_u32 s95, s94")
    e("s_cbranch_scc1 DG_b")
if STAMP == 3:
    e("s_mov_b64 exec, -1")
    st2(); e("s_waitcnt vmcnt(0)"); st2()
    e("s_memrealtime s[74:75]")
    srd(56, 14, 256)
    e("v_readlane_b32 s72, v167, 62")
    e("s_waitcnt lgkmcnt(0)")
    e("s_cmp_lg_u32 s36, 9")
    e("s_cbranch_scc1 L_d2")
    e("s_sub_u32 s73, s74, s72")
    e("s_not_b32 s72, s72")
    e("v_mov_b32 v1, 0"); e("v_mov_b32 v2, s72"); e("v_mov_b32 v3, s74"); e("v_mov_b32 v4, s73")
    e("s_mov_b64 exec, 1")
    e("buffer_atomic_umax v2, v1, s[56:59], 0 offen")
    e("buffer_atomic_umax v3, v1, s[56:59], 0 offen offset:4")
    e("buffer_atomic_add v4, v1, s[56:59], 0 offen offset:8")
    e("s_branch L_end")
    lbl("L_d2")
    e("s_cmp_lg_u32 s2, 100")
    e("s_cbranch_scc1 L_end")
    e("s_cmp_lg_u32 s36, 0")
    e("s_cbranch_scc1 L_end")
    e("v_readlane_b32 s70, v167, 0")
    e("s_nop 3")
    e("v_subrev_u32 v167, s70, v167")
    e("v_lshlrev_b32 v1, 1, v0")
    e("v_add_u32 v1, 8, v1")
    e("s_mov_b32 exec_lo, 0x555554")
    e("s_mov_b32 exec_hi, 0")
    e("buffer_store_dword v167, v1, s[56:59], 0 offen")
if STAMP == 2:
    e("s_mov_b64 exec, -1")
    st2(); e("s_waitcnt vmcnt(0)"); st2()
    e("s_memrealtime s[72:73]"); e("s_memtime s[74:75]"); e("s_waitcnt lgkmcnt(0)"); e("v_writelane_b32 v167, s72, 63"); e("v_writelane_b32 v167, s74, 57")
    srd(56, 14, 1<<22)
    e("s_lshl_b32 s60, s2, 12")
    e("s_lshl_b32 s61, s36, 8")
    e("s_add_u32 s60, s60, s61")
    e("v_lshlrev_b32 v1, 2, v0")
    e("buffer_store_dword v167, v1, s[56:59], s60 offen")
lbl("L_end")

text = HDR + f"""; @launch grid=(256,1,1) block=({NW*64},1,1) lds={LDS_TOTAL}
.amdgcn_target "amdgcn-amd-amdhsa--gfx950"
.text
.globl {NAME}_kernel
.p2align 8
.type {NAME}_kernel,@function
{NAME}_kernel:
""" + "\n".join(out) + f"""
    s_endpgm
.section .rodata,"a"
.p2align 6
.amdhsa_kernel {NAME}_kernel
  .amdhsa_next_free_vgpr 168
  .amdhsa_next_free_sgpr 100
  .amdhsa_accum_offset 168
  .amdhsa_group_segment_fixed_size 0
  .amdhsa_kernarg_size 56
  .amdhsa_user_sgpr_count 2
  .amdhsa_user_sgpr_kernarg_segment_ptr 1
  .amdhsa_system_sgpr_workgroup_id_x 1
.end_amdhsa_kernel
"""
open(sys.argv[1], "w").write(text)
```

```python
import sys
NAME = "standalone__layernorm_linear__sampling"
opts = dict(a.split("=", 1) for a in sys.argv[2:] if "=" in a)
def opt(k, d): return type(d)(opts.get(k, d))
STAMP = opt("stamp", 0)
STATS = opt("stats", "plain")
XFLAG = opt("xflag", ""); WFLAG = opt("wflag", ""); OFLAG = opt("oflag", "nt")
BARPOS = opt("barpos", 3)
PPRIO = opt("pprio", 0); P0PRIO = opt("p0prio", 2); CPRIO = opt("cprio", 1)
ROT = opt("rot", 1); SAFE = opt("safe", 1); WGRAN = opt("wgran", 2)
SPAN = opt("span", 1.0); X1MODE = opt("x1mode", 1); ROLEPERM = opt("roleperm", 1)
NW = 12
out = []
def e(s): out.append("    " + s)
def lbl(s): out.append(s + ":")
HDR = open("cdna_kernels/%s.s.ref" % NAME).read().split("; Override launch")[0]

XH = 6208; XS = 12416; WS = 24576; WOFF = 2*XS; PS = 2*XS + 2*WS
AUX = 2*PS; AUXP = 2080
STATT = AUX + 3*AUXP
PART = STATT + 896
FLG = (PART + 768 + 127)//128*128
LDS_TOTAL = FLG + 128
OUTT = PS; OUTP = 400
GF32 = FLG + 128
LDS_TOTAL = GF32 + 2304
F_DONE, F_STATB, F_AUX, F_OUT, F_CONV = 32, 48, 64, 80, 96
SER = opt("ser", 0)
PF = 0
B0 = opt("b0", 1)
CVPRIO = opt("cvprio", -1); CVPRIO = None if CVPRIO < 0 else CVPRIO

def st2(force=False):
    if STAMP not in (2, 3): return
    if opt("light", 0) and not force: return
    e("s_memtime s[70:71]")
    e("s_waitcnt lgkmcnt(0)")
    e("s_mov_b32 m0, s69"); e("s_nop 0"); e("v_writelane_b32 v167, s70, m0")
    e("s_add_u32 s69, s69, 1")
def srd(d, b, n):
    e(f"s_mov_b32 s{d}, s{b}")
    e(f"s_and_b32 s{d+1}, s{b+1}, 0xffff")
    e(f"s_mov_b32 s{d+2}, {n}")
    e(f"s_mov_b32 s{d+3}, 0x00020000")
def finalize_stats(trips):
    seq = [
     "v_mul_f32 v{m}, 0x3ae38e39, v{m}",
     "v_mul_f32 v{q}, 0x3ae38e39, v{q}",
     "v_fma_f32 v{q}, -v{m}, v{m}, v{q}",
     "v_max_f32 v{q}, 0, v{q}",
     "v_cvt_pk_bf16_f32 v{t}, v{m}, v{q}",
     "v_lshlrev_b32 v{m}, 16, v{t}",
     "v_and_b32 v{q}, 0xffff0000, v{t}",
     "v_add_f32 v{q}, 0x3727c5ac, v{q}",
     "v_cvt_pk_bf16_f32 v{t}, v{q}, v{q}",
     "v_lshlrev_b32 v{q}, 16, v{t}",
     "v_sqrt_f32 v{q}, v{q}",
     "NOP",
     "v_cvt_pk_bf16_f32 v{t}, v{q}, v{q}",
     "v_lshlrev_b32 v{q}, 16, v{t}",
     "v_rcp_f32 v{q}, v{q}",
     "NOP",
     "v_mul_f32 v{m}, v{m}, v{q}",
     "v_sub_f32 v{m}, 0, v{m}"]
    for s in seq:
        if s == "NOP": e("s_nop 0"); continue
        for (m, q, t) in trips: e(s.format(m=m, q=q, t=t))
spin_id = [0]
deferred = []
def spin(vaddr, off, vtmp, sneed, preread=False):
    global out
    k = spin_id[0]; spin_id[0] += 1
    save = None
    if preread:
        e(f"v_cmp_le_u32 vcc, {sneed}, v{vtmp}")
        e("s_cmp_eq_u64 vcc, exec")
        e(f"s_cbranch_scc0 SP_{k}")
        lbl(f"SP_ok{k}")
        save = out; out = []
    lbl(f"SP_{k}")
    if opt("slp", 0) and not preread: e(f"s_sleep {opt('slp', 0)}")
    e(f"ds_read_b32 v{vtmp}, v{vaddr} offset:{off}")
    e("s_waitcnt lgkmcnt(0)")
    e(f"v_cmp_le_u32 vcc, {sneed}, v{vtmp}")
    if SAFE:
        e("s_add_u32 s68, s68, 1")
        e("s_bitcmp1_b32 s68, 18")
        e(f"s_cbranch_scc1 SP_ok{k}")
    e("s_cmp_eq_u64 vcc, exec")
    e(f"s_cbranch_scc0 SP_{k}")
    if preread:
        e(f"s_branch SP_ok{k}")
        deferred.extend(out); out = save
    else:
        lbl(f"SP_ok{k}")

e("s_cmp_ge_u32 s2, 255")
e("s_cbranch_scc1 L_end")
if STAMP in (2, 3):
    e("s_mov_b32 s69, 0"); e("v_mov_b32 v167, 0"); e("s_memrealtime s[72:73]"); st2(True); e("v_writelane_b32 v167, s72, 62")
DIAG = opt("diag", 0)
if DIAG: e("s_memrealtime s[86:87]")
e("v_readfirstlane_b32 s36, v0")
e("v_and_b32 v0, 63, v0")
e("s_nop 2")
e("s_cmp_lt_u32 s36, 704")
e("s_cbranch_scc1 L_nz")
e("v_lshlrev_b32 v10, 2, v0")
e("v_mov_b32 v11, 0")
e(f"v_add_u32 v10, {FLG - 128}, v10")
e("ds_write_b32 v10, v11")
e("s_waitcnt lgkmcnt(0)")
lbl("L_nz")
e("s_load_dwordx4 s[4:7], s[0:1], 0")
e("s_load_dwordx4 s[8:11], s[0:1], 16")
e("s_load_dwordx2 s[12:13], s[0:1], 32")
if STAMP: e(f"s_load_dwordx2 s[14:15], s[0:1], {48 if STAMP == 2 else 40}")
e("s_barrier")
e("s_and_b32 s3, s2, 7")
e("s_lshr_b32 s40, s2, 3")
e("s_lshl_b32 s41, s3, 1")
e("s_add_u32 s41, s41, s40")
e("s_sub_u32 s41, s41, 30")
e("s_mul_i32 s42, s3, 10")
e("s_cmp_ge_u32 s40, 30")
e("s_cselect_b32 s40, s41, s40")
e("s_cselect_b32 s42, 80, s42")
e("s_mul_i32 s41, s40, 43")
e("s_lshr_b32 s41, s41, 7")
e("s_mul_i32 s43, s41, 3")
e("s_sub_u32 s38, s40, s43")
e("s_add_u32 s37, s42, s41")
if opt("map", 0) == 1:
    e("s_mul_i32 s37, s2, 171")
    e("s_lshr_b32 s37, s37, 9")
    e("s_mul_i32 s43, s37, 3")
    e("s_sub_u32 s38, s2, s43")
    e("s_mul_i32 s41, s37, 205")
    e("s_lshr_b32 s41, s41, 11")
    e("s_mul_i32 s41, s41, 10")
    e("s_sub_u32 s41, s37, s41")
e("s_mul_i32 s42, s41, 43")
e("s_lshr_b32 s42, s42, 7")
e("s_mul_i32 s43, s42, 3")
e("s_sub_u32 s24, s41, s43")
e("s_add_u32 s27, s38, s42")
e("s_sub_u32 s43, s27, 3")
e("s_cmp_ge_u32 s27, 3")
e("s_cselect_b32 s27, s43, s27")
if ROT == 0: e("s_mov_b32 s24, 0"); e("s_mov_b32 s27, 0")
if ROT == 2: e("s_mov_b32 s24, 0")
if ROT == 3:
    e("s_mov_b32 s24, 0")
    e("s_lshr_b32 s42, s41, 1")
    e("s_add_u32 s27, s38, s42")
    e("s_mul_i32 s43, s27, 43")
    e("s_lshr_b32 s43, s43, 7")
    e("s_mul_i32 s43, s43, 3")
    e("s_sub_u32 s27, s27, s43")
    e("s_and_b32 s39, s41, 1")
e("s_mul_i32 s24, s24, 384")
e("s_lshl_b32 s27, s27, 7")
e("s_add_u32 s64, s27, 128")
e("s_cmp_eq_u32 s64, 384")
e("s_cselect_b32 s64, 0, s64")
e("s_and_b32 s3, s41, 7")
e(f"s_mul_i32 s40, s37, {96*1152}")
e("s_mul_i32 s41, s38, 384")
e("s_lshr_b32 s36, s36, 6")
if ROLEPERM:
    e("s_xor_b32 s42, s36, 4")
    e("s_cmp_lt_u32 s36, 8")
    e("s_cselect_b32 s36, s42, s36")
LADDER = opt("ladder", "3210")
if LADDER != "0":
    e(f"s_setprio {LADDER[0]}")
elif P0PRIO:
    e("s_cmp_ge_u32 s36, 8")
    e("s_cbranch_scc1 L_prio")
    e(f"s_setprio {P0PRIO}")
    lbl("L_prio")
e("v_and_b32 v2, 7, v0")
e("v_lshrrev_b32 v3, 3, v0")
e("v_lshlrev_b32 v4, 4, v2")
e("v_mul_u32_u24 v8, 1152, v3")
e("v_add_u32 v5, v8, v4")
e("v_add_u32 v6, 9216, v5")
e("v_add_u32 v7, 18432, v5")
e("v_and_b32 v9, 16, v0")
e("v_lshlrev_b32 v9, 1, v9")
e("v_xor_b32 v8, v5, v9")
e("v_xor_b32 v9, 64, v8")
e("v_lshlrev_b32 v1, 4, v0")
e("s_lshr_b32 s47, s36, 3")
e("s_and_b32 s46, s36, 3")
e(f"s_mul_i32 s42, s46, {24*1152}")
e("s_add_u32 s44, s40, s42")
e("s_cmp_eq_u32 s47, 1")
e("s_cselect_b32 s54, s64, s27")
e("s_add_u32 s54, s54, s24")
e(f"s_mul_i32 s42, s46, {16*1152}")
e("s_add_u32 s45, s41, s42")
e("s_lshl_b32 s49, s46, 11")
e(f"s_mul_i32 s42, s47, {WS}")
e("s_add_u32 s49, s49, s42")
e(f"s_add_u32 s49, s49, {WOFF}")
e("s_mov_b32 s68, 0")
e("s_mov_b32 s66, 0xffff0000")

XR = 20; GP = 56; GF = 64; SA = 104; TP = 128; ON = 144; EX = 146
XE = opt("xe", 0)
XB = [0, 1, 0, 2, 0] if XE == 2 else [0, 1, 0, 1, 0]
vm = []
def gload(i):
    e(f"buffer_load_dwordx4 v[{GP+4*i}:{GP+4*i+3}], v4, s[20:23], s{54+i} offen"); vm.append(("g", i))
def xload(i):
    e(f"s_add_u32 s67, s44, s{54+i}")
    for rg in range(3):
        r = XR + XB[i]*12 + rg*4
        e(f"buffer_load_dwordx4 v[{r}:{r+3}], v{5+rg}, s[16:19], s67 offen {XFLAG}"); vm.append(("x", i))
def wdma(i):
    so = (i % 2)*PS
    e(f"s_mul_i32 s43, s{54+i}, 576")
    e("s_add_u32 s43, s43, s45")
    e("s_add_u32 s42, s43, 9216")
    for gg in range(2):
        for c in range(3):
            e(f"s_add_u32 m0, s49, {so + c*8192 + gg*1024 - c*128}")
            e("s_nop 0")
            e(f"buffer_load_dwordx4 v{8+gg}, s[28:31], s{43-gg} offen offset:{c*128} {WFLAG} lds"); vm.append(("w", i))
def wait_min(tags):
    last = max(k for k, t in enumerate(vm) if t in tags)
    n = len([t for t in vm[last+1:] if t[1] != 4]) if tags[0][1] != 4 else len(vm)-1-last
    e(f"s_waitcnt vmcnt({min(n,63)})")
def kappa_bases():
    e("s_add_u32 s65, s64, 128")
    e("s_cmp_eq_u32 s65, 384")
    e("s_cselect_b32 s65, 0, s65")
    if ROT == 3:
        e("s_mul_i32 s42, s39, 384")
        e("s_add_u32 s25, s42, 384")
        e("s_sub_u32 s26, 768, s42")
        return
    for k in (25, 26):
        e(f"s_add_u32 s{k}, s{k-1}, 384")
        e(f"s_cmp_eq_u32 s{k}, 1152")
        e(f"s_cselect_b32 s{k}, 0, s{k}")
Bs = [24, 25, 26]; Rs = [27, 64, 65]

e("s_waitcnt lgkmcnt(0)")
srd(16, 4, 8192*1152)
srd(20, 6, 1152)
EXC = opt("exc", 1)
def exloads():
    e("s_add_u32 s48, s37, 8160")
    e("s_mul_i32 s48, s48, 1152")
    e("s_mov_b32 s60, s16")
    e("s_mov_b32 s61, s17")
    e("s_add_u32 s62, s48, 1152")
    e(f"s_min_u32 s62, s62, {8192*1152}")
    e("s_mov_b32 s63, 0x00020000")
    e(f"buffer_load_dwordx4 v[{EX}:{EX+3}], v1, s[60:63], s48 offen")
    e(f"buffer_load_dwordx4 v[{EX+4}:{EX+7}], v1, s[60:63], s48 offen offset:1024")
srd(28, 10, 576*1152)
e("s_cmp_lt_u32 s36, 4")
e("s_cbranch_scc1 P_l2")
gload(0); xload(0)
W0UP = opt("w0up", 0)
if W0UP:
    e("s_cmp_eq_u32 s47, 0")
    e("s_cbranch_scc1 P_l1")
    e("s_branch P_l3")
else:
    e("s_branch P_l1")
lbl("P_l2")
e("s_add_u32 s48, s37, 8160")
e("s_mul_i32 s48, s48, 1152")
e("s_mul_i32 s42, s36, 288")
e("v_lshlrev_b32 v10, 3, v0")
e("v_add_u32 v10, s42, v10")
e(f"buffer_load_dwordx2 v[{EX}:{EX+1}], v10, s[16:19], s48 offen")
e(f"buffer_load_dwordx2 v[{EX+2}:{EX+3}], v10, s[20:23], 0 offen")
e("s_cmp_ge_u32 s36, 2")
e("s_cbranch_scc1 P_l3")
e("s_cmp_eq_u32 s36, 1")
e("s_cselect_b32 s60, s8, s6")
e("s_cselect_b32 s61, s9, s7")
e("s_and_b32 s61, s61, 0xffff")
e("s_mov_b32 s62, 1152")
e("s_mov_b32 s63, 0x00020000")
e(f"s_mul_i32 s48, s36, {AUXP}")
e(f"s_add_u32 m0, s48, {AUX}")
e("s_nop 0")
e("buffer_load_dwordx4 v1, s[60:63], 0 offen lds")
e("buffer_load_dwordx4 v1, s[60:63], 0 offen offset:1024 lds")
lbl("P_l3")
n0 = len(vm); wdma(0); del vm[n0:]
if W0UP:
    e("s_cmp_lt_u32 s36, 4")
    e("s_cbranch_scc1 L_cons")
else:
    e("s_branch L_cons")

lbl("P_l1")
kappa_bases()
for i in range(1, 5):
    t0, t1 = 2*i, min(2*i+1, 8)
    e(f"s_add_u32 s42, s{Bs[t0//3]}, s{Rs[t0%3]}")
    e(f"s_add_u32 s43, s{Bs[t1//3]}, s{Rs[t1%3]}")
    e("s_cmp_eq_u32 s47, 1")
    e(f"s_cselect_b32 s{54+i}, s43, s42")
if XE:
    e("s_cbranch_scc0 P_nx1")
    n0 = len(vm); xload(1); del vm[n0:]
    if XE == 2: e("s_branch P_nx2")
    lbl("P_nx1")
    if XE == 2:
        n0 = len(vm); xload(3); del vm[n0:]
        lbl("P_nx2")
srd(32, 12, 8192*1152)
e("v_lshrrev_b32 v10, 2, v3")
e("v_sub_u32 v10, 0, v10")
e("v_xor_b32 v10, v10, v2")
e("v_and_b32 v10, 3, v10")
e("v_lshlrev_b32 v10, 4, v10")
e("v_lshl_add_u32 v10, v3, 6, v10")
e("v_lshrrev_b32 v11, 2, v2")
e(f"v_mul_u32_u24 v11, {XH}, v11")
e("s_and_b32 s43, s46, 1")
e("s_lshl_b32 s43, s43, 5")
e("v_xor_b32 v10, s43, v10")
e("s_mul_i32 s42, s46, 1536")
e(f"s_mul_i32 s43, s47, {XS}")
e("s_add_u32 s42, s42, s43")
e("v_xor_b32 v12, 32, v10")
e("v_add3_u32 v10, v10, v11, s42")
e("v_add3_u32 v11, v12, v11, s42")
e(f"v_add_u32 v12, {PS}, v10")
e(f"v_add_u32 v13, {PS}, v11")
e("s_lshl_b32 s42, s47, 4")
e("s_lshl_b32 s43, s46, 2")
e("s_add_u32 s42, s42, s43")
e(f"s_add_u32 s42, s42, {FLG}")
e("v_mov_b32 v16, s42")
e("v_xor_b32 v15, 16, v16")
e(f"v_add_u32 v15, {F_CONV}, v15")
e("v_and_b32 v17, 3, v0")
e("v_lshlrev_b32 v17, 2, v17")
e(f"v_add_u32 v17, {FLG}, v17")
M1 = STATS in ("mfma", "mfma1"); M2 = STATS in ("mfma", "mfma2")
DB = STATS == "db"

def exstats():
    src, dst = EX+16, EX+18
    for mod in ["quad_perm:[1,0,3,2]", "quad_perm:[2,3,0,1]", "row_half_mirror", "row_mirror"]:
        e("s_nop 1")
        e(f"v_add_f32_dpp v{dst}, v{src}, v{src} {mod} row_mask:0xf bank_mask:0xf")
        e(f"v_add_f32_dpp v{dst+1}, v{src+1}, v{src+1} {mod} row_mask:0xf bank_mask:0xf")
        src, dst = dst, src
    e("s_nop 1")
    for r, base in ((src, 76), (src+1, 80)):
        for k in range(4): e(f"v_readlane_b32 s{base+k}, v{r}, {16*k}")
    e("s_nop 3")
    for r, base in ((src, 76), (src+1, 80)):
        e(f"v_mov_b32 v{r}, s{base}")
        for k in range(1, 4): e(f"v_add_f32 v{r}, s{base+k}, v{r}")
    finalize_stats([(src, src+1, TP)])
    e(f"v_mov_b32 v14, {STATT + 98*8}")
    e(f"ds_write_b64 v14, v[{src}:{src+1}]")
if not EXC:
    e("s_cmp_lg_u32 s36, 8")
    e("s_cbranch_scc1 P_noex")
    exstats()
lbl("P_noex")

def gunpack(i):
    for k in range(4):
        e(f"v_lshlrev_b32 v{GF+8*i+2*k}, 16, v{GP+4*i+k}")
        e(f"v_and_b32 v{GF+8*i+2*k+1}, s66, v{GP+4*i+k}")
def convert(i):
    gf = GF + 8*i
    for rg in range(3):
        regs = [XR + XB[i]*12 + rg*4 + k for k in range(4)]
        S1 = SA + rg*8; S2 = S1 + 4
        tb = TP + (rg % 2)*8
        mm = []
        for h in range(2):
            x = regs[2*h]
            if M1: mm.append(f"v_mfma_f32_4x4x4_16b_bf16 v[{S1}:{S1+3}], v[{ON}:{ON+1}], v[{x}:{x+1}], v[{S1}:{S1+3}]")
            if M2: mm.append(f"v_mfma_f32_4x4x4_16b_bf16 v[{S2}:{S2+3}], v[{x}:{x+1}], v[{x}:{x+1}], v[{S2}:{S2+3}]")
        for k in range(4):
            if mm and (len(mm) == 4 or k % 2 == 0 or (M1 and M2)): e(mm.pop(0))
            e(f"v_lshlrev_b32 v{tb+2*k}, 16, v{regs[k]}")
            e(f"v_and_b32 v{tb+2*k+1}, s66, v{regs[k]}")
        assert not mm
        for k in range(4):
            lo, hi = tb+2*k, tb+2*k+1
            if DB or opt("yabl", 0): continue
            if i == 0 and k == 0:
                e(f"v_add_f32 v{S1}, v{lo}, v{hi}")
                e(f"v_mul_f32 v{S2}, v{lo}, v{lo}")
                e(f"v_mul_f32 v{S2+1}, v{hi}, v{hi}")
            elif i == 0 and k == 1:
                e(f"v_add_f32 v{S1+1}, v{lo}, v{hi}")
                e(f"v_fmac_f32 v{S2}, v{lo}, v{lo}")
                e(f"v_fmac_f32 v{S2+1}, v{hi}, v{hi}")
            else:
                e(f"v_add_f32 v{S1}, v{S1}, v{lo}")
                e(f"v_add_f32 v{S1+1}, v{S1+1}, v{hi}")
                e(f"v_fmac_f32 v{S2}, v{lo}, v{lo}")
                e(f"v_fmac_f32 v{S2+1}, v{hi}, v{hi}")
        for k in range(4):
            lo, hi = tb+2*k, tb+2*k+1
            e(f"v_mul_f32 v{lo}, v{lo}, v{gf+2*k}")
            e(f"v_mul_f32 v{hi}, v{hi}, v{gf+2*k+1}")
        for k in range(4):
            e(f"v_cvt_pk_bf16_f32 v{regs[k]}, v{tb+2*k}, v{tb+2*k+1}")
        if opt("w64", 0):
            e(f"ds_write_b64 v{10+2*(i%2)+(rg&1)}, v[{regs[0]}:{regs[1]}] offset:{rg*512}")
            e(f"ds_write_b64 v{10+2*(i%2)+(rg&1)}, v[{regs[2]}:{regs[3]}] offset:{rg*512+8}")
        else:
            e(f"ds_write_b128 v{10+2*(i%2)+(rg&1)}, v[{regs[0]}:{regs[3]}] offset:{rg*512}")
def capture(fn, *args):
    global out
    save = out; out = []; n0 = len(vm)
    fn(*args)
    lines = out; out = save
    tags = vm[n0:]; del vm[n0:]
    groups = []; cur = []
    for l in lines:
        cur.append(l)
        if "buffer_load" in l: groups.append((cur, tags[len(groups)])); cur = []
    assert not cur
    return groups
def convert_with(i, groups):
    global out
    save = out; out = []
    convert(i)
    lines = out; out = save
    if opt("wend", 0):
        lines = [l for l in lines if "ds_write" not in l] + (["    s_waitcnt vmcnt(%d)" % (3 if i in (1, 2) else 0)] if opt("wend", 0) == 2 and i >= 1 else []) + [l for l in lines if "ds_write" in l]
    if opt("novalu", 0) and i >= 1: lines = [l for l in lines if "ds_write" in l] + ["    s_nop 0"]*40
    if opt("nowr", 0) and i >= 1: lines = [l for l in lines if "ds_write" not in l]
    if opt("nodma", 0) and i >= 2:
        groups = [([l.replace("buffer_load_dwordx4 v8", "buffer_load_dwordx4 v[148:151], v8").replace("buffer_load_dwordx4 v9", "buffer_load_dwordx4 v[148:151], v9").replace(" lds", "") for l in g[0]], g[1]) if g is not None else None for g in groups]
    if opt("novm", 0) and i >= 2:
        groups = [([l for l in g[0] if "buffer_load" not in l], g[1]) if g is not None else None for g in groups]
    if not groups:
        out.extend(lines); return
    step = max(1, int((len(lines) - 8) * SPAN) // len(groups))
    gi = 0
    for k, l in enumerate(lines):
        if gi < len(groups) and k == gi*step:
            if groups[gi] is not None:
                out.extend(groups[gi][0]); vm.append(groups[gi][1])
            gi += 1
        out.append(l)
    assert gi == len(groups)
st2()
skid = [0]
def cond(groups, br):
    r = []
    for gr in groups:
        if gr is None: r.append(None); continue
        skid[0] += 1
        r.append(([f"    {br} P_sk{skid[0]}"] + gr[0] + [f"P_sk{skid[0]}:"], gr[1]))
    return r
def setvcc():
    e("s_cmp_eq_u32 s47, 1"); e("s_cselect_b64 vcc, -1, 0")
for i in range(5):
    if i == 4:
        e("s_cmp_eq_u32 s47, 1")
        e("s_cbranch_scc1 P_odd_done")
    if i >= 2:
        e(f"s_add_u32 s43, s47, {2*(i-2)+1}")
        spin(17, F_DONE, 18, "s43")
    if i == 0:
        if XE == 1:
            e("s_cmp_eq_u32 s47, 0"); e("s_cbranch_scc0 P_w0"); e("s_waitcnt vmcnt(0)"); lbl("P_w0"); e("s_waitcnt vmcnt(3)")
        elif W0UP:
            e("s_cmp_eq_u32 s47, 0"); e("s_cbranch_scc0 P_w0"); e("s_waitcnt vmcnt(0)"); lbl("P_w0"); e("s_waitcnt vmcnt(6)")
        else:
            e(f"s_waitcnt vmcnt({3 if XE == 2 else 0})")
    else:
        e("s_waitcnt vmcnt(0)")
    st2()
    groups = []
    nyoung = 0
    if i == 0:
        gunpack(0)
        setvcc()
        groups = [None]*3 if W0UP else cond(capture(wdma, 0), "s_cbranch_vccz")
        xg = capture(xload, 1)
        if XE: groups += cond(xg, "s_cbranch_vccnz")
        else: groups += xg; nyoung = 3
    else:
        groups += capture(wdma, i)
        if i == 1: groups += capture(xload, 2); nyoung = 3
        if i == 2:
            xg = capture(xload, 3)
            if XE == 2: setvcc(); groups += cond(xg, "s_cbranch_vccz")
            else: groups += xg; nyoung = 3
    convert_with(i, groups)
    e(f"v_mov_b32 v19, {i+1}")
    if i == 0:
        e("s_cbranch_vccz P_r0")
        e(f"s_waitcnt vmcnt({nyoung})")
        lbl("P_r0")
    elif i == 2 and XE == 2:
        e("s_cbranch_vccz P_r2a"); e("s_waitcnt vmcnt(3)"); e("s_branch P_r2b"); lbl("P_r2a"); e("s_waitcnt vmcnt(0)"); lbl("P_r2b")
    else:
        e(f"s_waitcnt vmcnt({nyoung})")
    e("ds_write_b32 v16, v19")
    st2()
    if i+1 < len(LADDER): e(f"s_setprio {LADDER[i+1]}")
    if i == 0:
        spin(17, F_AUX, 18, 1)
        e("v_lshlrev_b32 v19, 1, v4")
        e(f"v_add_u32 v19, {GF32}, v19")
        for k in range(1, 5):
            e(f"s_lshl_b32 s43, s{54+k}, 1")
            e("v_add_u32 v18, s43, v19")
            e(f"ds_read_b128 v[{GF+8*k}:{GF+8*k+3}], v18")
            e(f"ds_read_b128 v[{GF+8*k+4}:{GF+8*k+7}], v18 offset:16")
        e("s_waitcnt lgkmcnt(0)")
    if i == 3:
        e("s_cmp_eq_u32 s47, 1"); e("s_cbranch_scc1 P_skipx4")
        xload(4)
        lbl("P_skipx4")
R = TP+8
def reduce8():
    e("s_nop 7")
    if M2:
        e("v_and_b32 v14, 3, v0")
        for k in range(1, 4): e(f"v_cmp_eq_u32 s[{74+2*k}:{75+2*k}], {k}, v14")
    for rg in range(3):
        S1 = SA + rg*8; S2 = S1 + 4
        if M1: e(f"v_mov_b32 v{TP+2*rg}, v{S1}")
        else: e(f"v_add_f32 v{TP+2*rg}, v{S1}, v{S1+1}")
        if M2:
            e(f"v_cndmask_b32 v{TP+2*rg+1}, v{S2}, v{S2+1}, s[76:77]")
            e(f"v_cndmask_b32 v{TP+2*rg+1}, v{TP+2*rg+1}, v{S2+2}, s[78:79]")
            e(f"v_cndmask_b32 v{TP+2*rg+1}, v{TP+2*rg+1}, v{S2+3}, s[80:81]")
        else: e(f"v_add_f32 v{TP+2*rg+1}, v{S2}, v{S2+1}")
    src, dst = TP, TP+8
    for mod in ["quad_perm:[1,0,3,2]", "quad_perm:[2,3,0,1]", "row_half_mirror"]:
        e("s_nop 1")
        for k in range(6): e(f"v_add_f32_dpp v{dst+k}, v{src+k}, v{src+k} {mod} row_mask:0xf bank_mask:0xf")
        src, dst = dst, src
    e("s_mul_i32 s42, s46, 192")
    e(f"s_add_u32 s42, s42, {STATT}")
    e("v_lshlrev_b32 v14, 3, v3")
    e("v_add_u32 v14, s42, v14")
    e("s_lshl_b32 s42, s46, 2")
    e(f"s_add_u32 s42, s42, {FLG+F_STATB}")
    e("v_mov_b32 v15, s42")
reduce8()
spin(15, 0, 18, 1)
for rg in range(3): e(f"ds_read_b64 v[{TP+2*rg}:{TP+2*rg+1}], v14 offset:{PART-STATT + rg*64}")
e("s_waitcnt lgkmcnt(0)")
for k in range(6): e(f"v_add_f32 v{R+k}, v{R+k}, v{TP+k}")
e("v_cmp_eq_u32 s[76:77], 1, v2")
e("v_cmp_eq_u32 s[78:79], 2, v2")
e("v_cmp_gt_u32 s[80:81], 3, v2")
e("v_lshl_add_u32 v14, v2, 6, v14")
e(f"v_cndmask_b32 v{R}, v{R}, v{R+2}, s[76:77]")
e(f"v_cndmask_b32 v{R+1}, v{R+1}, v{R+3}, s[76:77]")
e(f"v_cndmask_b32 v{R}, v{R}, v{R+4}, s[78:79]")
e(f"v_cndmask_b32 v{R+1}, v{R+1}, v{R+5}, s[78:79]")
finalize_stats([(R, R+1, TP)])
e("s_mov_b64 exec, s[80:81]")
e(f"ds_write_b64 v14, v[{R}:{R+1}]")
e("s_mov_b64 exec, -1")
e("v_mov_b32 v19, 5")
e("ds_write_b32 v16, v19 offset:16")
st2()
e("s_branch L_store")
lbl("P_odd_done")
reduce8()
for rg in range(3): e(f"ds_write_b64 v14, v[{R+2*rg}:{R+2*rg+1}] offset:{PART-STATT + rg*64}")
e("v_mov_b32 v19, 1")
e("ds_write_b32 v15, v19")
st2()

lbl("L_store")
e("s_sub_u32 s46, s36, 4")
e("s_cmp_eq_u32 s46, 7")
e("s_cbranch_scc0 L_st1")
exloads()
e(f"v_mov_b32 v{EX+16}, 0"); e(f"v_mov_b32 v{EX+17}, 0")
e("s_waitcnt vmcnt(0)")
for i in range(8):
    x = EX+i; a_, b_ = TP, TP+1
    e(f"v_lshlrev_b32 v{a_}, 16, v{x}")
    e(f"v_and_b32 v{b_}, s66, v{x}")
    e(f"v_add_f32 v{EX+16}, v{EX+16}, v{a_}")
    e(f"v_fmac_f32 v{EX+17}, v{a_}, v{a_}")
    e(f"v_add_f32 v{EX+16}, v{EX+16}, v{b_}")
    e(f"v_fmac_f32 v{EX+17}, v{b_}, v{b_}")
exstats()
e("s_waitcnt lgkmcnt(0)")
e("s_barrier")
e("s_branch L_fin")
lbl("L_st1")
e("s_add_u32 s47, s46, 1")
e("s_cmp_eq_u32 s46, 6")
e("s_cbranch_scc1 L_xrow")
e(f"v_mul_u32_u24 v8, {OUTP}, v3")
e(f"s_mul_i32 s48, s46, {16*OUTP}")
e(f"s_add_u32 s48, s48, {OUTT}")
e("v_add3_u32 v8, v8, v4, s48")
e(f"s_mul_i32 s48, s46, {16*1152}")
e("s_add_u32 s48, s48, s40")
e("s_add_u32 s48, s48, s41")
e("s_add_u32 s49, s48, 9216")
e("s_waitcnt lgkmcnt(0)")
e("s_barrier")
st2()
spin(17, F_OUT, 18, "s47")
st2()
for jj in range(6): e(f"ds_read_b128 v[{20+4*jj}:{23+4*jj}], v8 offset:{(jj//3)*8*OUTP + (jj%3)*128}")
for jj in range(6):
    e(f"s_waitcnt lgkmcnt({5-jj})")
    e(f"buffer_store_dwordx4 v[{20+4*jj}:{23+4*jj}], v5, s[32:35], s{48+jj//3} offen offset:{(jj%3)*128} {OFLAG}")
e("s_branch L_fin")
lbl("L_xrow")
e(f"v_add_u32 v6, {OUTT + 98*OUTP}, v1")
e("s_add_u32 s48, s37, 8160")
e("s_mul_i32 s48, s48, 1152")
e("s_add_u32 s48, s48, s41")
e("s_waitcnt lgkmcnt(0)")
e("s_barrier")
st2()
spin(17, F_OUT, 18, "s47")
st2()
e("s_mov_b64 exec, 0xffffff")
e("ds_read_b128 v[44:47], v6")
e("s_waitcnt lgkmcnt(0)")
e(f"buffer_store_dwordx4 v[44:47], v1, s[32:35], s48 offen {OFLAG}")
e("s_branch L_fin")

def exconv():
    e(f"v_add_u32 v14, {AUX + 2*AUXP}, v1")
    e(f"v_mov_b32 v{EX+16}, 0"); e(f"v_mov_b32 v{EX+17}, 0")
    e(f"s_waitcnt vmcnt({6 if EXC else 0})")
    for i in range(8):
        x = EX+i; g = EX+8+i; a, b, c, d = TP, TP+1, TP+2, TP+3
        e(f"v_lshlrev_b32 v{a}, 16, v{x}")
        e(f"v_and_b32 v{b}, s66, v{x}")
        e(f"v_lshlrev_b32 v{c}, 16, v{g}")
        e(f"v_and_b32 v{d}, s66, v{g}")
        e(f"v_add_f32 v{EX+16}, v{EX+16}, v{a}")
        e(f"v_fmac_f32 v{EX+17}, v{a}, v{a}")
        e(f"v_add_f32 v{EX+16}, v{EX+16}, v{b}")
        e(f"v_fmac_f32 v{EX+17}, v{b}, v{b}")
        e(f"v_mul_f32 v{a}, v{a}, v{c}")
        e(f"v_mul_f32 v{b}, v{b}, v{d}")
        e(f"v_cvt_pk_bf16_f32 v{x}, v{a}, v{b}")
    e(f"ds_write_b128 v14, v[{EX}:{EX+3}]")
    e(f"ds_write_b128 v14, v[{EX+4}:{EX+7}] offset:1024")
    e("v_mov_b32 v19, 1")
    e(f"v_mov_b32 v14, {FLG + F_AUX + 16}")
    e("ds_write_b32 v14, v19")
if not EXC:
    lbl("P_extra")
    exconv()
    e("s_branch P_l0")
ACC = 20; XF = 104; WF = 132
lbl("L_cons")
e(f"s_setprio {opt('c0prio', 0)}")
kappa_bases()
for t in range(1, 9): e(f"s_add_u32 s{76+t}, s{Bs[t//3]}, s{Rs[t%3]}")
e("s_mov_b32 s85, 0")
e("v_and_b32 v6, 3, v0")
e("v_lshlrev_b32 v6, 2, v6")
e(f"v_add_u32 v6, {FLG}, v6")
e("s_lshl_b32 s48, s36, 2")
e(f"s_add_u32 s48, s48, {FLG}")
e("v_mov_b32 v7, s48")
e("v_and_b32 v1, 15, v0")
e("v_lshrrev_b32 v2, 4, v0")
e("v_lshrrev_b32 v4, 2, v1")
e("v_sub_u32 v4, 0, v4")
e("v_xor_b32 v4, v4, v2")
e("v_and_b32 v4, 3, v4")
e("v_lshlrev_b32 v4, 4, v4")
e("v_lshl_add_u32 v13, v1, 6, v4")
e("v_bfe_u32 v4, v0, 2, 2")
e("v_lshl_add_u32 v5, v2, 3, v4")
e("v_lshlrev_b32 v5, 7, v5")
e("v_and_b32 v8, 3, v0")
e("v_lshl_add_u32 v5, v8, 3, v5")
e("v_lshrrev_b32 v4, 1, v4")
e("v_and_b32 v8, 1, v2")
e("v_lshl_or_b32 v4, v8, 1, v4")
e("v_xor_b32 v4, s36, v4")
e("v_lshl_add_u32 v5, v4, 5, v5")
e(f"v_add_u32 v14, {WOFF}, v5")
e("v_min_u32 v4, 2, v1")
e(f"v_mul_u32_u24 v4, {AUXP}, v4")
e("v_lshl_add_u32 v4, v2, 4, v4")
e(f"v_add_u32 v12, {AUX}, v4")
e("v_add_u32 v15, s54, v12")
e(f"v_add_u32 v16, {PS}, v13")
e(f"v_add_u32 v17, {PS}, v14")
e("v_and_b32 v9, 7, v0")
e("v_lshlrev_b32 v9, 2, v9")
e("v_and_b32 v11, 16, v9")
e("v_mul_u32_u24 v11, 3, v11")
e(f"v_add3_u32 v9, v9, v11, {0}")
e(f"v_add_u32 v9, {FLG}, v9")
e("v_mov_b32 v19, 0")
e("v_mov_b32 v8, 1")
e("s_mov_b32 s53, 1")
e("s_mov_b32 s52, 1")
def xread(par, sp, T, alt=0, aux=15):
    x = XF + T*4
    if T < 6: return f"ds_read_b128 v[{x}:{x+3}], v{16 if alt else 13} offset:{par*XS + sp*XH + T*1024}"
    return f"ds_read_b128 v[{x}:{x+3}], v{aux} offset:{sp*64}"
def wreads(par, sp, alt=0):
    r = []
    for t in range(3):
        w = WF + (sp*3+t)*4
        o = par*WS + t*8192 + sp*4096
        r.append(f"ds_read_b64_tr_b16 v[{w}:{w+1}], v{17 if alt else 14} offset:{o}")
        r.append(f"ds_read_b64_tr_b16 v[{w+2}:{w+3}], v{17 if alt else 14} offset:{o+512}")
    return r
def mf(sp, T, t):
    c = ACC + (T*3+t)*4; w = WF + (sp*3+t)*4; x = XF + T*4
    return f"v_mfma_f32_16x16x32_bf16 v[{c}:{c+3}], v[{w}:{w+3}], v[{x}:{x+3}], v[{c}:{c+3}]"
e("v_lshlrev_b32 v11, 1, v10")
e(f"v_add_u32 v11, {GF32}, v11")
e(f"v_add_u32 v10, {AUX + 2*AUXP}, v10")
e("s_waitcnt vmcnt(6)")
for k in range(2):
    a_, b_, c_, d_ = EX+4, EX+5, EX+6+2*k, EX+7+2*k
    e(f"v_lshlrev_b32 v{a_}, 16, v{EX+k}")
    e(f"v_and_b32 v{b_}, s66, v{EX+k}")
    e(f"v_lshlrev_b32 v{c_}, 16, v{EX+2+k}")
    e(f"v_and_b32 v{d_}, s66, v{EX+2+k}")
    e(f"v_mul_f32 v{a_}, v{a_}, v{c_}")
    e(f"v_mul_f32 v{b_}, v{b_}, v{d_}")
    e(f"v_cvt_pk_bf16_f32 v{EX+k}, v{a_}, v{b_}")
e("s_mov_b32 exec_hi, 0xf")
e(f"ds_write_b64 v10, v[{EX}:{EX+1}]")
e(f"ds_write_b128 v11, v[{EX+6}:{EX+9}]")
e("s_mov_b32 exec_hi, -1")
e("s_waitcnt vmcnt(0)")
e(f"ds_write_b32 v7, v8 offset:{F_AUX}")
e(f"s_setprio {CPRIO}")
st2()
spin(9, 0, 8, 1)
st2()
if DIAG: e("s_memrealtime s[88:89]"); e("s_waitcnt lgkmcnt(0)")
if STAMP == 2: e("s_memrealtime s[72:73]"); e("s_memtime s[74:75]"); e("s_waitcnt lgkmcnt(0)"); e("v_writelane_b32 v167, s72, 60"); e("v_writelane_b32 v167, s74, 58")
CHK = opt("chk", 1)
DNP = opt("dnp", 3)
def chunk_body(par):
    nx = 1-par; alt = par
    auxc = 15 if par == 0 else 18; auxn = 18 if par == 0 else 15
    body = []
    def need(sp, T): return [("x", sp, min(6, T + (WGRAN-1 if T % WGRAN == 0 else 0))), ("w", sp, 2)]
    w1 = wreads(par, 1)
    fill0 = {}
    if par == 0:
        fill0[0] = ["v_swap_b32 v13, v16"]; fill0[1] = ["v_swap_b32 v14, v17"]
    if opt("yabl", 0):
        for kk in (4, 8, 14, 18)[:(4 if par else 3)]:
            fill0.setdefault(kk, []).extend(["v_mfma_f32_16x16x32_bf16 v[156:159], v[160:163], v[160:163], v[156:159]", f"RD:ds_read_b128 v[160:163], v13 offset:{par*XS + kk*256}"])
    fill0[9] = ["s_mov_b32 m0, s52"]; fill0[10] = ["s_movrels_b32 s51, s76"]; fill0[12] = [f"v_add_u32 v{auxn}, s51, v12"]; fill0[13] = ["s_add_u32 s52, s52, 1"]
    if par == 1: fill0[15] = ["s_add_u32 s53, s53, 1"]; fill0[16] = ["s_mov_b32 s59, s53"]
    else: fill0[15] = ["s_min_u32 s59, s53, 4"]
    frpos = 3*(7+CHK) - 8
    for sp in range(2):
        wn = w1 if sp == 0 else wreads(nx, 0, alt)
        wstart = 3 if sp == 0 else 3*max(CHK, 1)
        pend = []
        for T in range(7):
            if sp == 1 and T == CHK: body.append(("chk", nx))
            if sp == 1 and T == DNP: body.append(("done",))
            for t in range(3):
                k = T*3+t
                body.append(("m", need(sp, T), mf(sp, T, t)))
                if sp == 0:
                    for it in fill0.get(k, []): body.append(("r", ("y",), it[3:]) if it.startswith("RD:") else ("x", it))
                if sp*21 + k == frpos: body.append(("r", ("f",), f"ds_read_b32 v8, v6 offset:{nx*16}"))
                if sp*21 + k == 3*(7+CHK) - 2: body.append(("cmp",))
                if sp == 1 and k == 3*DNP - 2: body.append(("x", "v_add_u32 v19, 1, v19"))
                if 0 <= k - wstart < 6: body.append(("r", ("w", 1-sp, (k-wstart)//2), wn[k-wstart]))
                elif pend and (sp == 0 or T >= CHK): body.append(pend.pop(0))
            rd = ("r", ("x", 1, T), xread(par, 1, T, 0, auxc)) if sp == 0 else ("r", ("x", 0, T), xread(nx, 0, T, alt, auxn))
            if sp == 0 or (T >= CHK and not pend): body.append(rd)
            else: pend.append(rd)
        while pend: body.append(pend.pop(0))
    return body
bodyA = chunk_body(0); bodyB = chunk_body(1)
bi = [i for i, it in enumerate(bodyB) if it[0] == "chk"][0]
init_reads = [it for it in bodyB[bi:] if it[0] == "r"]
for it in init_reads: e(it[2].replace("v16 ", "v13 ").replace("v17 ", "v14 "))
seq = [it[1] for it in init_reads]
lastwait = None
def waitfor(tags):
    global lastwait
    idx = max(max(i for i, tg in enumerate(seq) if tg == need) for need in tags)
    n = len(seq) - 1 - idx
    if lastwait is None or idx > lastwait:
        e(f"s_waitcnt lgkmcnt({min(n,15)})"); lastwait = idx
def emit(body):
    global out
    for it in body:
        if it[0] == "r":
            e(it[2]); seq.append(it[1])
        elif it[0] == "x":
            e(it[1])
        elif it[0] == "m":
            waitfor(it[1]); e(it[2])
        elif it[0] == "cmp":
            waitfor([("f",)])
            e("v_cmp_le_u32 vcc, s59, v8")
        elif it[0] == "chk":
            k = spin_id[0]; spin_id[0] += 1
            st2()
            e("s_cmp_eq_u64 vcc, exec")
            e(f"s_cbranch_scc0 SP_{k}")
            lbl(f"SP_ok{k}")
            st2()
            save = out; out = []
            lbl(f"SP_{k}")
            e(f"ds_read_b32 v8, v6 offset:{it[1]*16}")
            e("s_waitcnt lgkmcnt(0)")
            e("v_cmp_le_u32 vcc, s59, v8")
            if SAFE:
                e("s_add_u32 s68, s68, 1"); e("s_bitcmp1_b32 s68, 18"); e(f"s_cbranch_scc1 SP_ok{k}")
            e("s_cmp_eq_u64 vcc, exec")
            e(f"s_cbranch_scc0 SP_{k}")
            e(f"s_branch SP_ok{k}")
            deferred.extend(out); out = save
        elif it[0] == "done":
            waitfor([("x", 1, 6), ("w", 1, 2)])
            e(f"ds_write_b32 v7, v19 offset:{F_DONE}"); seq.append(("d",))
nm = 0; cut = None
for idx_, it in enumerate(bodyA):
    if it[0] == "m":
        if nm == 21: cut = idx_; break
        nm += 1
first = []
for it in bodyA[:cut]:
    if it[0] == "m":
        t_ = it[2]; first.append(("m", it[1], t_[:t_.rindex(",")] + ", 0"))
    elif it[0] == "x" and "v_swap" in it[1]: continue
    else: first.append(it)
emit(first)
e("s_branch C_mid")
lbl("C_loop")
seq = [it[1] for it in init_reads]; lastwait = None
emit(bodyA[:cut])
lbl("C_mid")
emit(bodyA[cut:])
e("s_cmp_eq_u32 s53, 5")
e("s_cbranch_scc1 C_epi")
emit(bodyB)
e("s_branch C_loop")
out.extend(deferred); deferred.clear()
lbl("C_epi")
if DIAG: e("s_memrealtime s[90:91]")
if STAMP == 2: e("s_memrealtime s[72:73]"); e("s_memtime s[74:75]"); e("s_waitcnt lgkmcnt(0)"); e("v_writelane_b32 v167, s72, 61"); e("v_writelane_b32 v167, s74, 59")
e("s_barrier")
e("s_waitcnt lgkmcnt(0)")
e(f"v_lshlrev_b32 v4, 3, v1")
e(f"v_add_u32 v4, {STATT}, v4")
ST = XF
for T in range(7): e(f"ds_read_b64 v[{ST+2*T}:{ST+2*T+1}], v4 offset:{T*128}")
e(f"v_mul_u32_u24 v5, {OUTP}, v1")
e("v_lshl_add_u32 v5, v2, 3, v5")
e("s_lshl_b32 s48, s36, 5")
e(f"s_add_u32 s48, s48, {OUTT}")
e("v_add_u32 v5, s48, v5")
C1 = XF+14; C2 = XF+26; TM = XF+38
for t in range(3):
    for r in range(4):
        a = ACC + (6*3+t)*4 + r
        e(f"v_mov_b32_dpp v{C1+t*4+r}, v{a} row_newbcast:0 row_mask:0xf bank_mask:0xf")
        e(f"v_mov_b32_dpp v{C2+t*4+r}, v{a} row_newbcast:1 row_mask:0xf bank_mask:0xf")
e("s_waitcnt lgkmcnt(0)")
n = 0
for T in range(7):
    st = ST+2*T
    for t in range(3):
        a = ACC + (T*3+t)*4
        tm = TM + (n % 3)*6; n += 1
        for h in range(2):
            e(f"v_pk_fma_f32 v[{tm+2*h}:{tm+2*h+1}], v[{C1+t*4+2*h}:{C1+t*4+2*h+1}], v[{st}:{st+1}], v[{C2+t*4+2*h}:{C2+t*4+2*h+1}] op_sel:[0,0,0] op_sel_hi:[1,0,1]")
        for h in range(2):
            e(f"v_pk_fma_f32 v[{tm+2*h}:{tm+2*h+1}], v[{a+2*h}:{a+2*h+1}], v[{st}:{st+1}], v[{tm+2*h}:{tm+2*h+1}] op_sel:[0,1,0] op_sel_hi:[1,1,1]")
        e(f"v_cvt_pk_bf16_f32 v{tm+4}, v{tm}, v{tm+1}")
        e(f"v_cvt_pk_bf16_f32 v{tm+5}, v{tm+2}, v{tm+3}")
        e(f"ds_write_b64 v5, v[{tm+4}:{tm+5}] offset:{T*16*OUTP + t*128}")
    e(f"v_mov_b32 v19, {T+1}")
    e(f"ds_write_b32 v7, v19 offset:{F_OUT}")
st2()
if DIAG in (2, 3):
    e("s_memrealtime s[92:93]"); e("s_waitcnt lgkmcnt(0)")
    if DIAG == 2: e("s_sub_u32 s94, s88, s86")
    else: e("s_sub_u32 s94, s90, s88")
    e("s_lshl_b32 s94, s94, 1")
    lbl("DG_a")
    e("s_memrealtime s[96:97]"); e("s_waitcnt lgkmcnt(0)")
    e("s_sub_u32 s95, s96, s92")
    e("s_cmp_lt_u32 s95, s94")
    e("s_cbranch_scc1 DG_a")
lbl("L_fin")
if DIAG == 1:
    e("s_waitcnt vmcnt(0)")
    e("s_memrealtime s[92:93]"); e("s_waitcnt lgkmcnt(0)")
    e("s_sub_u32 s94, s92, s86")
    lbl("DG_b")
    e("s_memrealtime s[96:97]"); e("s_waitcnt lgkmcnt(0)")
    e("s_sub_u32 s95, s96, s92")
    e("s_cmp_lt_u32 s95, s94")
    e("s_cbranch_scc1 DG_b")
if STAMP == 3:
    e("s_mov_b64 exec, -1")
    st2(); e("s_waitcnt vmcnt(0)"); st2()
    e("s_memrealtime s[74:75]")
    srd(56, 14, 256)
    e("v_readlane_b32 s72, v167, 62")
    e("s_waitcnt lgkmcnt(0)")
    e("s_cmp_lg_u32 s36, 9")
    e("s_cbranch_scc1 L_d2")
    e("s_sub_u32 s73, s74, s72")
    e("s_not_b32 s72, s72")
    e("v_mov_b32 v1, 0"); e("v_mov_b32 v2, s72"); e("v_mov_b32 v3, s74"); e("v_mov_b32 v4, s73")
    e("s_mov_b64 exec, 1")
    e("buffer_atomic_umax v2, v1, s[56:59], 0 offen")
    e("buffer_atomic_umax v3, v1, s[56:59], 0 offen offset:4")
    e("buffer_atomic_add v4, v1, s[56:59], 0 offen offset:8")
    e("s_branch L_end")
    lbl("L_d2")
    e("s_cmp_lg_u32 s2, 100")
    e("s_cbranch_scc1 L_end")
    e("s_cmp_lg_u32 s36, 0")
    e("s_cbranch_scc1 L_end")
    e("v_readlane_b32 s70, v167, 0")
    e("s_nop 3")
    e("v_subrev_u32 v167, s70, v167")
    e("v_lshlrev_b32 v1, 1, v0")
    e("v_add_u32 v1, 8, v1")
    e("s_mov_b32 exec_lo, 0x555554")
    e("s_mov_b32 exec_hi, 0")
    e("buffer_store_dword v167, v1, s[56:59], 0 offen")
if STAMP == 2:
    e("s_mov_b64 exec, -1")
    st2(); e("s_waitcnt vmcnt(0)"); st2()
    e("s_memrealtime s[72:73]"); e("s_memtime s[74:75]"); e("s_waitcnt lgkmcnt(0)"); e("v_writelane_b32 v167, s72, 63"); e("v_writelane_b32 v167, s74, 57")
    srd(56, 14, 1<<22)
    e("s_lshl_b32 s60, s2, 12")
    e("s_lshl_b32 s61, s36, 8")
    e("s_add_u32 s60, s60, s61")
    e("v_lshlrev_b32 v1, 2, v0")
    e("buffer_store_dword v167, v1, s[56:59], s60 offen")
lbl("L_end")

text = HDR + f"""; @launch grid=(256,1,1) block=({NW*64},1,1) lds={LDS_TOTAL}
.amdgcn_target "amdgcn-amd-amdhsa--gfx950"
.text
.globl {NAME}_kernel
.p2align 8
.type {NAME}_kernel,@function
{NAME}_kernel:
""" + "\n".join(out) + f"""
    s_endpgm
.section .rodata,"a"
.p2align 6
.amdhsa_kernel {NAME}_kernel
  .amdhsa_next_free_vgpr 168
  .amdhsa_next_free_sgpr 100
  .amdhsa_accum_offset 168
  .amdhsa_group_segment_fixed_size 0
  .amdhsa_kernarg_size 56
  .amdhsa_user_sgpr_count 2
  .amdhsa_user_sgpr_kernarg_segment_ptr 1
  .amdhsa_system_sgpr_workgroup_id_x 1
.end_amdhsa_kernel
"""
open(sys.argv[1], "w").write(text)
```

```python
import sys
NAME = "standalone__layernorm_linear__sampling"
opts = dict(a.split("=", 1) for a in sys.argv[2:] if "=" in a)
def opt(k, d): return type(d)(opts.get(k, d))
STAMP = opt("stamp", 0)
STATS = opt("stats", "plain")
XFLAG = opt("xflag", ""); WFLAG = opt("wflag", ""); OFLAG = opt("oflag", "nt")
BARPOS = opt("barpos", 3)
PPRIO = opt("pprio", 0); P0PRIO = opt("p0prio", 2); CPRIO = opt("cprio", 1)
ROT = opt("rot", 3); SAFE = opt("safe", 1); WGRAN = opt("wgran", 2)
SPAN = opt("span", 1.0); X1MODE = opt("x1mode", 1); ROLEPERM = opt("roleperm", 1)
NW = 12
out = []
def e(s): out.append("    " + s)
def lbl(s): out.append(s + ":")
HDR = open("cdna_kernels/%s.s.ref" % NAME).read().split("; Override launch")[0]

XH = 6208; XS = 12416; WS = 24576; WOFF = 2*XS; PS = 2*XS + 2*WS
AUX = 2*PS; AUXP = 2080
STATT = AUX + 3*AUXP
PART = STATT + 896
FLG = (PART + 768 + 127)//128*128
LDS_TOTAL = FLG + 128
OUTT = PS; OUTP = 400
GF32 = FLG + 128
LDS_TOTAL = GF32 + 2304
F_DONE, F_STATB, F_AUX, F_OUT, F_CONV = 32, 48, 64, 80, 96
SER = opt("ser", 0)
PF = 0
B0 = opt("b0", 1)
CVPRIO = opt("cvprio", -1); CVPRIO = None if CVPRIO < 0 else CVPRIO

def st2(force=False):
    if STAMP not in (2, 3): return
    if opt("light", 0) and not force: return
    e("s_memtime s[70:71]")
    e("s_waitcnt lgkmcnt(0)")
    e("s_mov_b32 m0, s69"); e("s_nop 0"); e("v_writelane_b32 v167, s70, m0")
    e("s_add_u32 s69, s69, 1")
def srd(d, b, n):
    e(f"s_mov_b32 s{d}, s{b}")
    e(f"s_and_b32 s{d+1}, s{b+1}, 0xffff")
    e(f"s_mov_b32 s{d+2}, {n}")
    e(f"s_mov_b32 s{d+3}, 0x00020000")
def finalize_stats(trips):
    seq = [
     "v_mul_f32 v{m}, 0x3ae38e39, v{m}",
     "v_mul_f32 v{q}, 0x3ae38e39, v{q}",
     "v_fma_f32 v{q}, -v{m}, v{m}, v{q}",
     "v_max_f32 v{q}, 0, v{q}",
     "v_add_f32 v{m}, v{m}, v{p}",
     "v_cvt_pk_bf16_f32 v{t}, v{m}, v{q}",
     "v_lshlrev_b32 v{m}, 16, v{t}",
     "v_sub_f32 v{m}, v{p}, v{m}",
     "v_and_b32 v{q}, 0xffff0000, v{t}",
     "v_add_f32 v{q}, 0x3727c5ac, v{q}",
     "v_cvt_pk_bf16_f32 v{t}, v{q}, v{q}",
     "v_lshlrev_b32 v{q}, 16, v{t}",
     "v_sqrt_f32 v{q}, v{q}",
     "NOP",
     "v_cvt_pk_bf16_f32 v{t}, v{q}, v{q}",
     "v_lshlrev_b32 v{q}, 16, v{t}",
     "v_rcp_f32 v{q}, v{q}",
     "NOP",
     "v_mul_f32 v{m}, v{m}, v{q}"]
    for s in seq:
        if s == "NOP": e("s_nop 0"); continue
        for (m, q, t, p) in trips: e(s.format(m=m, q=q, t=t, p=p))
spin_id = [0]
deferred = []
def spin(vaddr, off, vtmp, sneed, preread=False):
    global out
    k = spin_id[0]; spin_id[0] += 1
    save = None
    if preread:
        e(f"v_cmp_le_u32 vcc, {sneed}, v{vtmp}")
        e("s_cmp_eq_u64 vcc, exec")
        e(f"s_cbranch_scc0 SP_{k}")
        lbl(f"SP_ok{k}")
        save = out; out = []
    lbl(f"SP_{k}")
    if opt("slp", 0) and not preread: e(f"s_sleep {opt('slp', 0)}")
    e(f"ds_read_b32 v{vtmp}, v{vaddr} offset:{off}")
    e("s_waitcnt lgkmcnt(0)")
    e(f"v_cmp_le_u32 vcc, {sneed}, v{vtmp}")
    if SAFE:
        e("s_add_u32 s68, s68, 1")
        e("s_bitcmp1_b32 s68, 18")
        e(f"s_cbranch_scc1 SP_ok{k}")
    e("s_cmp_eq_u64 vcc, exec")
    e(f"s_cbranch_scc0 SP_{k}")
    if preread:
        e(f"s_branch SP_ok{k}")
        deferred.extend(out); out = save
    else:
        lbl(f"SP_ok{k}")

e("s_cmp_ge_u32 s2, 255")
e("s_cbranch_scc1 L_end")
if STAMP in (2, 3):
    e("s_mov_b32 s69, 0"); e("v_mov_b32 v167, 0"); e("s_memrealtime s[72:73]"); st2(True); e("v_writelane_b32 v167, s72, 62")
DIAG = opt("diag", 0)
if DIAG: e("s_memrealtime s[86:87]")
e("v_readfirstlane_b32 s36, v0")
e("v_and_b32 v0, 63, v0")
e("s_nop 2")
e("s_cmp_lt_u32 s36, 704")
e("s_cbranch_scc1 L_nz")
e("v_lshlrev_b32 v10, 2, v0")
e("v_mov_b32 v11, 0")
e(f"v_add_u32 v10, {FLG - 128}, v10")
e("ds_write_b32 v10, v11")
e("s_waitcnt lgkmcnt(0)")
lbl("L_nz")
e("s_load_dwordx2 s[16:17], s[0:1], 0")
e("s_load_dwordx2 s[20:21], s[0:1], 8")
e("s_load_dwordx2 s[28:29], s[0:1], 24")
e("s_load_dwordx2 s[60:61], s[0:1], 16")
e("s_load_dwordx2 s[32:33], s[0:1], 32")
if STAMP: e(f"s_load_dwordx2 s[14:15], s[0:1], {48 if STAMP == 2 else 40}")
e("s_barrier")
LADDER = opt("ladder", "3210")
e(f"s_setprio {LADDER[0]}")
e("s_and_b32 s3, s2, 7")
e("s_lshr_b32 s40, s2, 3")
e("s_lshl1_add_u32 s41, s3, s40")
e("s_sub_u32 s41, s41, 30")
e("s_mul_i32 s42, s3, 10")
e("s_cmp_ge_u32 s40, 30")
e("s_cselect_b32 s40, s41, s40")
e("s_cselect_b32 s42, 80, s42")
e("s_mul_i32 s39, s40, 43")
e("s_lshr_b32 s39, s39, 7")
e("s_mul_i32 s43, s39, 3")
e("s_sub_u32 s38, s40, s43")
e("s_add_u32 s37, s42, s39")
e("s_lshr_b32 s36, s36, 6")
e("s_lshr_b32 s47, s36, 3")
e("s_and_b32 s46, s36, 3")
e("s_lshr_b32 s27, s39, 2")
e("s_add_u32 s27, s27, s38")
if ROT == 0: e("s_mov_b32 s27, 0")
e("s_add_u32 s54, s27, s47")
e("s_sub_u32 s43, s54, 3")
e("s_min_u32 s54, s54, s43")
e("s_lshl_b32 s54, s54, 7")
e(f"s_mul_i32 s40, s37, {96*1152}")
e(f"s_mul_i32 s42, s46, {24*1152}")
e("s_add_u32 s44, s40, s42")
e("v_and_b32 v2, 7, v0")
e("v_lshrrev_b32 v3, 3, v0")
e("v_lshlrev_b32 v4, 4, v2")
e("v_mul_u32_u24 v8, 1152, v3")
e("v_add_u32 v5, v8, v4")
e("v_add_u32 v6, 9216, v5")
e("v_add_u32 v7, 18432, v5")
e(f"s_mov_b32 s18, {8192*1152}")
e("s_mov_b32 s19, 0x00020000")
e("s_movk_i32 s22, 1152")
e("s_mov_b32 s23, 0x00020000")
e(f"s_mov_b32 s30, {576*1152}")
e("s_mov_b32 s31, 0x00020000")
e("s_bitcmp1_b32 s36, 2")
e("s_cbranch_scc1 P_l2")

XR = 20; GP = 56; GF = 64; SA = 104; TP = 128; ON = 144; EX = 146
XE = opt("xe", 0)
XB = [0, 1, 0, 2, 0] if XE == 2 else [0, 1, 0, 1, 0]
vm = []
def gload(i):
    e(f"buffer_load_dwordx4 v[{GP+4*i}:{GP+4*i+3}], v4, s[20:23], s{54+i} offen"); vm.append(("g", i))
def xload(i):
    e(f"s_add_u32 s67, s44, s{54+i}")
    for rg in range(3):
        r = XR + XB[i]*12 + rg*4
        e(f"buffer_load_dwordx4 v[{r}:{r+3}], v{5+rg}, s[16:19], s67 offen {XFLAG}"); vm.append(("x", i))
def wdma(i):
    so = (i % 2)*PS
    e(f"s_mul_i32 s43, s{54+i}, 576")
    e("s_add_u32 s43, s43, s45")
    e("s_add_u32 s42, s43, 9216")
    for c in range(3):
        for gg in range(2):
            e(f"s_add_u32 m0, s{89+c}, {so + gg*1024}")
            e(f"s_add_u32 s65, s{43-gg}, s{86+c}" if False else f"s_add_u32 s92, s{43-gg}, s{86+c}")
            e(f"buffer_load_dwordx4 v{8+gg}, s[28:31], s92 offen {WFLAG} lds"); vm.append(("w", i))
def wait_min(tags):
    last = max(k for k, t in enumerate(vm) if t in tags)
    n = len([t for t in vm[last+1:] if t[1] != 4]) if tags[0][1] != 4 else len(vm)-1-last
    e(f"s_waitcnt vmcnt({min(n,63)})")
def kappa_bases():
    e("s_sub_u32 s43, s27, 3")
    e("s_min_u32 s27, s27, s43")
    e("s_lshl_b32 s27, s27, 7")
    for k, pk in ((64, 27), (65, 64)):
        e(f"s_add_u32 s{k}, s{pk}, 128")
        e(f"s_cmp_eq_u32 s{k}, 384")
        e(f"s_cselect_b32 s{k}, 0, s{k}")
    e("s_mov_b32 s24, 0")
    e("s_bitcmp1_b32 s39, 0")
    if ROT == 0: e("s_cmp_eq_u32 s24, 1")
    e("s_cselect_b32 s25, 2, 1")
    e("s_mulk_i32 s25, 384")
    e("s_sub_u32 s26, 1152, s25")
Bs = [24, 25, 26]; Rs = [27, 64, 65]
def wparams():
    e("v_and_b32 v9, 16, v0")
    e("v_lshlrev_b32 v9, 1, v9")
    e("v_xor_b32 v8, v5, v9")
    e("v_xor_b32 v9, 64, v8")
    e("s_mul_i32 s41, s38, 384")
    e(f"s_mul_i32 s42, s46, {16*1152}")
    e("s_add_u32 s45, s41, s42")
    e("s_lshl_b32 s49, s46, 11")
    e(f"s_mul_i32 s42, s47, {WS}")
    e("s_add_u32 s49, s49, s42")
    e(f"s_add_u32 s49, s49, {WOFF}")
    e("s_and_b32 s3, s39, 3")
    e("s_bcnt1_i32_b32 s3, s3")
    e("s_lshl_b32 s86, s3, 7")
    for k in (87, 88):
        e(f"s_add_u32 s{k}, s{k-1}, 128")
        e(f"s_cmp_eq_u32 s{k}, 384")
        e(f"s_cselect_b32 s{k}, 0, s{k}")
    for k in range(3):
        e(f"s_lshl_b32 s{89+k}, s{86+k}, 6")
        e(f"s_add_u32 s{89+k}, s{89+k}, s49")
EXC = 1
def exloads():
    e("s_add_u32 s48, s37, 8160")
    e("s_mul_i32 s48, s48, 1152")
    e("s_mov_b32 s60, s16")
    e("s_mov_b32 s61, s17")
    e("s_add_u32 s62, s48, 1152")
    e(f"s_min_u32 s62, s62, {8192*1152}")
    e("s_mov_b32 s63, 0x00020000")
    e(f"buffer_load_dwordx4 v[{EX}:{EX+3}], v1, s[60:63], s48 offen")
    e(f"buffer_load_dwordx4 v[{EX+4}:{EX+7}], v1, s[60:63], s48 offen offset:1024")
W0UP = 1
PV = 60
e("s_sub_u32 s43, s27, 3")
e("s_min_u32 s43, s27, s43")
e("s_lshl_b32 s43, s43, 7")
e("s_add_u32 s43, s43, s44")
e("s_waitcnt lgkmcnt(0)")
gload(0); xload(0)
e(f"buffer_load_dword v{PV}, v8, s[16:19], s43 offen")
e("s_add_u32 s42, s43, 9216")
e(f"buffer_load_dword v{PV+1}, v8, s[16:19], s42 offen")
e("s_add_u32 s43, s43, 18432")
e(f"buffer_load_dword v{PV+2}, v8, s[16:19], s43 offen")
lbl("P_l2")
wparams()
e("s_waitcnt lgkmcnt(0)")
e("s_cmp_lt_u32 s36, 4")
e("s_cbranch_scc1 P_l1")
e("s_bitcmp1_b32 s36, 2")
e("s_cbranch_scc0 C_a0")
e("v_lshlrev_b32 v1, 4, v0")
e("s_add_u32 s48, s37, 8160")
e("s_mul_i32 s48, s48, 1152")
e("s_mul_i32 s42, s46, 288")
e("v_lshlrev_b32 v10, 3, v0")
e("v_add_u32 v10, s42, v10")
e(f"buffer_load_dwordx2 v[{EX}:{EX+1}], v10, s[16:19], s48 offen")
e(f"buffer_load_dwordx2 v[{EX+2}:{EX+3}], v10, s[20:23], 0 offen")
e(f"buffer_load_dword v{EX+10}, off, s[16:19], s48")
e("s_cmp_ge_u32 s46, 2")
e("s_cbranch_scc1 C_a0")
e("s_cmp_eq_u32 s46, 1")
e("s_cselect_b32 s60, s60, s20")
e("s_cselect_b32 s61, s61, s21")
e("s_movk_i32 s62, 1152")
e("s_mov_b32 s63, 0x00020000")
e(f"s_mul_i32 s48, s46, {AUXP}")
e(f"s_add_u32 m0, s48, {AUX}")
e("s_nop 0")
e("buffer_load_dwordx4 v1, s[60:63], 0 offen lds")
e("buffer_load_dwordx4 v1, s[60:63], 0 offen offset:1024 lds")
lbl("C_a0")
n0 = len(vm); wdma(0); del vm[n0:]
e("s_bitcmp1_b32 s36, 2")
e("s_cbranch_scc1 L_cons")

lbl("P_l1")
e("s_xor_b32 s42, s36, 4")
e("s_cmp_lt_u32 s36, 8")
e("s_cselect_b32 s36, s42, s36")
e("v_lshlrev_b32 v1, 4, v0")
e("s_mov_b32 s68, 0")
e("s_mov_b32 s66, 0xffff0000")
kappa_bases()
for i in range(1, 5):
    t0, t1 = 2*i, min(2*i+1, 8)
    e(f"s_add_u32 s42, s{Bs[t0//3]}, s{Rs[t0%3]}")
    e(f"s_add_u32 s43, s{Bs[t1//3]}, s{Rs[t1%3]}")
    e("s_cmp_eq_u32 s47, 1")
    e(f"s_cselect_b32 s{54+i}, s43, s42")
if XE:
    e("s_cbranch_scc0 P_nx1")
    n0 = len(vm); xload(1); del vm[n0:]
    if XE == 2: e("s_branch P_nx2")
    lbl("P_nx1")
    if XE == 2:
        n0 = len(vm); xload(3); del vm[n0:]
        lbl("P_nx2")
e(f"s_mov_b32 s34, {8192*1152}")
e("s_mov_b32 s35, 0x00020000")
e("v_lshrrev_b32 v10, 2, v3")
e("v_sub_u32 v10, 0, v10")
e("v_xor_b32 v10, v10, v2")
e("v_and_b32 v10, 3, v10")
e("v_lshlrev_b32 v10, 4, v10")
e("v_lshl_add_u32 v10, v3, 6, v10")
e("v_lshrrev_b32 v11, 2, v2")
e(f"v_mul_u32_u24 v11, {XH}, v11")
e("s_and_b32 s43, s46, 1")
e("s_lshl_b32 s43, s43, 5")
e("v_xor_b32 v10, s43, v10")
e("s_mul_i32 s42, s46, 1536")
e(f"s_mul_i32 s43, s47, {XS}")
e("s_add_u32 s42, s42, s43")
e("v_xor_b32 v12, 32, v10")
e("v_add3_u32 v10, v10, v11, s42")
e("v_add3_u32 v11, v12, v11, s42")
e(f"v_add_u32 v12, {PS}, v10")
e(f"v_add_u32 v13, {PS}, v11")
e("s_lshl_b32 s42, s47, 4")
e("s_lshl_b32 s43, s46, 2")
e("s_add_u32 s42, s42, s43")
e(f"s_add_u32 s42, s42, {FLG}")
e("v_mov_b32 v16, s42")
e("v_xor_b32 v15, 16, v16")
e(f"v_add_u32 v15, {F_CONV}, v15")
e("v_and_b32 v17, 3, v0")
e("v_lshlrev_b32 v17, 2, v17")
e(f"v_add_u32 v17, {FLG}, v17")
M1 = STATS in ("mfma", "mfma1"); M2 = STATS in ("mfma", "mfma2")
DB = STATS == "db"

def exstats():
    src, dst = EX+16, EX+18
    for mod in ["quad_perm:[1,0,3,2]", "quad_perm:[2,3,0,1]", "row_half_mirror", "row_mirror"]:
        e("s_nop 1")
        e(f"v_add_f32_dpp v{dst}, v{src}, v{src} {mod} row_mask:0xf bank_mask:0xf")
        e(f"v_add_f32_dpp v{dst+1}, v{src+1}, v{src+1} {mod} row_mask:0xf bank_mask:0xf")
        src, dst = dst, src
    e("s_nop 1")
    for r, base in ((src, 76), (src+1, 80)):
        for k in range(4): e(f"v_readlane_b32 s{base+k}, v{r}, {16*k}")
    e("s_nop 3")
    for r, base in ((src, 76), (src+1, 80)):
        e(f"v_mov_b32 v{r}, s{base}")
        for k in range(1, 4): e(f"v_add_f32 v{r}, s{base+k}, v{r}")
    finalize_stats([(src, src+1, TP, EX+8)])
    e(f"v_mov_b32 v14, {STATT + 98*8}")
    e(f"ds_write_b64 v14, v[{src}:{src+1}]")
if not EXC:
    e("s_cmp_lg_u32 s36, 8")
    e("s_cbranch_scc1 P_noex")
    exstats()
lbl("P_noex")

def gunpack(i):
    for k in range(4):
        e(f"v_lshlrev_b32 v{GF+8*i+2*k}, 16, v{GP+4*i+k}")
        e(f"v_and_b32 v{GF+8*i+2*k+1}, s66, v{GP+4*i+k}")
def convert(i):
    gf = GF + 8*i
    for rg in range(3):
        regs = [XR + XB[i]*12 + rg*4 + k for k in range(4)]
        S1 = SA + rg*8; S2 = S1 + 4
        tb = TP + (rg % 2)*8
        mm = []
        for h in range(2):
            x = regs[2*h]
            if M1: mm.append(f"v_mfma_f32_4x4x4_16b_bf16 v[{S1}:{S1+3}], v[{ON}:{ON+1}], v[{x}:{x+1}], v[{S1}:{S1+3}]")
            if M2: mm.append(f"v_mfma_f32_4x4x4_16b_bf16 v[{S2}:{S2+3}], v[{x}:{x+1}], v[{x}:{x+1}], v[{S2}:{S2+3}]")
        for k in range(4):
            if mm and (len(mm) == 4 or k % 2 == 0 or (M1 and M2)): e(mm.pop(0))
            e(f"v_lshlrev_b32 v{tb+2*k}, 16, v{regs[k]}")
            e(f"v_and_b32 v{tb+2*k+1}, s66, v{regs[k]}")
        assert not mm
        for k in range(8): e(f"v_sub_f32 v{tb+k}, v{tb+k}, v{PV+rg}")
        for k in range(4):
            lo, hi = tb+2*k, tb+2*k+1
            if DB or opt("yabl", 0): continue
            if i == 0 and k == 0:
                e(f"v_add_f32 v{S1}, v{lo}, v{hi}")
                e(f"v_mul_f32 v{S2}, v{lo}, v{lo}")
                e(f"v_mul_f32 v{S2+1}, v{hi}, v{hi}")
            elif i == 0 and k == 1:
                e(f"v_add_f32 v{S1+1}, v{lo}, v{hi}")
                e(f"v_fmac_f32 v{S2}, v{lo}, v{lo}")
                e(f"v_fmac_f32 v{S2+1}, v{hi}, v{hi}")
            else:
                e(f"v_add_f32 v{S1}, v{S1}, v{lo}")
                e(f"v_add_f32 v{S1+1}, v{S1+1}, v{hi}")
                e(f"v_fmac_f32 v{S2}, v{lo}, v{lo}")
                e(f"v_fmac_f32 v{S2+1}, v{hi}, v{hi}")
        for k in range(4):
            lo, hi = tb+2*k, tb+2*k+1
            e(f"v_mul_f32 v{lo}, v{lo}, v{gf+2*k}")
            e(f"v_mul_f32 v{hi}, v{hi}, v{gf+2*k+1}")
        for k in range(4):
            e(f"v_cvt_pk_bf16_f32 v{regs[k]}, v{tb+2*k}, v{tb+2*k+1}")
        if opt("w64", 0):
            e(f"ds_write_b64 v{10+2*(i%2)+(rg&1)}, v[{regs[0]}:{regs[1]}] offset:{rg*512}")
            e(f"ds_write_b64 v{10+2*(i%2)+(rg&1)}, v[{regs[2]}:{regs[3]}] offset:{rg*512+8}")
        else:
            e(f"ds_write_b128 v{10+2*(i%2)+(rg&1)}, v[{regs[0]}:{regs[3]}] offset:{rg*512}")
def capture(fn, *args):
    global out
    save = out; out = []; n0 = len(vm)
    fn(*args)
    lines = out; out = save
    tags = vm[n0:]; del vm[n0:]
    groups = []; cur = []
    for l in lines:
        cur.append(l)
        if "buffer_load" in l: groups.append((cur, tags[len(groups)])); cur = []
    assert not cur
    return groups
def convert_with(i, groups):
    global out
    save = out; out = []
    convert(i)
    lines = out; out = save
    if opt("wend", 0):
        lines = [l for l in lines if "ds_write" not in l] + (["    s_waitcnt vmcnt(%d)" % (3 if i in (1, 2) else 0)] if opt("wend", 0) == 2 and i >= 1 else []) + [l for l in lines if "ds_write" in l]
    if opt("novalu", 0) and i >= 1: lines = [l for l in lines if "ds_write" in l] + ["    s_nop 0"]*40
    if opt("nowr", 0) and i >= 1: lines = [l for l in lines if "ds_write" not in l]
    if opt("nodma", 0) and i >= 2:
        groups = [([l.replace("buffer_load_dwordx4 v8", "buffer_load_dwordx4 v[148:151], v8").replace("buffer_load_dwordx4 v9", "buffer_load_dwordx4 v[148:151], v9").replace(" lds", "") for l in g[0]], g[1]) if g is not None else None for g in groups]
    if opt("novm", 0) and i >= 2:
        groups = [([l for l in g[0] if "buffer_load" not in l], g[1]) if g is not None else None for g in groups]
    if not groups:
        out.extend(lines); return
    step = max(1, int((len(lines) - 8) * SPAN) // len(groups))
    gi = 0
    for k, l in enumerate(lines):
        if gi < len(groups) and k == gi*step:
            if groups[gi] is not None:
                out.extend(groups[gi][0]); vm.append(groups[gi][1])
            gi += 1
        out.append(l)
    assert gi == len(groups)
st2()
skid = [0]
def cond(groups, br):
    r = []
    for gr in groups:
        if gr is None: r.append(None); continue
        skid[0] += 1
        r.append(([f"    {br} P_sk{skid[0]}"] + gr[0] + [f"P_sk{skid[0]}:"], gr[1]))
    return r
def setvcc():
    e("s_cmp_eq_u32 s47, 1"); e("s_cselect_b64 vcc, -1, 0")
for i in range(5):
    if i == 4:
        e("s_cmp_eq_u32 s47, 1")
        e("s_cbranch_scc1 P_odd_done")
    if i >= 2:
        e(f"s_add_u32 s43, s47, {2*(i-2)+1}")
        spin(17, F_DONE, 18, "s43")
    if i == 0:
        if XE == 1:
            e("s_cmp_eq_u32 s47, 0"); e("s_cbranch_scc0 P_w0"); e("s_waitcnt vmcnt(0)"); lbl("P_w0"); e("s_waitcnt vmcnt(3)")
        elif W0UP:
            e("s_cmp_eq_u32 s47, 0"); e("s_cbranch_scc0 P_w0"); e("s_waitcnt vmcnt(0)"); lbl("P_w0"); e("s_waitcnt vmcnt(6)")
        else:
            e(f"s_waitcnt vmcnt({3 if XE == 2 else 0})")
    else:
        e("s_waitcnt vmcnt(0)")
    st2()
    groups = []
    nyoung = 0
    if i == 0:
        gunpack(0)
        for rg in range(3): e(f"v_lshlrev_b32 v{PV+rg}, 16, v{PV+rg}")
        setvcc()
        groups = [None]*3 if W0UP else cond(capture(wdma, 0), "s_cbranch_vccz")
        xg = capture(xload, 1)
        if XE: groups += cond(xg, "s_cbranch_vccnz")
        else: groups += xg; nyoung = 3
    else:
        groups += capture(wdma, i)
        if i == 1: groups += capture(xload, 2); nyoung = 3
        if i == 2:
            xg = capture(xload, 3)
            if XE == 2: setvcc(); groups += cond(xg, "s_cbranch_vccz")
            else: groups += xg; nyoung = 3
    convert_with(i, groups)
    e(f"v_mov_b32 v19, {i+1}")
    if i == 0:
        e("s_cbranch_vccz P_r0")
        e(f"s_waitcnt vmcnt({nyoung})")
        lbl("P_r0")
    elif i == 2 and XE == 2:
        e("s_cbranch_vccz P_r2a"); e("s_waitcnt vmcnt(3)"); e("s_branch P_r2b"); lbl("P_r2a"); e("s_waitcnt vmcnt(0)"); lbl("P_r2b")
    else:
        e(f"s_waitcnt vmcnt({nyoung})")
    e("ds_write_b32 v16, v19")
    st2()
    if i+1 < len(LADDER): e(f"s_setprio {LADDER[i+1]}")
    if i == 0:
        spin(17, F_AUX, 18, 1)
        e("v_lshlrev_b32 v19, 1, v4")
        e(f"v_add_u32 v19, {GF32}, v19")
        for k in range(1, 5):
            e(f"s_lshl_b32 s43, s{54+k}, 1")
            e("v_add_u32 v18, s43, v19")
            e(f"ds_read_b128 v[{GF+8*k}:{GF+8*k+3}], v18")
            e(f"ds_read_b128 v[{GF+8*k+4}:{GF+8*k+7}], v18 offset:16")
        e("s_waitcnt lgkmcnt(0)")
    if i == 3:
        e("s_cmp_eq_u32 s47, 1"); e("s_cbranch_scc1 P_skipx4")
        xload(4)
        lbl("P_skipx4")
R = TP+8
def reduce8():
    e("s_nop 7")
    if M2:
        e("v_and_b32 v14, 3, v0")
        for k in range(1, 4): e(f"v_cmp_eq_u32 s[{74+2*k}:{75+2*k}], {k}, v14")
    for rg in range(3):
        S1 = SA + rg*8; S2 = S1 + 4
        if M1: e(f"v_mov_b32 v{TP+2*rg}, v{S1}")
        else: e(f"v_add_f32 v{TP+2*rg}, v{S1}, v{S1+1}")
        if M2:
            e(f"v_cndmask_b32 v{TP+2*rg+1}, v{S2}, v{S2+1}, s[76:77]")
            e(f"v_cndmask_b32 v{TP+2*rg+1}, v{TP+2*rg+1}, v{S2+2}, s[78:79]")
            e(f"v_cndmask_b32 v{TP+2*rg+1}, v{TP+2*rg+1}, v{S2+3}, s[80:81]")
        else: e(f"v_add_f32 v{TP+2*rg+1}, v{S2}, v{S2+1}")
    src, dst = TP, TP+8
    for mod in ["quad_perm:[1,0,3,2]", "quad_perm:[2,3,0,1]", "row_half_mirror"]:
        e("s_nop 1")
        for k in range(6): e(f"v_add_f32_dpp v{dst+k}, v{src+k}, v{src+k} {mod} row_mask:0xf bank_mask:0xf")
        src, dst = dst, src
    e("s_mul_i32 s42, s46, 192")
    e(f"s_add_u32 s42, s42, {STATT}")
    e("v_lshlrev_b32 v14, 3, v3")
    e("v_add_u32 v14, s42, v14")
    e("s_lshl_b32 s42, s46, 2")
    e(f"s_add_u32 s42, s42, {FLG+F_STATB}")
    e("v_mov_b32 v15, s42")
reduce8()
spin(15, 0, 18, 1)
for rg in range(3): e(f"ds_read_b64 v[{TP+2*rg}:{TP+2*rg+1}], v14 offset:{PART-STATT + rg*64}")
e("s_waitcnt lgkmcnt(0)")
for k in range(6): e(f"v_add_f32 v{R+k}, v{R+k}, v{TP+k}")
e("v_cmp_eq_u32 s[76:77], 1, v2")
e("v_cmp_eq_u32 s[78:79], 2, v2")
e("v_cmp_gt_u32 s[80:81], 3, v2")
e("v_lshl_add_u32 v14, v2, 6, v14")
e(f"v_cndmask_b32 v{R}, v{R}, v{R+2}, s[76:77]")
e(f"v_cndmask_b32 v{R+1}, v{R+1}, v{R+3}, s[76:77]")
e(f"v_cndmask_b32 v{R}, v{R}, v{R+4}, s[78:79]")
e(f"v_cndmask_b32 v{R+1}, v{R+1}, v{R+5}, s[78:79]")
e(f"v_cndmask_b32 v{PV}, v{PV}, v{PV+1}, s[76:77]")
e(f"v_cndmask_b32 v{PV}, v{PV}, v{PV+2}, s[78:79]")
finalize_stats([(R, R+1, TP, PV)])
e("s_mov_b64 exec, s[80:81]")
e(f"ds_write_b64 v14, v[{R}:{R+1}]")
e("s_mov_b64 exec, -1")
e("v_mov_b32 v19, 5")
e("ds_write_b32 v16, v19 offset:16")
st2()
e("s_branch L_store")
lbl("P_odd_done")
reduce8()
for rg in range(3): e(f"ds_write_b64 v14, v[{R+2*rg}:{R+2*rg+1}] offset:{PART-STATT + rg*64}")
e("v_mov_b32 v19, 1")
e("ds_write_b32 v15, v19")
st2()

lbl("L_store")
e("s_sub_u32 s46, s36, 4")
e("s_cmp_eq_u32 s46, 7")
e("s_cbranch_scc0 L_st1")
exloads()
e(f"buffer_load_dword v{EX+8}, off, s[60:63], s48")
e(f"v_mov_b32 v{EX+16}, 0"); e(f"v_mov_b32 v{EX+17}, 0")
e("s_waitcnt vmcnt(0)")
e(f"v_lshlrev_b32 v{EX+8}, 16, v{EX+8}")
for i in range(8):
    x = EX+i; a_, b_ = TP, TP+1
    if i == 4: e("s_mov_b64 exec, 0xff")
    e(f"v_lshlrev_b32 v{a_}, 16, v{x}")
    e(f"v_and_b32 v{b_}, s66, v{x}")
    e(f"v_sub_f32 v{a_}, v{a_}, v{EX+8}")
    e(f"v_sub_f32 v{b_}, v{b_}, v{EX+8}")
    e(f"v_add_f32 v{EX+16}, v{EX+16}, v{a_}")
    e(f"v_fmac_f32 v{EX+17}, v{a_}, v{a_}")
    e(f"v_add_f32 v{EX+16}, v{EX+16}, v{b_}")
    e(f"v_fmac_f32 v{EX+17}, v{b_}, v{b_}")
e("s_mov_b64 exec, -1")
exstats()
e("s_waitcnt lgkmcnt(0)")
e("s_barrier")
e("s_branch L_fin")
lbl("L_st1")
e("s_add_u32 s47, s46, 1")
e("s_cmp_eq_u32 s46, 6")
e("s_cbranch_scc1 L_xrow")
e(f"v_mul_u32_u24 v8, {OUTP}, v3")
e(f"s_mul_i32 s48, s46, {16*OUTP}")
e(f"s_add_u32 s48, s48, {OUTT}")
e("v_add3_u32 v8, v8, v4, s48")
e(f"s_mul_i32 s48, s46, {16*1152}")
e("s_add_u32 s48, s48, s40")
e("s_add_u32 s48, s48, s41")
e("s_add_u32 s49, s48, 9216")
e("s_waitcnt lgkmcnt(0)")
e("s_barrier")
st2()
spin(17, F_OUT, 18, "s47")
st2()
for jj in range(6): e(f"ds_read_b128 v[{20+4*jj}:{23+4*jj}], v8 offset:{(jj//3)*8*OUTP + (jj%3)*128}")
for jj in range(6):
    e(f"s_waitcnt lgkmcnt({5-jj})")
    e(f"buffer_store_dwordx4 v[{20+4*jj}:{23+4*jj}], v5, s[32:35], s{48+jj//3} offen offset:{(jj%3)*128} {OFLAG}")
e("s_branch L_fin")
lbl("L_xrow")
e(f"v_add_u32 v6, {OUTT + 98*OUTP}, v1")
e("s_add_u32 s48, s37, 8160")
e("s_mul_i32 s48, s48, 1152")
e("s_add_u32 s48, s48, s41")
e("s_waitcnt lgkmcnt(0)")
e("s_barrier")
st2()
spin(17, F_OUT, 18, "s47")
st2()
e("s_mov_b64 exec, 0xffffff")
e("ds_read_b128 v[44:47], v6")
e("s_waitcnt lgkmcnt(0)")
e(f"buffer_store_dwordx4 v[44:47], v1, s[32:35], s48 offen {OFLAG}")
e("s_branch L_fin")

def exconv():
    e(f"v_add_u32 v14, {AUX + 2*AUXP}, v1")
    e(f"v_mov_b32 v{EX+16}, 0"); e(f"v_mov_b32 v{EX+17}, 0")
    e(f"s_waitcnt vmcnt({6 if EXC else 0})")
    for i in range(8):
        x = EX+i; g = EX+8+i; a, b, c, d = TP, TP+1, TP+2, TP+3
        e(f"v_lshlrev_b32 v{a}, 16, v{x}")
        e(f"v_and_b32 v{b}, s66, v{x}")
        e(f"v_lshlrev_b32 v{c}, 16, v{g}")
        e(f"v_and_b32 v{d}, s66, v{g}")
        e(f"v_add_f32 v{EX+16}, v{EX+16}, v{a}")
        e(f"v_fmac_f32 v{EX+17}, v{a}, v{a}")
        e(f"v_add_f32 v{EX+16}, v{EX+16}, v{b}")
        e(f"v_fmac_f32 v{EX+17}, v{b}, v{b}")
        e(f"v_mul_f32 v{a}, v{a}, v{c}")
        e(f"v_mul_f32 v{b}, v{b}, v{d}")
        e(f"v_cvt_pk_bf16_f32 v{x}, v{a}, v{b}")
    e(f"ds_write_b128 v14, v[{EX}:{EX+3}]")
    e(f"ds_write_b128 v14, v[{EX+4}:{EX+7}] offset:1024")
    e("v_mov_b32 v19, 1")
    e(f"v_mov_b32 v14, {FLG + F_AUX + 16}")
    e("ds_write_b32 v14, v19")
if not EXC:
    lbl("P_extra")
    exconv()
    e("s_branch P_l0")
ACC = 20; XF = 104; WF = 132
lbl("L_cons")
e("s_mov_b32 s36, s46")
e(f"s_setprio {opt('c0prio', 3)}")
e("s_mov_b32 s68, 0")
e("s_mov_b32 s66, 0xffff0000")
kappa_bases()
for t in range(1, 9): e(f"s_add_u32 s{76+t}, s{Bs[t//3]}, s{Rs[t%3]}")
e("s_mov_b32 s85, 0")
e("v_and_b32 v6, 3, v0")
e("v_lshlrev_b32 v6, 2, v6")
e(f"v_add_u32 v6, {FLG}, v6")
e("s_lshl_b32 s48, s36, 2")
e(f"s_add_u32 s48, s48, {FLG}")
e("v_mov_b32 v7, s48")
e("v_and_b32 v1, 15, v0")
e("v_lshrrev_b32 v2, 4, v0")
e("v_lshrrev_b32 v4, 2, v1")
e("v_sub_u32 v4, 0, v4")
e("v_xor_b32 v4, v4, v2")
e("v_and_b32 v4, 3, v4")
e("v_lshlrev_b32 v4, 4, v4")
e("v_lshl_add_u32 v13, v1, 6, v4")
e("v_bfe_u32 v4, v0, 2, 2")
e("v_lshl_add_u32 v5, v2, 3, v4")
e("v_lshlrev_b32 v5, 7, v5")
e("v_and_b32 v8, 3, v0")
e("v_lshl_add_u32 v5, v8, 3, v5")
e("v_lshrrev_b32 v4, 1, v4")
e("v_and_b32 v8, 1, v2")
e("v_lshl_or_b32 v4, v8, 1, v4")
e("v_xor_b32 v4, s36, v4")
e("v_lshl_add_u32 v5, v4, 5, v5")
e(f"v_add_u32 v14, {WOFF}, v5")
e("v_min_u32 v4, 2, v1")
e(f"v_mul_u32_u24 v4, {AUXP}, v4")
e("v_lshl_add_u32 v4, v2, 4, v4")
e(f"v_add_u32 v12, {AUX}, v4")
e("v_add_u32 v15, s54, v12")
e(f"v_add_u32 v16, {PS}, v13")
e(f"v_add_u32 v17, {PS}, v14")
e("v_and_b32 v9, 7, v0")
e("v_lshlrev_b32 v9, 2, v9")
e("v_and_b32 v11, 16, v9")
e("v_mul_u32_u24 v11, 3, v11")
e(f"v_add3_u32 v9, v9, v11, {0}")
e(f"v_add_u32 v9, {FLG}, v9")
e("v_mov_b32 v19, 0")
e("v_mov_b32 v8, 1")
e("s_mov_b32 s53, 1")
e("s_mov_b32 s52, 1")
def xread(par, sp, T, alt=0, aux=15):
    x = XF + T*4
    if T < 6: return f"ds_read_b128 v[{x}:{x+3}], v{16 if alt else 13} offset:{par*XS + sp*XH + T*1024}"
    return f"ds_read_b128 v[{x}:{x+3}], v{aux} offset:{sp*64}"
def wreads(par, sp, alt=0):
    r = []
    for t in range(3):
        w = WF + (sp*3+t)*4
        o = par*WS + t*8192 + sp*4096
        r.append(f"ds_read_b64_tr_b16 v[{w}:{w+1}], v{17 if alt else 14} offset:{o}")
        r.append(f"ds_read_b64_tr_b16 v[{w+2}:{w+3}], v{17 if alt else 14} offset:{o+512}")
    return r
def mf(sp, T, t):
    c = ACC + (T*3+t)*4; w = WF + (sp*3+t)*4; x = XF + T*4
    return f"v_mfma_f32_16x16x32_bf16 v[{c}:{c+3}], v[{w}:{w+3}], v[{x}:{x+3}], v[{c}:{c+3}]"
e("v_lshlrev_b32 v11, 1, v10")
e(f"v_add_u32 v11, {GF32}, v11")
e(f"v_add_u32 v10, {AUX + 2*AUXP}, v10")
e("s_waitcnt vmcnt(6)")
e(f"v_lshlrev_b32 v{EX+10}, 16, v{EX+10}")
for k in range(2):
    a_, b_, c_, d_ = EX+4, EX+5, EX+6+2*k, EX+7+2*k
    e(f"v_lshlrev_b32 v{a_}, 16, v{EX+k}")
    e(f"v_and_b32 v{b_}, s66, v{EX+k}")
    e(f"v_lshlrev_b32 v{c_}, 16, v{EX+2+k}")
    e(f"v_and_b32 v{d_}, s66, v{EX+2+k}")
    e(f"v_sub_f32 v{a_}, v{a_}, v{EX+10}")
    e(f"v_sub_f32 v{b_}, v{b_}, v{EX+10}")
    e(f"v_mul_f32 v{a_}, v{a_}, v{c_}")
    e(f"v_mul_f32 v{b_}, v{b_}, v{d_}")
    e(f"v_cvt_pk_bf16_f32 v{EX+k}, v{a_}, v{b_}")
e("s_mov_b32 exec_hi, 0xf")
e(f"ds_write_b64 v10, v[{EX}:{EX+1}]")
e(f"ds_write_b128 v11, v[{EX+6}:{EX+9}]")
e("s_mov_b32 exec_hi, -1")
e("s_waitcnt vmcnt(0)")
e(f"ds_write_b32 v7, v8 offset:{F_AUX}")
e(f"s_setprio {CPRIO}")
st2()
spin(9, 0, 8, 1)
st2()
if DIAG: e("s_memrealtime s[88:89]"); e("s_waitcnt lgkmcnt(0)")
if STAMP == 2: e("s_memrealtime s[72:73]"); e("s_memtime s[74:75]"); e("s_waitcnt lgkmcnt(0)"); e("v_writelane_b32 v167, s72, 60"); e("v_writelane_b32 v167, s74, 58")
CHK = opt("chk", 1)
DNP = opt("dnp", 3)
def chunk_body(par):
    nx = 1-par; alt = par
    auxc = 15 if par == 0 else 18; auxn = 18 if par == 0 else 15
    body = []
    def need(sp, T): return [("x", sp, min(6, T + (WGRAN-1 if T % WGRAN == 0 else 0))), ("w", sp, 2)]
    w1 = wreads(par, 1)
    fill0 = {}
    if par == 0:
        fill0[0] = ["v_swap_b32 v13, v16"]; fill0[1] = ["v_swap_b32 v14, v17"]
    if opt("yabl", 0):
        for kk in (4, 8, 14, 18)[:(4 if par else 3)]:
            fill0.setdefault(kk, []).extend(["v_mfma_f32_16x16x32_bf16 v[156:159], v[160:163], v[160:163], v[156:159]", f"RD:ds_read_b128 v[160:163], v13 offset:{par*XS + kk*256}"])
    fill0[9] = ["s_mov_b32 m0, s52"]; fill0[10] = ["s_movrels_b32 s51, s76"]; fill0[12] = [f"v_add_u32 v{auxn}, s51, v12"]; fill0[13] = ["s_add_u32 s52, s52, 1"]
    if par == 1: fill0[15] = ["s_add_u32 s53, s53, 1"]; fill0[16] = ["s_mov_b32 s59, s53"]
    else: fill0[15] = ["s_min_u32 s59, s53, 4"]
    frpos = 3*(7+CHK) - 8
    for sp in range(2):
        wn = w1 if sp == 0 else wreads(nx, 0, alt)
        wstart = 3 if sp == 0 else 3*max(CHK, 1)
        pend = []
        for T in range(7):
            if sp == 1 and T == CHK: body.append(("chk", nx))
            if sp == 1 and T == DNP: body.append(("done",))
            for t in range(3):
                k = T*3+t
                body.append(("m", need(sp, T), mf(sp, T, t)))
                if sp == 0:
                    for it in fill0.get(k, []): body.append(("r", ("y",), it[3:]) if it.startswith("RD:") else ("x", it))
                if sp*21 + k == frpos: body.append(("r", ("f",), f"ds_read_b32 v8, v6 offset:{nx*16}"))
                if sp*21 + k == 3*(7+CHK) - 2: body.append(("cmp",))
                if sp == 1 and k == 3*DNP - 2: body.append(("x", "v_add_u32 v19, 1, v19"))
                if 0 <= k - wstart < 6: body.append(("r", ("w", 1-sp, (k-wstart)//2), wn[k-wstart]))
                elif pend and (sp == 0 or T >= CHK): body.append(pend.pop(0))
            rd = ("r", ("x", 1, T), xread(par, 1, T, 0, auxc)) if sp == 0 else ("r", ("x", 0, T), xread(nx, 0, T, alt, auxn))
            if sp == 0 or (T >= CHK and not pend): body.append(rd)
            else: pend.append(rd)
        while pend: body.append(pend.pop(0))
    return body
bodyA = chunk_body(0); bodyB = chunk_body(1)
bi = [i for i, it in enumerate(bodyB) if it[0] == "chk"][0]
init_reads = [it for it in bodyB[bi:] if it[0] == "r"]
for it in init_reads: e(it[2].replace("v16 ", "v13 ").replace("v17 ", "v14 "))
seq = [it[1] for it in init_reads]
lastwait = None
def waitfor(tags):
    global lastwait
    idx = max(max(i for i, tg in enumerate(seq) if tg == need) for need in tags)
    n = len(seq) - 1 - idx
    if lastwait is None or idx > lastwait:
        e(f"s_waitcnt lgkmcnt({min(n,15)})"); lastwait = idx
def emit(body):
    global out
    for it in body:
        if it[0] == "r":
            e(it[2]); seq.append(it[1])
        elif it[0] == "x":
            e(it[1])
        elif it[0] == "m":
            waitfor(it[1]); e(it[2])
        elif it[0] == "cmp":
            waitfor([("f",)])
            e("v_cmp_le_u32 vcc, s59, v8")
        elif it[0] == "chk":
            k = spin_id[0]; spin_id[0] += 1
            st2()
            e("s_cmp_eq_u64 vcc, exec")
            e(f"s_cbranch_scc0 SP_{k}")
            lbl(f"SP_ok{k}")
            st2()
            save = out; out = []
            lbl(f"SP_{k}")
            e(f"ds_read_b32 v8, v6 offset:{it[1]*16}")
            e("s_waitcnt lgkmcnt(0)")
            e("v_cmp_le_u32 vcc, s59, v8")
            if SAFE:
                e("s_add_u32 s68, s68, 1"); e("s_bitcmp1_b32 s68, 18"); e(f"s_cbranch_scc1 SP_ok{k}")
            e("s_cmp_eq_u64 vcc, exec")
            e(f"s_cbranch_scc0 SP_{k}")
            e(f"s_branch SP_ok{k}")
            deferred.extend(out); out = save
        elif it[0] == "done":
            waitfor([("x", 1, 6), ("w", 1, 2)])
            e(f"ds_write_b32 v7, v19 offset:{F_DONE}"); seq.append(("d",))
nm = 0; cut = None
for idx_, it in enumerate(bodyA):
    if it[0] == "m":
        if nm == 21: cut = idx_; break
        nm += 1
first = []
for it in bodyA[:cut]:
    if it[0] == "m":
        t_ = it[2]; first.append(("m", it[1], t_[:t_.rindex(",")] + ", 0"))
    elif it[0] == "x" and "v_swap" in it[1]: continue
    else: first.append(it)
emit(first)
e("s_branch C_mid")
lbl("C_loop")
seq = [it[1] for it in init_reads]; lastwait = None
emit(bodyA[:cut])
lbl("C_mid")
emit(bodyA[cut:])
e("s_cmp_eq_u32 s53, 5")
e("s_cbranch_scc1 C_epi")
emit(bodyB)
e("s_branch C_loop")
out.extend(deferred); deferred.clear()
lbl("C_epi")
if DIAG: e("s_memrealtime s[90:91]")
if STAMP == 2: e("s_memrealtime s[72:73]"); e("s_memtime s[74:75]"); e("s_waitcnt lgkmcnt(0)"); e("v_writelane_b32 v167, s72, 61"); e("v_writelane_b32 v167, s74, 59")
e("s_barrier")
e("s_waitcnt lgkmcnt(0)")
e(f"v_lshlrev_b32 v4, 3, v1")
e(f"v_add_u32 v4, {STATT}, v4")
ST = XF
for T in range(7): e(f"ds_read_b64 v[{ST+2*T}:{ST+2*T+1}], v4 offset:{T*128}")
e(f"v_mul_u32_u24 v5, {OUTP}, v1")
e("v_lshl_add_u32 v5, v2, 3, v5")
e("s_lshl_b32 s48, s36, 5")
e(f"s_add_u32 s48, s48, {OUTT}")
e("v_add_u32 v5, s48, v5")
C1 = XF+14; C2 = XF+26; TM = XF+38
for t in range(3):
    for r in range(4):
        a = ACC + (6*3+t)*4 + r
        e(f"v_mov_b32_dpp v{C1+t*4+r}, v{a} row_newbcast:0 row_mask:0xf bank_mask:0xf")
        e(f"v_mov_b32_dpp v{C2+t*4+r}, v{a} row_newbcast:1 row_mask:0xf bank_mask:0xf")
e("s_waitcnt lgkmcnt(0)")
n = 0
for T in range(7):
    st = ST+2*T
    for t in range(3):
        a = ACC + (T*3+t)*4
        tm = TM + (n % 3)*6; n += 1
        for h in range(2):
            e(f"v_pk_fma_f32 v[{tm+2*h}:{tm+2*h+1}], v[{C1+t*4+2*h}:{C1+t*4+2*h+1}], v[{st}:{st+1}], v[{C2+t*4+2*h}:{C2+t*4+2*h+1}] op_sel:[0,0,0] op_sel_hi:[1,0,1]")
        for h in range(2):
            e(f"v_pk_fma_f32 v[{tm+2*h}:{tm+2*h+1}], v[{a+2*h}:{a+2*h+1}], v[{st}:{st+1}], v[{tm+2*h}:{tm+2*h+1}] op_sel:[0,1,0] op_sel_hi:[1,1,1]")
        e(f"v_cvt_pk_bf16_f32 v{tm+4}, v{tm}, v{tm+1}")
        e(f"v_cvt_pk_bf16_f32 v{tm+5}, v{tm+2}, v{tm+3}")
        e(f"ds_write_b64 v5, v[{tm+4}:{tm+5}] offset:{T*16*OUTP + t*128}")
    e(f"v_mov_b32 v19, {T+1}")
    e(f"ds_write_b32 v7, v19 offset:{F_OUT}")
st2()
if DIAG in (2, 3):
    e("s_memrealtime s[92:93]"); e("s_waitcnt lgkmcnt(0)")
    if DIAG == 2: e("s_sub_u32 s94, s88, s86")
    else: e("s_sub_u32 s94, s90, s88")
    e("s_lshl_b32 s94, s94, 1")
    lbl("DG_a")
    e("s_memrealtime s[96:97]"); e("s_waitcnt lgkmcnt(0)")
    e("s_sub_u32 s95, s96, s92")
    e("s_cmp_lt_u32 s95, s94")
    e("s_cbranch_scc1 DG_a")
lbl("L_fin")
if DIAG == 1:
    e("s_waitcnt vmcnt(0)")
    e("s_memrealtime s[92:93]"); e("s_waitcnt lgkmcnt(0)")
    e("s_sub_u32 s94, s92, s86")
    lbl("DG_b")
    e("s_memrealtime s[96:97]"); e("s_waitcnt lgkmcnt(0)")
    e("s_sub_u32 s95, s96, s92")
    e("s_cmp_lt_u32 s95, s94")
    e("s_cbranch_scc1 DG_b")
if STAMP == 3:
    e("s_mov_b64 exec, -1")
    st2(); e("s_waitcnt vmcnt(0)"); st2()
    e("s_memrealtime s[74:75]")
    srd(56, 14, 256)
    e("v_readlane_b32 s72, v167, 62")
    e("s_waitcnt lgkmcnt(0)")
    e("s_cmp_lg_u32 s36, 9")
    e("s_cbranch_scc1 L_d2")
    e("s_sub_u32 s73, s74, s72")
    e("s_not_b32 s72, s72")
    e("v_mov_b32 v1, 0"); e("v_mov_b32 v2, s72"); e("v_mov_b32 v3, s74"); e("v_mov_b32 v4, s73")
    e("s_mov_b64 exec, 1")
    e("buffer_atomic_umax v2, v1, s[56:59], 0 offen")
    e("buffer_atomic_umax v3, v1, s[56:59], 0 offen offset:4")
    e("buffer_atomic_add v4, v1, s[56:59], 0 offen offset:8")
    e("s_branch L_end")
    lbl("L_d2")
    e("s_cmp_lg_u32 s2, 100")
    e("s_cbranch_scc1 L_end")
    e("s_cmp_lg_u32 s36, 0")
    e("s_cbranch_scc1 L_end")
    e("v_readlane_b32 s70, v167, 0")
    e("s_nop 3")
    e("v_subrev_u32 v167, s70, v167")
    e("v_lshlrev_b32 v1, 1, v0")
    e("v_add_u32 v1, 8, v1")
    e("s_mov_b32 exec_lo, 0x555554")
    e("s_mov_b32 exec_hi, 0")
    e("buffer_store_dword v167, v1, s[56:59], 0 offen")
if STAMP == 2:
    e("s_mov_b64 exec, -1")
    st2(); e("s_waitcnt vmcnt(0)"); st2()
    e("s_memrealtime s[72:73]"); e("s_memtime s[74:75]"); e("s_waitcnt lgkmcnt(0)"); e("v_writelane_b32 v167, s72, 63"); e("v_writelane_b32 v167, s74, 57")
    srd(56, 14, 1<<22)
    e("s_lshl_b32 s60, s2, 12")
    e("s_lshl_b32 s61, s36, 8")
    e("s_add_u32 s60, s60, s61")
    e("v_lshlrev_b32 v1, 2, v0")
    e("buffer_store_dword v167, v1, s[56:59], s60 offen")
lbl("L_end")

text = HDR + f"""; @launch grid=(256,1,1) block=({NW*64},1,1) lds={LDS_TOTAL}
.amdgcn_target "amdgcn-amd-amdhsa--gfx950"
.text
.globl {NAME}_kernel
.p2align 8
.type {NAME}_kernel,@function
{NAME}_kernel:
""" + "\n".join(out) + f"""
    s_endpgm
.section .rodata,"a"
.p2align 6
.amdhsa_kernel {NAME}_kernel
  .amdhsa_next_free_vgpr 168
  .amdhsa_next_free_sgpr 100
  .amdhsa_accum_offset 168
  .amdhsa_group_segment_fixed_size 0
  .amdhsa_kernarg_size 56
  .amdhsa_user_sgpr_count 2
  .amdhsa_user_sgpr_kernarg_segment_ptr 1
  .amdhsa_system_sgpr_workgroup_id_x 1
.end_amdhsa_kernel
"""
open(sys.argv[1], "w").write(text)
```

```python
import sys
NAME = "standalone__layernorm_linear__sampling"
opts = dict(a.split("=", 1) for a in sys.argv[2:] if "=" in a)
def opt(k, d): return type(d)(opts.get(k, d))
STAMP = opt("stamp", 0)
STATS = opt("stats", "plain")
XFLAG = opt("xflag", ""); WFLAG = opt("wflag", ""); OFLAG = opt("oflag", "nt")
BARPOS = opt("barpos", 3)
PPRIO = opt("pprio", 0); P0PRIO = opt("p0prio", 2); CPRIO = opt("cprio", 1)
ROT = opt("rot", 3); SAFE = opt("safe", 1); WGRAN = opt("wgran", 2)
SPAN = opt("span", 1.0); X1MODE = opt("x1mode", 1); ROLEPERM = opt("roleperm", 1)
NW = 12
out = []
def e(s): out.append("    " + s)
def lbl(s): out.append(s + ":")
HDR = open("cdna_kernels/%s.s.ref" % NAME).read().split("; Override launch")[0]

XH = 6208; XS = 12416; WS = 24576; WOFF = 2*XS; PS = 2*XS + 2*WS
AUX = 2*PS; AUXP = 2080
STATT = AUX + 3*AUXP
PART = STATT + 896
FLG = (PART + 768 + 127)//128*128
LDS_TOTAL = FLG + 128
OUTT = PS; OUTP = 400
GF32 = FLG + 128
LDS_TOTAL = GF32 + 2304
F_DONE, F_STATB, F_AUX, F_OUT, F_CONV = 32, 48, 64, 80, 96
SER = opt("ser", 0)
PF = 0
B0 = opt("b0", 1)
CVPRIO = opt("cvprio", -1); CVPRIO = None if CVPRIO < 0 else CVPRIO

def st2(force=False):
    if STAMP not in (2, 3): return
    if opt("light", 0) and not force: return
    e("s_memtime s[70:71]")
    e("s_waitcnt lgkmcnt(0)")
    e("s_mov_b32 m0, s69"); e("s_nop 0"); e("v_writelane_b32 v167, s70, m0")
    e("s_add_u32 s69, s69, 1")
def srd(d, b, n):
    e(f"s_mov_b32 s{d}, s{b}")
    e(f"s_and_b32 s{d+1}, s{b+1}, 0xffff")
    e(f"s_mov_b32 s{d+2}, {n}")
    e(f"s_mov_b32 s{d+3}, 0x00020000")
def finalize_stats(trips):
    seq = [
     "v_mul_f32 v{m}, 0x3ae38e39, v{m}",
     "v_mul_f32 v{q}, 0x3ae38e39, v{q}",
     "v_fma_f32 v{q}, -v{m}, v{m}, v{q}",
     "v_max_f32 v{q}, 0, v{q}",
     "v_cvt_pk_bf16_f32 v{t}, v{m}, v{q}",
     "v_lshlrev_b32 v{m}, 16, v{t}",
     "v_and_b32 v{q}, 0xffff0000, v{t}",
     "v_add_f32 v{q}, 0x3727c5ac, v{q}",
     "v_cvt_pk_bf16_f32 v{t}, v{q}, v{q}",
     "v_lshlrev_b32 v{q}, 16, v{t}",
     "v_sqrt_f32 v{q}, v{q}",
     "NOP",
     "v_cvt_pk_bf16_f32 v{t}, v{q}, v{q}",
     "v_lshlrev_b32 v{q}, 16, v{t}",
     "v_rcp_f32 v{q}, v{q}",
     "NOP",
     "v_mul_f32 v{m}, v{m}, v{q}",
     "v_sub_f32 v{m}, 0, v{m}"]
    for s in seq:
        if s == "NOP": e("s_nop 0"); continue
        for (m, q, t) in trips: e(s.format(m=m, q=q, t=t))
spin_id = [0]
deferred = []
def spin(vaddr, off, vtmp, sneed, preread=False):
    global out
    k = spin_id[0]; spin_id[0] += 1
    save = None
    if preread:
        e(f"v_cmp_le_u32 vcc, {sneed}, v{vtmp}")
        e("s_cmp_eq_u64 vcc, exec")
        e(f"s_cbranch_scc0 SP_{k}")
        lbl(f"SP_ok{k}")
        save = out; out = []
    lbl(f"SP_{k}")
    if opt("slp", 0) and not preread: e(f"s_sleep {opt('slp', 0)}")
    e(f"ds_read_b32 v{vtmp}, v{vaddr} offset:{off}")
    e("s_waitcnt lgkmcnt(0)")
    e(f"v_cmp_le_u32 vcc, {sneed}, v{vtmp}")
    if SAFE:
        e("s_add_u32 s68, s68, 1")
        e("s_bitcmp1_b32 s68, 18")
        e(f"s_cbranch_scc1 SP_ok{k}")
    e("s_cmp_eq_u64 vcc, exec")
    e(f"s_cbranch_scc0 SP_{k}")
    if preread:
        e(f"s_branch SP_ok{k}")
        deferred.extend(out); out = save
    else:
        lbl(f"SP_ok{k}")

e("s_cmp_ge_u32 s2, 255")
e("s_cbranch_scc1 L_end")
if STAMP in (2, 3):
    e("s_mov_b32 s69, 0"); e("v_mov_b32 v167, 0"); e("s_memrealtime s[72:73]"); st2(True); e("v_writelane_b32 v167, s72, 62")
DIAG = opt("diag", 0)
if DIAG: e("s_memrealtime s[86:87]")
e("v_readfirstlane_b32 s36, v0")
e("v_and_b32 v0, 63, v0")
e("s_nop 2")
e("s_cmp_lt_u32 s36, 704")
e("s_cbranch_scc1 L_nz")
e("v_lshlrev_b32 v10, 2, v0")
e("v_mov_b32 v11, 0")
e(f"v_add_u32 v10, {FLG - 128}, v10")
e("ds_write_b32 v10, v11")
e("s_waitcnt lgkmcnt(0)")
lbl("L_nz")
e("s_load_dwordx2 s[16:17], s[0:1], 0")
e("s_load_dwordx2 s[20:21], s[0:1], 8")
e("s_load_dwordx2 s[28:29], s[0:1], 24")
e("s_load_dwordx2 s[60:61], s[0:1], 16")
e("s_load_dwordx2 s[32:33], s[0:1], 32")
if STAMP: e(f"s_load_dwordx2 s[14:15], s[0:1], {48 if STAMP == 2 else 40}")
e("s_barrier")
LADDER = opt("ladder", "3210")
e(f"s_setprio {LADDER[0]}")
e("s_and_b32 s3, s2, 7")
e("s_lshr_b32 s40, s2, 3")
e("s_lshl1_add_u32 s41, s3, s40")
e("s_sub_u32 s41, s41, 30")
e("s_mul_i32 s42, s3, 10")
e("s_cmp_ge_u32 s40, 30")
e("s_cselect_b32 s40, s41, s40")
e("s_cselect_b32 s42, 80, s42")
e("s_mul_i32 s39, s40, 43")
e("s_lshr_b32 s39, s39, 7")
e("s_mul_i32 s43, s39, 3")
e("s_sub_u32 s38, s40, s43")
e("s_add_u32 s37, s42, s39")
e("s_lshr_b32 s36, s36, 6")
e("s_lshr_b32 s47, s36, 3")
e("s_and_b32 s46, s36, 3")
e("s_lshr_b32 s27, s39, 2")
e("s_add_u32 s27, s27, s38")
if ROT == 0: e("s_mov_b32 s27, 0")
e("s_add_u32 s54, s27, s47")
e("s_sub_u32 s43, s54, 3")
e("s_min_u32 s54, s54, s43")
e("s_lshl_b32 s54, s54, 7")
e(f"s_mul_i32 s40, s37, {96*1152}")
e(f"s_mul_i32 s42, s46, {24*1152}")
e("s_add_u32 s44, s40, s42")
e("v_and_b32 v2, 7, v0")
e("v_lshrrev_b32 v3, 3, v0")
e("v_lshlrev_b32 v4, 4, v2")
e("v_mul_u32_u24 v8, 1152, v3")
e("v_add_u32 v5, v8, v4")
e("v_add_u32 v6, 9216, v5")
e("v_add_u32 v7, 18432, v5")
e(f"s_mov_b32 s18, {8192*1152}")
e("s_mov_b32 s19, 0x00020000")
e("s_movk_i32 s22, 1152")
e("s_mov_b32 s23, 0x00020000")
e(f"s_mov_b32 s30, {576*1152}")
e("s_mov_b32 s31, 0x00020000")
e("s_bitcmp1_b32 s36, 2")
e("s_cbranch_scc1 P_l2")

XR = 20; GP = 56; GF = 64; SA = 104; TP = 128; ON = 144; EX = 146
XE = opt("xe", 0)
XB = [0, 1, 0, 2, 0] if XE == 2 else [0, 1, 0, 1, 0]
vm = []
def gload(i):
    e(f"buffer_load_dwordx4 v[{GP+4*i}:{GP+4*i+3}], v4, s[20:23], s{54+i} offen"); vm.append(("g", i))
def xload(i):
    e(f"s_add_u32 s67, s44, s{54+i}")
    for rg in range(3):
        r = XR + XB[i]*12 + rg*4
        e(f"buffer_load_dwordx4 v[{r}:{r+3}], v{5+rg}, s[16:19], s67 offen {XFLAG}"); vm.append(("x", i))
def wdma(i):
    so = (i % 2)*PS
    e(f"s_mul_i32 s43, s{54+i}, 576")
    e("s_add_u32 s43, s43, s45")
    e("s_add_u32 s42, s43, 9216")
    for c in range(3):
        for gg in range(2):
            e(f"s_add_u32 m0, s{89+c}, {so + gg*1024}")
            e(f"s_add_u32 s65, s{43-gg}, s{86+c}" if False else f"s_add_u32 s92, s{43-gg}, s{86+c}")
            e(f"buffer_load_dwordx4 v{8+gg}, s[28:31], s92 offen {WFLAG} lds"); vm.append(("w", i))
def wait_min(tags):
    last = max(k for k, t in enumerate(vm) if t in tags)
    n = len([t for t in vm[last+1:] if t[1] != 4]) if tags[0][1] != 4 else len(vm)-1-last
    e(f"s_waitcnt vmcnt({min(n,63)})")
def kappa_bases():
    e("s_sub_u32 s43, s27, 3")
    e("s_min_u32 s27, s27, s43")
    e("s_lshl_b32 s27, s27, 7")
    for k, pk in ((64, 27), (65, 64)):
        e(f"s_add_u32 s{k}, s{pk}, 128")
        e(f"s_cmp_eq_u32 s{k}, 384")
        e(f"s_cselect_b32 s{k}, 0, s{k}")
    e("s_mov_b32 s24, 0")
    e("s_bitcmp1_b32 s39, 0")
    if ROT == 0: e("s_cmp_eq_u32 s24, 1")
    e("s_cselect_b32 s25, 2, 1")
    e("s_mulk_i32 s25, 384")
    e("s_sub_u32 s26, 1152, s25")
Bs = [24, 25, 26]; Rs = [27, 64, 65]
def wparams():
    e("v_and_b32 v9, 16, v0")
    e("v_lshlrev_b32 v9, 1, v9")
    e("v_xor_b32 v8, v5, v9")
    e("v_xor_b32 v9, 64, v8")
    e("s_mul_i32 s41, s38, 384")
    e(f"s_mul_i32 s42, s46, {16*1152}")
    e("s_add_u32 s45, s41, s42")
    e("s_lshl_b32 s49, s46, 11")
    e(f"s_mul_i32 s42, s47, {WS}")
    e("s_add_u32 s49, s49, s42")
    e(f"s_add_u32 s49, s49, {WOFF}")
    e("s_and_b32 s3, s39, 3")
    e("s_bcnt1_i32_b32 s3, s3")
    e("s_lshl_b32 s86, s3, 7")
    for k in (87, 88):
        e(f"s_add_u32 s{k}, s{k-1}, 128")
        e(f"s_cmp_eq_u32 s{k}, 384")
        e(f"s_cselect_b32 s{k}, 0, s{k}")
    for k in range(3):
        e(f"s_lshl_b32 s{89+k}, s{86+k}, 6")
        e(f"s_add_u32 s{89+k}, s{89+k}, s49")
EXC = 1
def exloads():
    e("s_add_u32 s48, s37, 8160")
    e("s_mul_i32 s48, s48, 1152")
    e("s_mov_b32 s60, s16")
    e("s_mov_b32 s61, s17")
    e("s_add_u32 s62, s48, 1152")
    e(f"s_min_u32 s62, s62, {8192*1152}")
    e("s_mov_b32 s63, 0x00020000")
    e(f"buffer_load_dwordx4 v[{EX}:{EX+3}], v1, s[60:63], s48 offen")
    e(f"buffer_load_dwordx4 v[{EX+4}:{EX+7}], v1, s[60:63], s48 offen offset:1024")
W0UP = 1
e("s_waitcnt lgkmcnt(0)")
gload(0); xload(0)
lbl("P_l2")
wparams()
e("s_waitcnt lgkmcnt(0)")
e("s_cmp_lt_u32 s36, 4")
e("s_cbranch_scc1 P_l1")
e("s_bitcmp1_b32 s36, 2")
e("s_cbranch_scc0 C_a0")
e("v_lshlrev_b32 v1, 4, v0")
e("s_add_u32 s48, s37, 8160")
e("s_mul_i32 s48, s48, 1152")
e("s_mul_i32 s42, s46, 288")
e("v_lshlrev_b32 v10, 3, v0")
e("v_add_u32 v10, s42, v10")
e(f"buffer_load_dwordx2 v[{EX}:{EX+1}], v10, s[16:19], s48 offen")
e(f"buffer_load_dwordx2 v[{EX+2}:{EX+3}], v10, s[20:23], 0 offen")
e("s_cmp_ge_u32 s46, 2")
e("s_cbranch_scc1 C_a0")
e("s_cmp_eq_u32 s46, 1")
e("s_cselect_b32 s60, s60, s20")
e("s_cselect_b32 s61, s61, s21")
e("s_movk_i32 s62, 1152")
e("s_mov_b32 s63, 0x00020000")
e(f"s_mul_i32 s48, s46, {AUXP}")
e(f"s_add_u32 m0, s48, {AUX}")
e("s_nop 0")
e("buffer_load_dwordx4 v1, s[60:63], 0 offen lds")
e("buffer_load_dwordx4 v1, s[60:63], 0 offen offset:1024 lds")
lbl("C_a0")
n0 = len(vm); wdma(0); del vm[n0:]
e("s_bitcmp1_b32 s36, 2")
e("s_cbranch_scc1 L_cons")

lbl("P_l1")
e("s_xor_b32 s42, s36, 4")
e("s_cmp_lt_u32 s36, 8")
e("s_cselect_b32 s36, s42, s36")
e("v_lshlrev_b32 v1, 4, v0")
e("s_mov_b32 s68, 0")
e("s_mov_b32 s66, 0xffff0000")
kappa_bases()
for i in range(1, 5):
    t0, t1 = 2*i, min(2*i+1, 8)
    e(f"s_add_u32 s42, s{Bs[t0//3]}, s{Rs[t0%3]}")
    e(f"s_add_u32 s43, s{Bs[t1//3]}, s{Rs[t1%3]}")
    e("s_cmp_eq_u32 s47, 1")
    e(f"s_cselect_b32 s{54+i}, s43, s42")
if XE:
    e("s_cbranch_scc0 P_nx1")
    n0 = len(vm); xload(1); del vm[n0:]
    if XE == 2: e("s_branch P_nx2")
    lbl("P_nx1")
    if XE == 2:
        n0 = len(vm); xload(3); del vm[n0:]
        lbl("P_nx2")
e(f"s_mov_b32 s34, {8192*1152}")
e("s_mov_b32 s35, 0x00020000")
e("v_lshrrev_b32 v10, 2, v3")
e("v_sub_u32 v10, 0, v10")
e("v_xor_b32 v10, v10, v2")
e("v_and_b32 v10, 3, v10")
e("v_lshlrev_b32 v10, 4, v10")
e("v_lshl_add_u32 v10, v3, 6, v10")
e("v_lshrrev_b32 v11, 2, v2")
e(f"v_mul_u32_u24 v11, {XH}, v11")
e("s_and_b32 s43, s46, 1")
e("s_lshl_b32 s43, s43, 5")
e("v_xor_b32 v10, s43, v10")
e("s_mul_i32 s42, s46, 1536")
e(f"s_mul_i32 s43, s47, {XS}")
e("s_add_u32 s42, s42, s43")
e("v_xor_b32 v12, 32, v10")
e("v_add3_u32 v10, v10, v11, s42")
e("v_add3_u32 v11, v12, v11, s42")
e(f"v_add_u32 v12, {PS}, v10")
e(f"v_add_u32 v13, {PS}, v11")
e("s_lshl_b32 s42, s47, 4")
e("s_lshl_b32 s43, s46, 2")
e("s_add_u32 s42, s42, s43")
e(f"s_add_u32 s42, s42, {FLG}")
e("v_mov_b32 v16, s42")
e("v_xor_b32 v15, 16, v16")
e(f"v_add_u32 v15, {F_CONV}, v15")
e("v_and_b32 v17, 3, v0")
e("v_lshlrev_b32 v17, 2, v17")
e(f"v_add_u32 v17, {FLG}, v17")
M1 = STATS in ("mfma", "mfma1"); M2 = STATS in ("mfma", "mfma2")
DB = STATS == "db"

def exstats():
    src, dst = EX+16, EX+18
    for mod in ["quad_perm:[1,0,3,2]", "quad_perm:[2,3,0,1]", "row_half_mirror", "row_mirror"]:
        e("s_nop 1")
        e(f"v_add_f32_dpp v{dst}, v{src}, v{src} {mod} row_mask:0xf bank_mask:0xf")
        e(f"v_add_f32_dpp v{dst+1}, v{src+1}, v{src+1} {mod} row_mask:0xf bank_mask:0xf")
        src, dst = dst, src
    e("s_nop 1")
    for r, base in ((src, 76), (src+1, 80)):
        for k in range(4): e(f"v_readlane_b32 s{base+k}, v{r}, {16*k}")
    e("s_nop 3")
    for r, base in ((src, 76), (src+1, 80)):
        e(f"v_mov_b32 v{r}, s{base}")
        for k in range(1, 4): e(f"v_add_f32 v{r}, s{base+k}, v{r}")
    finalize_stats([(src, src+1, TP)])
    e(f"v_mov_b32 v14, {STATT + 98*8}")
    e(f"ds_write_b64 v14, v[{src}:{src+1}]")
if not EXC:
    e("s_cmp_lg_u32 s36, 8")
    e("s_cbranch_scc1 P_noex")
    exstats()
lbl("P_noex")

def gunpack(i):
    for k in range(4):
        e(f"v_lshlrev_b32 v{GF+8*i+2*k}, 16, v{GP+4*i+k}")
        e(f"v_and_b32 v{GF+8*i+2*k+1}, s66, v{GP+4*i+k}")
def convert(i):
    gf = GF + 8*i
    for rg in range(3):
        regs = [XR + XB[i]*12 + rg*4 + k for k in range(4)]
        S1 = SA + rg*8; S2 = S1 + 4
        tb = TP + (rg % 2)*8
        mm = []
        for h in range(2):
            x = regs[2*h]
            if M1: mm.append(f"v_mfma_f32_4x4x4_16b_bf16 v[{S1}:{S1+3}], v[{ON}:{ON+1}], v[{x}:{x+1}], v[{S1}:{S1+3}]")
            if M2: mm.append(f"v_mfma_f32_4x4x4_16b_bf16 v[{S2}:{S2+3}], v[{x}:{x+1}], v[{x}:{x+1}], v[{S2}:{S2+3}]")
        for k in range(4):
            if mm and (len(mm) == 4 or k % 2 == 0 or (M1 and M2)): e(mm.pop(0))
            e(f"v_lshlrev_b32 v{tb+2*k}, 16, v{regs[k]}")
            e(f"v_and_b32 v{tb+2*k+1}, s66, v{regs[k]}")
        assert not mm
        for k in range(4):
            lo, hi = tb+2*k, tb+2*k+1
            if DB or opt("yabl", 0): continue
            if i == 0 and k == 0:
                e(f"v_add_f32 v{S1}, v{lo}, v{hi}")
                e(f"v_mul_f32 v{S2}, v{lo}, v{lo}")
                e(f"v_mul_f32 v{S2+1}, v{hi}, v{hi}")
            elif i == 0 and k == 1:
                e(f"v_add_f32 v{S1+1}, v{lo}, v{hi}")
                e(f"v_fmac_f32 v{S2}, v{lo}, v{lo}")
                e(f"v_fmac_f32 v{S2+1}, v{hi}, v{hi}")
            else:
                e(f"v_add_f32 v{S1}, v{S1}, v{lo}")
                e(f"v_add_f32 v{S1+1}, v{S1+1}, v{hi}")
                e(f"v_fmac_f32 v{S2}, v{lo}, v{lo}")
                e(f"v_fmac_f32 v{S2+1}, v{hi}, v{hi}")
        for k in range(4):
            lo, hi = tb+2*k, tb+2*k+1
            e(f"v_mul_f32 v{lo}, v{lo}, v{gf+2*k}")
            e(f"v_mul_f32 v{hi}, v{hi}, v{gf+2*k+1}")
        for k in range(4):
            e(f"v_cvt_pk_bf16_f32 v{regs[k]}, v{tb+2*k}, v{tb+2*k+1}")
        if opt("w64", 0):
            e(f"ds_write_b64 v{10+2*(i%2)+(rg&1)}, v[{regs[0]}:{regs[1]}] offset:{rg*512}")
            e(f"ds_write_b64 v{10+2*(i%2)+(rg&1)}, v[{regs[2]}:{regs[3]}] offset:{rg*512+8}")
        else:
            e(f"ds_write_b128 v{10+2*(i%2)+(rg&1)}, v[{regs[0]}:{regs[3]}] offset:{rg*512}")
def capture(fn, *args):
    global out
    save = out; out = []; n0 = len(vm)
    fn(*args)
    lines = out; out = save
    tags = vm[n0:]; del vm[n0:]
    groups = []; cur = []
    for l in lines:
        cur.append(l)
        if "buffer_load" in l: groups.append((cur, tags[len(groups)])); cur = []
    assert not cur
    return groups
def convert_with(i, groups):
    global out
    save = out; out = []
    convert(i)
    lines = out; out = save
    if opt("wend", 0):
        lines = [l for l in lines if "ds_write" not in l] + (["    s_waitcnt vmcnt(%d)" % (3 if i in (1, 2) else 0)] if opt("wend", 0) == 2 and i >= 1 else []) + [l for l in lines if "ds_write" in l]
    if opt("novalu", 0) and i >= 1: lines = [l for l in lines if "ds_write" in l] + ["    s_nop 0"]*40
    if opt("nowr", 0) and i >= 1: lines = [l for l in lines if "ds_write" not in l]
    if opt("nodma", 0) and i >= 2:
        groups = [([l.replace("buffer_load_dwordx4 v8", "buffer_load_dwordx4 v[148:151], v8").replace("buffer_load_dwordx4 v9", "buffer_load_dwordx4 v[148:151], v9").replace(" lds", "") for l in g[0]], g[1]) if g is not None else None for g in groups]
    if opt("novm", 0) and i >= 2:
        groups = [([l for l in g[0] if "buffer_load" not in l], g[1]) if g is not None else None for g in groups]
    if not groups:
        out.extend(lines); return
    step = max(1, int((len(lines) - 8) * SPAN) // len(groups))
    gi = 0
    for k, l in enumerate(lines):
        if gi < len(groups) and k == gi*step:
            if groups[gi] is not None:
                out.extend(groups[gi][0]); vm.append(groups[gi][1])
            gi += 1
        out.append(l)
    assert gi == len(groups)
st2()
skid = [0]
def cond(groups, br):
    r = []
    for gr in groups:
        if gr is None: r.append(None); continue
        skid[0] += 1
        r.append(([f"    {br} P_sk{skid[0]}"] + gr[0] + [f"P_sk{skid[0]}:"], gr[1]))
    return r
def setvcc():
    e("s_cmp_eq_u32 s47, 1"); e("s_cselect_b64 vcc, -1, 0")
for i in range(5):
    if i == 4:
        e("s_cmp_eq_u32 s47, 1")
        e("s_cbranch_scc1 P_odd_done")
    if i >= 2:
        e(f"s_add_u32 s43, s47, {2*(i-2)+1}")
        spin(17, F_DONE, 18, "s43")
    if i == 0:
        if XE == 1:
            e("s_cmp_eq_u32 s47, 0"); e("s_cbranch_scc0 P_w0"); e("s_waitcnt vmcnt(0)"); lbl("P_w0"); e("s_waitcnt vmcnt(3)")
        elif W0UP:
            e("s_cmp_eq_u32 s47, 0"); e("s_cbranch_scc0 P_w0"); e("s_waitcnt vmcnt(0)"); lbl("P_w0"); e("s_waitcnt vmcnt(6)")
        else:
            e(f"s_waitcnt vmcnt({3 if XE == 2 else 0})")
    else:
        e("s_waitcnt vmcnt(0)")
    st2()
    groups = []
    nyoung = 0
    if i == 0:
        gunpack(0)
        setvcc()
        groups = [None]*3 if W0UP else cond(capture(wdma, 0), "s_cbranch_vccz")
        xg = capture(xload, 1)
        if XE: groups += cond(xg, "s_cbranch_vccnz")
        else: groups += xg; nyoung = 3
    else:
        groups += capture(wdma, i)
        if i == 1: groups += capture(xload, 2); nyoung = 3
        if i == 2:
            xg = capture(xload, 3)
            if XE == 2: setvcc(); groups += cond(xg, "s_cbranch_vccz")
            else: groups += xg; nyoung = 3
    convert_with(i, groups)
    e(f"v_mov_b32 v19, {i+1}")
    if i == 0:
        e("s_cbranch_vccz P_r0")
        e(f"s_waitcnt vmcnt({nyoung})")
        lbl("P_r0")
    elif i == 2 and XE == 2:
        e("s_cbranch_vccz P_r2a"); e("s_waitcnt vmcnt(3)"); e("s_branch P_r2b"); lbl("P_r2a"); e("s_waitcnt vmcnt(0)"); lbl("P_r2b")
    else:
        e(f"s_waitcnt vmcnt({nyoung})")
    e("ds_write_b32 v16, v19")
    st2()
    if i+1 < len(LADDER): e(f"s_setprio {LADDER[i+1]}")
    if i == 0:
        spin(17, F_AUX, 18, 1)
        e("v_lshlrev_b32 v19, 1, v4")
        e(f"v_add_u32 v19, {GF32}, v19")
        for k in range(1, 5):
            e(f"s_lshl_b32 s43, s{54+k}, 1")
            e("v_add_u32 v18, s43, v19")
            e(f"ds_read_b128 v[{GF+8*k}:{GF+8*k+3}], v18")
            e(f"ds_read_b128 v[{GF+8*k+4}:{GF+8*k+7}], v18 offset:16")
        e("s_waitcnt lgkmcnt(0)")
    if i == 3:
        e("s_cmp_eq_u32 s47, 1"); e("s_cbranch_scc1 P_skipx4")
        xload(4)
        lbl("P_skipx4")
R = TP+8
def reduce8():
    e("s_nop 7")
    if M2:
        e("v_and_b32 v14, 3, v0")
        for k in range(1, 4): e(f"v_cmp_eq_u32 s[{74+2*k}:{75+2*k}], {k}, v14")
    for rg in range(3):
        S1 = SA + rg*8; S2 = S1 + 4
        if M1: e(f"v_mov_b32 v{TP+2*rg}, v{S1}")
        else: e(f"v_add_f32 v{TP+2*rg}, v{S1}, v{S1+1}")
        if M2:
            e(f"v_cndmask_b32 v{TP+2*rg+1}, v{S2}, v{S2+1}, s[76:77]")
            e(f"v_cndmask_b32 v{TP+2*rg+1}, v{TP+2*rg+1}, v{S2+2}, s[78:79]")
            e(f"v_cndmask_b32 v{TP+2*rg+1}, v{TP+2*rg+1}, v{S2+3}, s[80:81]")
        else: e(f"v_add_f32 v{TP+2*rg+1}, v{S2}, v{S2+1}")
    src, dst = TP, TP+8
    for mod in ["quad_perm:[1,0,3,2]", "quad_perm:[2,3,0,1]", "row_half_mirror"]:
        e("s_nop 1")
        for k in range(6): e(f"v_add_f32_dpp v{dst+k}, v{src+k}, v{src+k} {mod} row_mask:0xf bank_mask:0xf")
        src, dst = dst, src
    e("s_mul_i32 s42, s46, 192")
    e(f"s_add_u32 s42, s42, {STATT}")
    e("v_lshlrev_b32 v14, 3, v3")
    e("v_add_u32 v14, s42, v14")
    e("s_lshl_b32 s42, s46, 2")
    e(f"s_add_u32 s42, s42, {FLG+F_STATB}")
    e("v_mov_b32 v15, s42")
reduce8()
spin(15, 0, 18, 1)
for rg in range(3): e(f"ds_read_b64 v[{TP+2*rg}:{TP+2*rg+1}], v14 offset:{PART-STATT + rg*64}")
e("s_waitcnt lgkmcnt(0)")
for k in range(6): e(f"v_add_f32 v{R+k}, v{R+k}, v{TP+k}")
e("v_cmp_eq_u32 s[76:77], 1, v2")
e("v_cmp_eq_u32 s[78:79], 2, v2")
e("v_cmp_gt_u32 s[80:81], 3, v2")
e("v_lshl_add_u32 v14, v2, 6, v14")
e(f"v_cndmask_b32 v{R}, v{R}, v{R+2}, s[76:77]")
e(f"v_cndmask_b32 v{R+1}, v{R+1}, v{R+3}, s[76:77]")
e(f"v_cndmask_b32 v{R}, v{R}, v{R+4}, s[78:79]")
e(f"v_cndmask_b32 v{R+1}, v{R+1}, v{R+5}, s[78:79]")
finalize_stats([(R, R+1, TP)])
e("s_mov_b64 exec, s[80:81]")
e(f"ds_write_b64 v14, v[{R}:{R+1}]")
e("s_mov_b64 exec, -1")
e("v_mov_b32 v19, 5")
e("ds_write_b32 v16, v19 offset:16")
st2()
e("s_branch L_store")
lbl("P_odd_done")
reduce8()
for rg in range(3): e(f"ds_write_b64 v14, v[{R+2*rg}:{R+2*rg+1}] offset:{PART-STATT + rg*64}")
e("v_mov_b32 v19, 1")
e("ds_write_b32 v15, v19")
st2()

lbl("L_store")
e("s_sub_u32 s46, s36, 4")
e("s_cmp_eq_u32 s46, 7")
e("s_cbranch_scc0 L_st1")
exloads()
e(f"v_mov_b32 v{EX+16}, 0"); e(f"v_mov_b32 v{EX+17}, 0")
e("s_waitcnt vmcnt(0)")
for i in range(8):
    x = EX+i; a_, b_ = TP, TP+1
    e(f"v_lshlrev_b32 v{a_}, 16, v{x}")
    e(f"v_and_b32 v{b_}, s66, v{x}")
    e(f"v_add_f32 v{EX+16}, v{EX+16}, v{a_}")
    e(f"v_fmac_f32 v{EX+17}, v{a_}, v{a_}")
    e(f"v_add_f32 v{EX+16}, v{EX+16}, v{b_}")
    e(f"v_fmac_f32 v{EX+17}, v{b_}, v{b_}")
exstats()
e("s_waitcnt lgkmcnt(0)")
e("s_barrier")
e("s_branch L_fin")
lbl("L_st1")
e("s_add_u32 s47, s46, 1")
e("s_cmp_eq_u32 s46, 6")
e("s_cbranch_scc1 L_xrow")
e(f"v_mul_u32_u24 v8, {OUTP}, v3")
e(f"s_mul_i32 s48, s46, {16*OUTP}")
e(f"s_add_u32 s48, s48, {OUTT}")
e("v_add3_u32 v8, v8, v4, s48")
e(f"s_mul_i32 s48, s46, {16*1152}")
e("s_add_u32 s48, s48, s40")
e("s_add_u32 s48, s48, s41")
e("s_add_u32 s49, s48, 9216")
e("s_waitcnt lgkmcnt(0)")
e("s_barrier")
st2()
spin(17, F_OUT, 18, "s47")
st2()
for jj in range(6): e(f"ds_read_b128 v[{20+4*jj}:{23+4*jj}], v8 offset:{(jj//3)*8*OUTP + (jj%3)*128}")
for jj in range(6):
    e(f"s_waitcnt lgkmcnt({5-jj})")
    e(f"buffer_store_dwordx4 v[{20+4*jj}:{23+4*jj}], v5, s[32:35], s{48+jj//3} offen offset:{(jj%3)*128} {OFLAG}")
e("s_branch L_fin")
lbl("L_xrow")
e(f"v_add_u32 v6, {OUTT + 98*OUTP}, v1")
e("s_add_u32 s48, s37, 8160")
e("s_mul_i32 s48, s48, 1152")
e("s_add_u32 s48, s48, s41")
e("s_waitcnt lgkmcnt(0)")
e("s_barrier")
st2()
spin(17, F_OUT, 18, "s47")
st2()
e("s_mov_b64 exec, 0xffffff")
e("ds_read_b128 v[44:47], v6")
e("s_waitcnt lgkmcnt(0)")
e(f"buffer_store_dwordx4 v[44:47], v1, s[32:35], s48 offen {OFLAG}")
e("s_branch L_fin")

def exconv():
    e(f"v_add_u32 v14, {AUX + 2*AUXP}, v1")
    e(f"v_mov_b32 v{EX+16}, 0"); e(f"v_mov_b32 v{EX+17}, 0")
    e(f"s_waitcnt vmcnt({6 if EXC else 0})")
    for i in range(8):
        x = EX+i; g = EX+8+i; a, b, c, d = TP, TP+1, TP+2, TP+3
        e(f"v_lshlrev_b32 v{a}, 16, v{x}")
        e(f"v_and_b32 v{b}, s66, v{x}")
        e(f"v_lshlrev_b32 v{c}, 16, v{g}")
        e(f"v_and_b32 v{d}, s66, v{g}")
        e(f"v_add_f32 v{EX+16}, v{EX+16}, v{a}")
        e(f"v_fmac_f32 v{EX+17}, v{a}, v{a}")
        e(f"v_add_f32 v{EX+16}, v{EX+16}, v{b}")
        e(f"v_fmac_f32 v{EX+17}, v{b}, v{b}")
        e(f"v_mul_f32 v{a}, v{a}, v{c}")
        e(f"v_mul_f32 v{b}, v{b}, v{d}")
        e(f"v_cvt_pk_bf16_f32 v{x}, v{a}, v{b}")
    e(f"ds_write_b128 v14, v[{EX}:{EX+3}]")
    e(f"ds_write_b128 v14, v[{EX+4}:{EX+7}] offset:1024")
    e("v_mov_b32 v19, 1")
    e(f"v_mov_b32 v14, {FLG + F_AUX + 16}")
    e("ds_write_b32 v14, v19")
if not EXC:
    lbl("P_extra")
    exconv()
    e("s_branch P_l0")
ACC = 20; XF = 104; WF = 132
lbl("L_cons")
e("s_mov_b32 s36, s46")
e(f"s_setprio {opt('c0prio', 0)}")
e("s_mov_b32 s68, 0")
e("s_mov_b32 s66, 0xffff0000")
kappa_bases()
for t in range(1, 9): e(f"s_add_u32 s{76+t}, s{Bs[t//3]}, s{Rs[t%3]}")
e("s_mov_b32 s85, 0")
e("v_and_b32 v6, 3, v0")
e("v_lshlrev_b32 v6, 2, v6")
e(f"v_add_u32 v6, {FLG}, v6")
e("s_lshl_b32 s48, s36, 2")
e(f"s_add_u32 s48, s48, {FLG}")
e("v_mov_b32 v7, s48")
e("v_and_b32 v1, 15, v0")
e("v_lshrrev_b32 v2, 4, v0")
e("v_lshrrev_b32 v4, 2, v1")
e("v_sub_u32 v4, 0, v4")
e("v_xor_b32 v4, v4, v2")
e("v_and_b32 v4, 3, v4")
e("v_lshlrev_b32 v4, 4, v4")
e("v_lshl_add_u32 v13, v1, 6, v4")
e("v_bfe_u32 v4, v0, 2, 2")
e("v_lshl_add_u32 v5, v2, 3, v4")
e("v_lshlrev_b32 v5, 7, v5")
e("v_and_b32 v8, 3, v0")
e("v_lshl_add_u32 v5, v8, 3, v5")
e("v_lshrrev_b32 v4, 1, v4")
e("v_and_b32 v8, 1, v2")
e("v_lshl_or_b32 v4, v8, 1, v4")
e("v_xor_b32 v4, s36, v4")
e("v_lshl_add_u32 v5, v4, 5, v5")
e(f"v_add_u32 v14, {WOFF}, v5")
e("v_min_u32 v4, 2, v1")
e(f"v_mul_u32_u24 v4, {AUXP}, v4")
e("v_lshl_add_u32 v4, v2, 4, v4")
e(f"v_add_u32 v12, {AUX}, v4")
e("v_add_u32 v15, s54, v12")
e(f"v_add_u32 v16, {PS}, v13")
e(f"v_add_u32 v17, {PS}, v14")
e("v_and_b32 v9, 7, v0")
e("v_lshlrev_b32 v9, 2, v9")
e("v_and_b32 v11, 16, v9")
e("v_mul_u32_u24 v11, 3, v11")
e(f"v_add3_u32 v9, v9, v11, {0}")
e(f"v_add_u32 v9, {FLG}, v9")
e("v_mov_b32 v19, 0")
e("v_mov_b32 v8, 1")
e("s_mov_b32 s53, 1")
e("s_mov_b32 s52, 1")
def xread(par, sp, T, alt=0, aux=15):
    x = XF + T*4
    if T < 6: return f"ds_read_b128 v[{x}:{x+3}], v{16 if alt else 13} offset:{par*XS + sp*XH + T*1024}"
    return f"ds_read_b128 v[{x}:{x+3}], v{aux} offset:{sp*64}"
def wreads(par, sp, alt=0):
    r = []
    for t in range(3):
        w = WF + (sp*3+t)*4
        o = par*WS + t*8192 + sp*4096
        r.append(f"ds_read_b64_tr_b16 v[{w}:{w+1}], v{17 if alt else 14} offset:{o}")
        r.append(f"ds_read_b64_tr_b16 v[{w+2}:{w+3}], v{17 if alt else 14} offset:{o+512}")
    return r
def mf(sp, T, t):
    c = ACC + (T*3+t)*4; w = WF + (sp*3+t)*4; x = XF + T*4
    return f"v_mfma_f32_16x16x32_bf16 v[{c}:{c+3}], v[{w}:{w+3}], v[{x}:{x+3}], v[{c}:{c+3}]"
e("v_lshlrev_b32 v11, 1, v10")
e(f"v_add_u32 v11, {GF32}, v11")
e(f"v_add_u32 v10, {AUX + 2*AUXP}, v10")
e("s_waitcnt vmcnt(6)")
for k in range(2):
    a_, b_, c_, d_ = EX+4, EX+5, EX+6+2*k, EX+7+2*k
    e(f"v_lshlrev_b32 v{a_}, 16, v{EX+k}")
    e(f"v_and_b32 v{b_}, s66, v{EX+k}")
    e(f"v_lshlrev_b32 v{c_}, 16, v{EX+2+k}")
    e(f"v_and_b32 v{d_}, s66, v{EX+2+k}")
    e(f"v_mul_f32 v{a_}, v{a_}, v{c_}")
    e(f"v_mul_f32 v{b_}, v{b_}, v{d_}")
    e(f"v_cvt_pk_bf16_f32 v{EX+k}, v{a_}, v{b_}")
e("s_mov_b32 exec_hi, 0xf")
e(f"ds_write_b64 v10, v[{EX}:{EX+1}]")
e(f"ds_write_b128 v11, v[{EX+6}:{EX+9}]")
e("s_mov_b32 exec_hi, -1")
e("s_waitcnt vmcnt(0)")
e(f"ds_write_b32 v7, v8 offset:{F_AUX}")
e(f"s_setprio {CPRIO}")
st2()
spin(9, 0, 8, 1)
st2()
if DIAG: e("s_memrealtime s[88:89]"); e("s_waitcnt lgkmcnt(0)")
if STAMP == 2: e("s_memrealtime s[72:73]"); e("s_memtime s[74:75]"); e("s_waitcnt lgkmcnt(0)"); e("v_writelane_b32 v167, s72, 60"); e("v_writelane_b32 v167, s74, 58")
CHK = opt("chk", 1)
DNP = opt("dnp", 3)
def chunk_body(par):
    nx = 1-par; alt = par
    auxc = 15 if par == 0 else 18; auxn = 18 if par == 0 else 15
    body = []
    def need(sp, T): return [("x", sp, min(6, T + (WGRAN-1 if T % WGRAN == 0 else 0))), ("w", sp, 2)]
    w1 = wreads(par, 1)
    fill0 = {}
    if par == 0:
        fill0[0] = ["v_swap_b32 v13, v16"]; fill0[1] = ["v_swap_b32 v14, v17"]
    if opt("yabl", 0):
        for kk in (4, 8, 14, 18)[:(4 if par else 3)]:
            fill0.setdefault(kk, []).extend(["v_mfma_f32_16x16x32_bf16 v[156:159], v[160:163], v[160:163], v[156:159]", f"RD:ds_read_b128 v[160:163], v13 offset:{par*XS + kk*256}"])
    fill0[9] = ["s_mov_b32 m0, s52"]; fill0[10] = ["s_movrels_b32 s51, s76"]; fill0[12] = [f"v_add_u32 v{auxn}, s51, v12"]; fill0[13] = ["s_add_u32 s52, s52, 1"]
    if par == 1: fill0[15] = ["s_add_u32 s53, s53, 1"]; fill0[16] = ["s_mov_b32 s59, s53"]
    else: fill0[15] = ["s_min_u32 s59, s53, 4"]
    frpos = 3*(7+CHK) - 8
    for sp in range(2):
        wn = w1 if sp == 0 else wreads(nx, 0, alt)
        wstart = 3 if sp == 0 else 3*max(CHK, 1)
        pend = []
        for T in range(7):
            if sp == 1 and T == CHK: body.append(("chk", nx))
            if sp == 1 and T == DNP: body.append(("done",))
            for t in range(3):
                k = T*3+t
                body.append(("m", need(sp, T), mf(sp, T, t)))
                if sp == 0:
                    for it in fill0.get(k, []): body.append(("r", ("y",), it[3:]) if it.startswith("RD:") else ("x", it))
                if sp*21 + k == frpos: body.append(("r", ("f",), f"ds_read_b32 v8, v6 offset:{nx*16}"))
                if sp*21 + k == 3*(7+CHK) - 2: body.append(("cmp",))
                if sp == 1 and k == 3*DNP - 2: body.append(("x", "v_add_u32 v19, 1, v19"))
                if 0 <= k - wstart < 6: body.append(("r", ("w", 1-sp, (k-wstart)//2), wn[k-wstart]))
                elif pend and (sp == 0 or T >= CHK): body.append(pend.pop(0))
            rd = ("r", ("x", 1, T), xread(par, 1, T, 0, auxc)) if sp == 0 else ("r", ("x", 0, T), xread(nx, 0, T, alt, auxn))
            if sp == 0 or (T >= CHK and not pend): body.append(rd)
            else: pend.append(rd)
        while pend: body.append(pend.pop(0))
    return body
bodyA = chunk_body(0); bodyB = chunk_body(1)
bi = [i for i, it in enumerate(bodyB) if it[0] == "chk"][0]
init_reads = [it for it in bodyB[bi:] if it[0] == "r"]
for it in init_reads: e(it[2].replace("v16 ", "v13 ").replace("v17 ", "v14 "))
seq = [it[1] for it in init_reads]
lastwait = None
def waitfor(tags):
    global lastwait
    idx = max(max(i for i, tg in enumerate(seq) if tg == need) for need in tags)
    n = len(seq) - 1 - idx
    if lastwait is None or idx > lastwait:
        e(f"s_waitcnt lgkmcnt({min(n,15)})"); lastwait = idx
def emit(body):
    global out
    for it in body:
        if it[0] == "r":
            e(it[2]); seq.append(it[1])
        elif it[0] == "x":
            e(it[1])
        elif it[0] == "m":
            waitfor(it[1]); e(it[2])
        elif it[0] == "cmp":
            waitfor([("f",)])
            e("v_cmp_le_u32 vcc, s59, v8")
        elif it[0] == "chk":
            k = spin_id[0]; spin_id[0] += 1
            st2()
            e("s_cmp_eq_u64 vcc, exec")
            e(f"s_cbranch_scc0 SP_{k}")
            lbl(f"SP_ok{k}")
            st2()
            save = out; out = []
            lbl(f"SP_{k}")
            e(f"ds_read_b32 v8, v6 offset:{it[1]*16}")
            e("s_waitcnt lgkmcnt(0)")
            e("v_cmp_le_u32 vcc, s59, v8")
            if SAFE:
                e("s_add_u32 s68, s68, 1"); e("s_bitcmp1_b32 s68, 18"); e(f"s_cbranch_scc1 SP_ok{k}")
            e("s_cmp_eq_u64 vcc, exec")
            e(f"s_cbranch_scc0 SP_{k}")
            e(f"s_branch SP_ok{k}")
            deferred.extend(out); out = save
        elif it[0] == "done":
            waitfor([("x", 1, 6), ("w", 1, 2)])
            e(f"ds_write_b32 v7, v19 offset:{F_DONE}"); seq.append(("d",))
nm = 0; cut = None
for idx_, it in enumerate(bodyA):
    if it[0] == "m":
        if nm == 21: cut = idx_; break
        nm += 1
first = []
for it in bodyA[:cut]:
    if it[0] == "m":
        t_ = it[2]; first.append(("m", it[1], t_[:t_.rindex(",")] + ", 0"))
    elif it[0] == "x" and "v_swap" in it[1]: continue
    else: first.append(it)
emit(first)
e("s_branch C_mid")
lbl("C_loop")
seq = [it[1] for it in init_reads]; lastwait = None
emit(bodyA[:cut])
lbl("C_mid")
emit(bodyA[cut:])
e("s_cmp_eq_u32 s53, 5")
e("s_cbranch_scc1 C_epi")
emit(bodyB)
e("s_branch C_loop")
out.extend(deferred); deferred.clear()
lbl("C_epi")
if DIAG: e("s_memrealtime s[90:91]")
if STAMP == 2: e("s_memrealtime s[72:73]"); e("s_memtime s[74:75]"); e("s_waitcnt lgkmcnt(0)"); e("v_writelane_b32 v167, s72, 61"); e("v_writelane_b32 v167, s74, 59")
e("s_barrier")
e("s_waitcnt lgkmcnt(0)")
e(f"v_lshlrev_b32 v4, 3, v1")
e(f"v_add_u32 v4, {STATT}, v4")
ST = XF
for T in range(7): e(f"ds_read_b64 v[{ST+2*T}:{ST+2*T+1}], v4 offset:{T*128}")
e(f"v_mul_u32_u24 v5, {OUTP}, v1")
e("v_lshl_add_u32 v5, v2, 3, v5")
e("s_lshl_b32 s48, s36, 5")
e(f"s_add_u32 s48, s48, {OUTT}")
e("v_add_u32 v5, s48, v5")
C1 = XF+14; C2 = XF+26; TM = XF+38
for t in range(3):
    for r in range(4):
        a = ACC + (6*3+t)*4 + r
        e(f"v_mov_b32_dpp v{C1+t*4+r}, v{a} row_newbcast:0 row_mask:0xf bank_mask:0xf")
        e(f"v_mov_b32_dpp v{C2+t*4+r}, v{a} row_newbcast:1 row_mask:0xf bank_mask:0xf")
e("s_waitcnt lgkmcnt(0)")
n = 0
for T in range(7):
    st = ST+2*T
    for t in range(3):
        a = ACC + (T*3+t)*4
        tm = TM + (n % 3)*6; n += 1
        for h in range(2):
            e(f"v_pk_fma_f32 v[{tm+2*h}:{tm+2*h+1}], v[{C1+t*4+2*h}:{C1+t*4+2*h+1}], v[{st}:{st+1}], v[{C2+t*4+2*h}:{C2+t*4+2*h+1}] op_sel:[0,0,0] op_sel_hi:[1,0,1]")
        for h in range(2):
            e(f"v_pk_fma_f32 v[{tm+2*h}:{tm+2*h+1}], v[{a+2*h}:{a+2*h+1}], v[{st}:{st+1}], v[{tm+2*h}:{tm+2*h+1}] op_sel:[0,1,0] op_sel_hi:[1,1,1]")
        e(f"v_cvt_pk_bf16_f32 v{tm+4}, v{tm}, v{tm+1}")
        e(f"v_cvt_pk_bf16_f32 v{tm+5}, v{tm+2}, v{tm+3}")
        e(f"ds_write_b64 v5, v[{tm+4}:{tm+5}] offset:{T*16*OUTP + t*128}")
    e(f"v_mov_b32 v19, {T+1}")
    e(f"ds_write_b32 v7, v19 offset:{F_OUT}")
st2()
if DIAG in (2, 3):
    e("s_memrealtime s[92:93]"); e("s_waitcnt lgkmcnt(0)")
    if DIAG == 2: e("s_sub_u32 s94, s88, s86")
    else: e("s_sub_u32 s94, s90, s88")
    e("s_lshl_b32 s94, s94, 1")
    lbl("DG_a")
    e("s_memrealtime s[96:97]"); e("s_waitcnt lgkmcnt(0)")
    e("s_sub_u32 s95, s96, s92")
    e("s_cmp_lt_u32 s95, s94")
    e("s_cbranch_scc1 DG_a")
lbl("L_fin")
if DIAG == 1:
    e("s_waitcnt vmcnt(0)")
    e("s_memrealtime s[92:93]"); e("s_waitcnt lgkmcnt(0)")
    e("s_sub_u32 s94, s92, s86")
    lbl("DG_b")
    e("s_memrealtime s[96:97]"); e("s_waitcnt lgkmcnt(0)")
    e("s_sub_u32 s95, s96, s92")
    e("s_cmp_lt_u32 s95, s94")
    e("s_cbranch_scc1 DG_b")
if STAMP == 3:
    e("s_mov_b64 exec, -1")
    st2(); e("s_waitcnt vmcnt(0)"); st2()
    e("s_memrealtime s[74:75]")
    srd(56, 14, 256)
    e("v_readlane_b32 s72, v167, 62")
    e("s_waitcnt lgkmcnt(0)")
    e("s_cmp_lg_u32 s36, 9")
    e("s_cbranch_scc1 L_d2")
    e("s_sub_u32 s73, s74, s72")
    e("s_not_b32 s72, s72")
    e("v_mov_b32 v1, 0"); e("v_mov_b32 v2, s72"); e("v_mov_b32 v3, s74"); e("v_mov_b32 v4, s73")
    e("s_mov_b64 exec, 1")
    e("buffer_atomic_umax v2, v1, s[56:59], 0 offen")
    e("buffer_atomic_umax v3, v1, s[56:59], 0 offen offset:4")
    e("buffer_atomic_add v4, v1, s[56:59], 0 offen offset:8")
    e("s_branch L_end")
    lbl("L_d2")
    e("s_cmp_lg_u32 s2, 100")
    e("s_cbranch_scc1 L_end")
    e("s_cmp_lg_u32 s36, 0")
    e("s_cbranch_scc1 L_end")
    e("v_readlane_b32 s70, v167, 0")
    e("s_nop 3")
    e("v_subrev_u32 v167, s70, v167")
    e("v_lshlrev_b32 v1, 1, v0")
    e("v_add_u32 v1, 8, v1")
    e("s_mov_b32 exec_lo, 0x555554")
    e("s_mov_b32 exec_hi, 0")
    e("buffer_store_dword v167, v1, s[56:59], 0 offen")
if STAMP == 2:
    e("s_mov_b64 exec, -1")
    st2(); e("s_waitcnt vmcnt(0)"); st2()
    e("s_memrealtime s[72:73]"); e("s_memtime s[74:75]"); e("s_waitcnt lgkmcnt(0)"); e("v_writelane_b32 v167, s72, 63"); e("v_writelane_b32 v167, s74, 57")
    srd(56, 14, 1<<22)
    e("s_lshl_b32 s60, s2, 12")
    e("s_lshl_b32 s61, s36, 8")
    e("s_add_u32 s60, s60, s61")
    e("v_lshlrev_b32 v1, 2, v0")
    e("buffer_store_dword v167, v1, s[56:59], s60 offen")
lbl("L_end")

text = HDR + f"""; @launch grid=(256,1,1) block=({NW*64},1,1) lds={LDS_TOTAL}
.amdgcn_target "amdgcn-amd-amdhsa--gfx950"
.text
.globl {NAME}_kernel
.p2align 8
.type {NAME}_kernel,@function
{NAME}_kernel:
""" + "\n".join(out) + f"""
    s_endpgm
.section .rodata,"a"
.p2align 6
.amdhsa_kernel {NAME}_kernel
  .amdhsa_next_free_vgpr 168
  .amdhsa_next_free_sgpr 100
  .amdhsa_accum_offset 168
  .amdhsa_group_segment_fixed_size 0
  .amdhsa_kernarg_size 56
  .amdhsa_user_sgpr_count 2
  .amdhsa_user_sgpr_kernarg_segment_ptr 1
  .amdhsa_system_sgpr_workgroup_id_x 1
.end_amdhsa_kernel
"""
open(sys.argv[1], "w").write(text)
```

```python
import sys
NAME = "standalone__layernorm_linear__sampling"
opts = dict(a.split("=", 1) for a in sys.argv[2:] if "=" in a)
def opt(k, d): return type(d)(opts.get(k, d))
STAMP = opt("stamp", 0)
STATS = opt("stats", "plain")
XFLAG = opt("xflag", ""); WFLAG = opt("wflag", ""); OFLAG = opt("oflag", "nt")
BARPOS = opt("barpos", 3)
PPRIO = opt("pprio", 0); P0PRIO = opt("p0prio", 2); CPRIO = opt("cprio", 1)
ROT = opt("rot", 3); SAFE = opt("safe", 1); WGRAN = opt("wgran", 2)
SPAN = opt("span", 1.0); X1MODE = opt("x1mode", 1); ROLEPERM = opt("roleperm", 1)
NW = 12
out = []
def e(s): out.append("    " + s)
def lbl(s): out.append(s + ":")
HDR = open("cdna_kernels/%s.s.ref" % NAME).read().split("; Override launch")[0]

XH = 6208; XS = 12416; WS = 24576; WOFF = 2*XS; PS = 2*XS + 2*WS
AUX = 2*PS; AUXP = 2080
STATT = AUX + 3*AUXP
PART = STATT + 896
FLG = (PART + 768 + 127)//128*128
LDS_TOTAL = FLG + 128
OUTT = PS; OUTP = 400
GF32 = FLG + 128
LDS_TOTAL = GF32 + 2304
F_DONE, F_STATB, F_AUX, F_OUT, F_CONV = 32, 48, 64, 80, 96
SER = opt("ser", 0)
PF = 0
B0 = opt("b0", 1)
CVPRIO = opt("cvprio", -1); CVPRIO = None if CVPRIO < 0 else CVPRIO

def st2(force=False):
    if STAMP not in (2, 3): return
    if opt("light", 0) and not force: return
    e("s_memtime s[70:71]")
    e("s_waitcnt lgkmcnt(0)")
    e("s_mov_b32 m0, s69"); e("s_nop 0"); e("v_writelane_b32 v167, s70, m0")
    e("s_add_u32 s69, s69, 1")
def srd(d, b, n):
    e(f"s_mov_b32 s{d}, s{b}")
    e(f"s_and_b32 s{d+1}, s{b+1}, 0xffff")
    e(f"s_mov_b32 s{d+2}, {n}")
    e(f"s_mov_b32 s{d+3}, 0x00020000")
def finalize_stats(trips):
    seq = [
     "v_mul_f32 v{m}, 0x3ae38e39, v{m}",
     "v_mul_f32 v{q}, 0x3ae38e39, v{q}",
     "v_fma_f32 v{q}, -v{m}, v{m}, v{q}",
     "v_max_f32 v{q}, 0, v{q}",
     "v_add_f32 v{m}, v{m}, v{p}",
     "v_cvt_pk_bf16_f32 v{t}, v{m}, v{q}",
     "v_lshlrev_b32 v{m}, 16, v{t}",
     "v_sub_f32 v{m}, v{p}, v{m}",
     "v_and_b32 v{q}, 0xffff0000, v{t}",
     "v_add_f32 v{q}, 0x3727c5ac, v{q}",
     "v_cvt_pk_bf16_f32 v{t}, v{q}, v{q}",
     "v_lshlrev_b32 v{q}, 16, v{t}",
     "v_sqrt_f32 v{q}, v{q}",
     "NOP",
     "v_cvt_pk_bf16_f32 v{t}, v{q}, v{q}",
     "v_lshlrev_b32 v{q}, 16, v{t}",
     "v_rcp_f32 v{q}, v{q}",
     "NOP",
     "v_mul_f32 v{m}, v{m}, v{q}"]
    for s in seq:
        if s == "NOP": e("s_nop 0"); continue
        for (m, q, t, p) in trips: e(s.format(m=m, q=q, t=t, p=p))
spin_id = [0]
deferred = []
def spin(vaddr, off, vtmp, sneed, preread=False):
    global out
    k = spin_id[0]; spin_id[0] += 1
    save = None
    if preread:
        e(f"v_cmp_le_u32 vcc, {sneed}, v{vtmp}")
        e("s_cmp_eq_u64 vcc, exec")
        e(f"s_cbranch_scc0 SP_{k}")
        lbl(f"SP_ok{k}")
        save = out; out = []
    lbl(f"SP_{k}")
    if opt("slp", 0) and not preread: e(f"s_sleep {opt('slp', 0)}")
    e(f"ds_read_b32 v{vtmp}, v{vaddr} offset:{off}")
    e("s_waitcnt lgkmcnt(0)")
    e(f"v_cmp_le_u32 vcc, {sneed}, v{vtmp}")
    if SAFE:
        e("s_add_u32 s68, s68, 1")
        e("s_bitcmp1_b32 s68, 18")
        e(f"s_cbranch_scc1 SP_ok{k}")
    e("s_cmp_eq_u64 vcc, exec")
    e(f"s_cbranch_scc0 SP_{k}")
    if preread:
        e(f"s_branch SP_ok{k}")
        deferred.extend(out); out = save
    else:
        lbl(f"SP_ok{k}")

e("s_cmp_ge_u32 s2, 255")
e("s_cbranch_scc1 L_end")
if STAMP in (2, 3):
    e("s_mov_b32 s69, 0"); e("v_mov_b32 v167, 0"); e("s_memrealtime s[72:73]"); st2(True); e("v_writelane_b32 v167, s72, 62")
DIAG = opt("diag", 0)
if DIAG: e("s_memrealtime s[86:87]")
e("v_readfirstlane_b32 s36, v0")
e("v_and_b32 v0, 63, v0")
e("s_nop 2")
e("s_cmp_lt_u32 s36, 704")
e("s_cbranch_scc1 L_nz")
e("v_lshlrev_b32 v10, 2, v0")
e("v_mov_b32 v11, 0")
e(f"v_add_u32 v10, {FLG - 128}, v10")
e("ds_write_b32 v10, v11")
e("s_waitcnt lgkmcnt(0)")
lbl("L_nz")
e("s_load_dwordx2 s[16:17], s[0:1], 0")
e("s_load_dwordx2 s[20:21], s[0:1], 8")
e("s_load_dwordx2 s[28:29], s[0:1], 24")
e("s_load_dwordx2 s[60:61], s[0:1], 16")
e("s_load_dwordx2 s[32:33], s[0:1], 32")
if STAMP: e(f"s_load_dwordx2 s[14:15], s[0:1], {48 if STAMP == 2 else 40}")
e("s_barrier")
LADDER = opt("ladder", "3210")
e(f"s_setprio {LADDER[0]}")
e("s_and_b32 s3, s2, 7")
e("s_lshr_b32 s40, s2, 3")
e("s_lshl1_add_u32 s41, s3, s40")
e("s_sub_u32 s41, s41, 30")
e("s_mul_i32 s42, s3, 10")
e("s_cmp_ge_u32 s40, 30")
e("s_cselect_b32 s40, s41, s40")
e("s_cselect_b32 s42, 80, s42")
e("s_mul_i32 s39, s40, 43")
e("s_lshr_b32 s39, s39, 7")
e("s_mul_i32 s43, s39, 3")
e("s_sub_u32 s38, s40, s43")
e("s_add_u32 s37, s42, s39")
e("s_lshr_b32 s36, s36, 6")
e("s_lshr_b32 s47, s36, 3")
e("s_and_b32 s46, s36, 3")
e("s_lshr_b32 s27, s39, 2")
e("s_add_u32 s27, s27, s38")
if ROT == 0: e("s_mov_b32 s27, 0")
e("s_add_u32 s54, s27, s47")
e("s_sub_u32 s43, s54, 3")
e("s_min_u32 s54, s54, s43")
e("s_lshl_b32 s54, s54, 7")
e(f"s_mul_i32 s40, s37, {96*1152}")
e(f"s_mul_i32 s42, s46, {24*1152}")
e("s_add_u32 s44, s40, s42")
e("v_and_b32 v2, 7, v0")
e("v_lshrrev_b32 v3, 3, v0")
e("v_lshlrev_b32 v4, 4, v2")
e("v_mul_u32_u24 v8, 1152, v3")
e("v_add_u32 v5, v8, v4")
e("v_add_u32 v6, 9216, v5")
e("v_add_u32 v7, 18432, v5")
e(f"s_mov_b32 s18, {8192*1152}")
e("s_mov_b32 s19, 0x00020000")
e("s_movk_i32 s22, 1152")
e("s_mov_b32 s23, 0x00020000")
e(f"s_mov_b32 s30, {576*1152}")
e("s_mov_b32 s31, 0x00020000")
e("s_bitcmp1_b32 s36, 2")
e("s_cbranch_scc1 P_l2")

XR = 20; GP = 56; GF = 64; SA = 104; TP = 128; ON = 144; EX = 146
XE = opt("xe", 0)
XB = [0, 1, 0, 2, 0] if XE == 2 else [0, 1, 0, 1, 0]
vm = []
def gload(i):
    e(f"buffer_load_dwordx4 v[{GP+4*i}:{GP+4*i+3}], v4, s[20:23], s{54+i} offen"); vm.append(("g", i))
def xload(i):
    e(f"s_add_u32 s67, s44, s{54+i}")
    for rg in range(3):
        r = XR + XB[i]*12 + rg*4
        e(f"buffer_load_dwordx4 v[{r}:{r+3}], v{5+rg}, s[16:19], s67 offen {XFLAG}"); vm.append(("x", i))
def wdma(i):
    so = (i % 2)*PS
    e(f"s_mul_i32 s43, s{54+i}, 576")
    e("s_add_u32 s43, s43, s45")
    e("s_add_u32 s42, s43, 9216")
    for c in range(3):
        for gg in range(2):
            e(f"s_add_u32 m0, s{89+c}, {so + gg*1024}")
            e(f"s_add_u32 s65, s{43-gg}, s{86+c}" if False else f"s_add_u32 s92, s{43-gg}, s{86+c}")
            e(f"buffer_load_dwordx4 v{8+gg}, s[28:31], s92 offen {WFLAG} lds"); vm.append(("w", i))
def wait_min(tags):
    last = max(k for k, t in enumerate(vm) if t in tags)
    n = len([t for t in vm[last+1:] if t[1] != 4]) if tags[0][1] != 4 else len(vm)-1-last
    e(f"s_waitcnt vmcnt({min(n,63)})")
def kappa_bases():
    e("s_sub_u32 s43, s27, 3")
    e("s_min_u32 s27, s27, s43")
    e("s_lshl_b32 s27, s27, 7")
    for k, pk in ((64, 27), (65, 64)):
        e(f"s_add_u32 s{k}, s{pk}, 128")
        e(f"s_cmp_eq_u32 s{k}, 384")
        e(f"s_cselect_b32 s{k}, 0, s{k}")
    e("s_mov_b32 s24, 0")
    e("s_bitcmp1_b32 s39, 0")
    if ROT == 0: e("s_cmp_eq_u32 s24, 1")
    e("s_cselect_b32 s25, 2, 1")
    e("s_mulk_i32 s25, 384")
    e("s_sub_u32 s26, 1152, s25")
Bs = [24, 25, 26]; Rs = [27, 64, 65]
def wparams():
    e("v_and_b32 v9, 16, v0")
    e("v_lshlrev_b32 v9, 1, v9")
    e("v_xor_b32 v8, v5, v9")
    e("v_xor_b32 v9, 64, v8")
    e("s_mul_i32 s41, s38, 384")
    e(f"s_mul_i32 s42, s46, {16*1152}")
    e("s_add_u32 s45, s41, s42")
    e("s_lshl_b32 s49, s46, 11")
    e(f"s_mul_i32 s42, s47, {WS}")
    e("s_add_u32 s49, s49, s42")
    e(f"s_add_u32 s49, s49, {WOFF}")
    e("s_and_b32 s3, s39, 3")
    e("s_bcnt1_i32_b32 s3, s3")
    e("s_lshl_b32 s86, s3, 7")
    for k in (87, 88):
        e(f"s_add_u32 s{k}, s{k-1}, 128")
        e(f"s_cmp_eq_u32 s{k}, 384")
        e(f"s_cselect_b32 s{k}, 0, s{k}")
    for k in range(3):
        e(f"s_lshl_b32 s{89+k}, s{86+k}, 6")
        e(f"s_add_u32 s{89+k}, s{89+k}, s49")
EXC = 1
def exloads():
    e("s_add_u32 s48, s37, 8160")
    e("s_mul_i32 s48, s48, 1152")
    e("s_mov_b32 s60, s16")
    e("s_mov_b32 s61, s17")
    e("s_add_u32 s62, s48, 1152")
    e(f"s_min_u32 s62, s62, {8192*1152}")
    e("s_mov_b32 s63, 0x00020000")
    e(f"buffer_load_dwordx4 v[{EX}:{EX+3}], v1, s[60:63], s48 offen")
    e(f"buffer_load_dwordx4 v[{EX+4}:{EX+7}], v1, s[60:63], s48 offen offset:1024")
W0UP = 1
PV = 60
e("s_sub_u32 s43, s27, 3")
e("s_min_u32 s43, s27, s43")
e("s_lshl_b32 s43, s43, 7")
e("s_add_u32 s43, s43, s44")
e("s_waitcnt lgkmcnt(0)")
gload(0); xload(0)
e(f"buffer_load_dwordx4 v[{EX}:{EX+3}], v8, s[16:19], s43 offen")
e("s_add_u32 s42, s43, 9216")
e(f"buffer_load_dwordx4 v[{EX+4}:{EX+7}], v8, s[16:19], s42 offen")
e("s_add_u32 s43, s43, 18432")
e(f"buffer_load_dwordx4 v[{EX+8}:{EX+11}], v8, s[16:19], s43 offen")
lbl("P_l2")
wparams()
e("s_waitcnt lgkmcnt(0)")
e("s_cmp_lt_u32 s36, 4")
e("s_cbranch_scc1 P_l1")
e("s_bitcmp1_b32 s36, 2")
e("s_cbranch_scc0 C_a0")
e("v_lshlrev_b32 v1, 4, v0")
e("s_add_u32 s48, s37, 8160")
e("s_mul_i32 s48, s48, 1152")
e("s_mul_i32 s42, s46, 288")
e("v_lshlrev_b32 v10, 3, v0")
e("v_add_u32 v10, s42, v10")
e(f"buffer_load_dwordx2 v[{EX}:{EX+1}], v10, s[16:19], s48 offen")
e(f"buffer_load_dwordx2 v[{EX+2}:{EX+3}], v10, s[20:23], 0 offen")
e(f"buffer_load_dwordx4 v[{EX+12}:{EX+15}], off, s[16:19], s48")
e("s_cmp_ge_u32 s46, 2")
e("s_cbranch_scc1 C_a0")
e("s_cmp_eq_u32 s46, 1")
e("s_cselect_b32 s60, s60, s20")
e("s_cselect_b32 s61, s61, s21")
e("s_movk_i32 s62, 1152")
e("s_mov_b32 s63, 0x00020000")
e(f"s_mul_i32 s48, s46, {AUXP}")
e(f"s_add_u32 m0, s48, {AUX}")
e("s_nop 0")
e("buffer_load_dwordx4 v1, s[60:63], 0 offen lds")
e("buffer_load_dwordx4 v1, s[60:63], 0 offen offset:1024 lds")
lbl("C_a0")
n0 = len(vm); wdma(0); del vm[n0:]
e("s_bitcmp1_b32 s36, 2")
e("s_cbranch_scc1 L_cons")

lbl("P_l1")
e("s_xor_b32 s42, s36, 4")
e("s_cmp_lt_u32 s36, 8")
e("s_cselect_b32 s36, s42, s36")
e("v_lshlrev_b32 v1, 4, v0")
e("s_mov_b32 s68, 0")
e("s_mov_b32 s66, 0xffff0000")
kappa_bases()
for i in range(1, 5):
    t0, t1 = 2*i, min(2*i+1, 8)
    e(f"s_add_u32 s42, s{Bs[t0//3]}, s{Rs[t0%3]}")
    e(f"s_add_u32 s43, s{Bs[t1//3]}, s{Rs[t1%3]}")
    e("s_cmp_eq_u32 s47, 1")
    e(f"s_cselect_b32 s{54+i}, s43, s42")
if XE:
    e("s_cbranch_scc0 P_nx1")
    n0 = len(vm); xload(1); del vm[n0:]
    if XE == 2: e("s_branch P_nx2")
    lbl("P_nx1")
    if XE == 2:
        n0 = len(vm); xload(3); del vm[n0:]
        lbl("P_nx2")
e(f"s_mov_b32 s34, {8192*1152}")
e("s_mov_b32 s35, 0x00020000")
e("v_lshrrev_b32 v10, 2, v3")
e("v_sub_u32 v10, 0, v10")
e("v_xor_b32 v10, v10, v2")
e("v_and_b32 v10, 3, v10")
e("v_lshlrev_b32 v10, 4, v10")
e("v_lshl_add_u32 v10, v3, 6, v10")
e("v_lshrrev_b32 v11, 2, v2")
e(f"v_mul_u32_u24 v11, {XH}, v11")
e("s_and_b32 s43, s46, 1")
e("s_lshl_b32 s43, s43, 5")
e("v_xor_b32 v10, s43, v10")
e("s_mul_i32 s42, s46, 1536")
e(f"s_mul_i32 s43, s47, {XS}")
e("s_add_u32 s42, s42, s43")
e("v_xor_b32 v12, 32, v10")
e("v_add3_u32 v10, v10, v11, s42")
e("v_add3_u32 v11, v12, v11, s42")
e(f"v_add_u32 v12, {PS}, v10")
e(f"v_add_u32 v13, {PS}, v11")
e("s_lshl_b32 s42, s47, 4")
e("s_lshl_b32 s43, s46, 2")
e("s_add_u32 s42, s42, s43")
e(f"s_add_u32 s42, s42, {FLG}")
e("v_mov_b32 v16, s42")
e("v_xor_b32 v15, 16, v16")
e(f"v_add_u32 v15, {F_CONV}, v15")
e("v_and_b32 v17, 3, v0")
e("v_lshlrev_b32 v17, 2, v17")
e(f"v_add_u32 v17, {FLG}, v17")
M1 = STATS in ("mfma", "mfma1"); M2 = STATS in ("mfma", "mfma2")
DB = STATS == "db"

def exstats():
    src, dst = EX+16, EX+18
    for mod in ["quad_perm:[1,0,3,2]", "quad_perm:[2,3,0,1]", "row_half_mirror", "row_mirror"]:
        e("s_nop 1")
        e(f"v_add_f32_dpp v{dst}, v{src}, v{src} {mod} row_mask:0xf bank_mask:0xf")
        e(f"v_add_f32_dpp v{dst+1}, v{src+1}, v{src+1} {mod} row_mask:0xf bank_mask:0xf")
        src, dst = dst, src
    e("s_nop 1")
    for r, base in ((src, 76), (src+1, 80)):
        for k in range(4): e(f"v_readlane_b32 s{base+k}, v{r}, {16*k}")
    e("s_nop 3")
    for r, base in ((src, 76), (src+1, 80)):
        e(f"v_mov_b32 v{r}, s{base}")
        for k in range(1, 4): e(f"v_add_f32 v{r}, s{base+k}, v{r}")
    finalize_stats([(src, src+1, TP, EX+8)])
    e(f"v_mov_b32 v14, {STATT + 98*8}")
    e(f"ds_write_b64 v14, v[{src}:{src+1}]")
if not EXC:
    e("s_cmp_lg_u32 s36, 8")
    e("s_cbranch_scc1 P_noex")
    exstats()
lbl("P_noex")

def gunpack(i):
    for k in range(4):
        e(f"v_lshlrev_b32 v{GF+8*i+2*k}, 16, v{GP+4*i+k}")
        e(f"v_and_b32 v{GF+8*i+2*k+1}, s66, v{GP+4*i+k}")
def convert(i):
    gf = GF + 8*i
    for rg in range(3):
        regs = [XR + XB[i]*12 + rg*4 + k for k in range(4)]
        S1 = SA + rg*8; S2 = S1 + 4
        tb = TP + (rg % 2)*8
        mm = []
        for h in range(2):
            x = regs[2*h]
            if M1: mm.append(f"v_mfma_f32_4x4x4_16b_bf16 v[{S1}:{S1+3}], v[{ON}:{ON+1}], v[{x}:{x+1}], v[{S1}:{S1+3}]")
            if M2: mm.append(f"v_mfma_f32_4x4x4_16b_bf16 v[{S2}:{S2+3}], v[{x}:{x+1}], v[{x}:{x+1}], v[{S2}:{S2+3}]")
        for k in range(4):
            if mm and (len(mm) == 4 or k % 2 == 0 or (M1 and M2)): e(mm.pop(0))
            e(f"v_lshlrev_b32 v{tb+2*k}, 16, v{regs[k]}")
            e(f"v_and_b32 v{tb+2*k+1}, s66, v{regs[k]}")
        assert not mm
        for k in range(8): e(f"v_sub_f32 v{tb+k}, v{tb+k}, v{PV+rg}")
        for k in range(4):
            lo, hi = tb+2*k, tb+2*k+1
            if DB or opt("yabl", 0): continue
            if i == 0 and k == 0:
                e(f"v_add_f32 v{S1}, v{lo}, v{hi}")
                e(f"v_mul_f32 v{S2}, v{lo}, v{lo}")
                e(f"v_mul_f32 v{S2+1}, v{hi}, v{hi}")
            elif i == 0 and k == 1:
                e(f"v_add_f32 v{S1+1}, v{lo}, v{hi}")
                e(f"v_fmac_f32 v{S2}, v{lo}, v{lo}")
                e(f"v_fmac_f32 v{S2+1}, v{hi}, v{hi}")
            else:
                e(f"v_add_f32 v{S1}, v{S1}, v{lo}")
                e(f"v_add_f32 v{S1+1}, v{S1+1}, v{hi}")
                e(f"v_fmac_f32 v{S2}, v{lo}, v{lo}")
                e(f"v_fmac_f32 v{S2+1}, v{hi}, v{hi}")
        for k in range(4):
            lo, hi = tb+2*k, tb+2*k+1
            e(f"v_mul_f32 v{lo}, v{lo}, v{gf+2*k}")
            e(f"v_mul_f32 v{hi}, v{hi}, v{gf+2*k+1}")
        for k in range(4):
            e(f"v_cvt_pk_bf16_f32 v{regs[k]}, v{tb+2*k}, v{tb+2*k+1}")
        if opt("w64", 0):
            e(f"ds_write_b64 v{10+2*(i%2)+(rg&1)}, v[{regs[0]}:{regs[1]}] offset:{rg*512}")
            e(f"ds_write_b64 v{10+2*(i%2)+(rg&1)}, v[{regs[2]}:{regs[3]}] offset:{rg*512+8}")
        else:
            e(f"ds_write_b128 v{10+2*(i%2)+(rg&1)}, v[{regs[0]}:{regs[3]}] offset:{rg*512}")
def capture(fn, *args):
    global out
    save = out; out = []; n0 = len(vm)
    fn(*args)
    lines = out; out = save
    tags = vm[n0:]; del vm[n0:]
    groups = []; cur = []
    for l in lines:
        cur.append(l)
        if "buffer_load" in l: groups.append((cur, tags[len(groups)])); cur = []
    assert not cur
    return groups
def convert_with(i, groups):
    global out
    save = out; out = []
    convert(i)
    lines = out; out = save
    if opt("wend", 0):
        lines = [l for l in lines if "ds_write" not in l] + (["    s_waitcnt vmcnt(%d)" % (3 if i in (1, 2) else 0)] if opt("wend", 0) == 2 and i >= 1 else []) + [l for l in lines if "ds_write" in l]
    if opt("novalu", 0) and i >= 1: lines = [l for l in lines if "ds_write" in l] + ["    s_nop 0"]*40
    if opt("nowr", 0) and i >= 1: lines = [l for l in lines if "ds_write" not in l]
    if opt("nodma", 0) and i >= 2:
        groups = [([l.replace("buffer_load_dwordx4 v8", "buffer_load_dwordx4 v[148:151], v8").replace("buffer_load_dwordx4 v9", "buffer_load_dwordx4 v[148:151], v9").replace(" lds", "") for l in g[0]], g[1]) if g is not None else None for g in groups]
    if opt("novm", 0) and i >= 2:
        groups = [([l for l in g[0] if "buffer_load" not in l], g[1]) if g is not None else None for g in groups]
    if not groups:
        out.extend(lines); return
    step = max(1, int((len(lines) - 8) * SPAN) // len(groups))
    gi = 0
    for k, l in enumerate(lines):
        if gi < len(groups) and k == gi*step:
            if groups[gi] is not None:
                out.extend(groups[gi][0]); vm.append(groups[gi][1])
            gi += 1
        out.append(l)
    assert gi == len(groups)
st2()
skid = [0]
def cond(groups, br):
    r = []
    for gr in groups:
        if gr is None: r.append(None); continue
        skid[0] += 1
        r.append(([f"    {br} P_sk{skid[0]}"] + gr[0] + [f"P_sk{skid[0]}:"], gr[1]))
    return r
def setvcc():
    e("s_cmp_eq_u32 s47, 1"); e("s_cselect_b64 vcc, -1, 0")
for i in range(5):
    if i == 4:
        e("s_cmp_eq_u32 s47, 1")
        e("s_cbranch_scc1 P_odd_done")
    if i >= 2:
        e(f"s_add_u32 s43, s47, {2*(i-2)+1}")
        spin(17, F_DONE, 18, "s43")
    if i == 0:
        if XE == 1:
            e("s_cmp_eq_u32 s47, 0"); e("s_cbranch_scc0 P_w0"); e("s_waitcnt vmcnt(0)"); lbl("P_w0"); e("s_waitcnt vmcnt(3)")
        elif W0UP:
            e("s_cmp_eq_u32 s47, 0"); e("s_cbranch_scc0 P_w0"); e("s_waitcnt vmcnt(0)"); lbl("P_w0"); e("s_waitcnt vmcnt(6)")
        else:
            e(f"s_waitcnt vmcnt({3 if XE == 2 else 0})")
    else:
        e("s_waitcnt vmcnt(0)")
    st2()
    groups = []
    nyoung = 0
    if i == 0:
        e("s_mov_b32 s43, 0x3e003e00")
        for k in range(4):
            for rg in range(3): e(f"v_dot2_f32_bf16 v{PV+rg}, v{EX+4*rg+k}, s43, {0 if k == 0 else 'v%d' % (PV+rg)}")
        gunpack(0)
        setvcc()
        groups = [None]*3 if W0UP else cond(capture(wdma, 0), "s_cbranch_vccz")
        xg = capture(xload, 1)
        if XE: groups += cond(xg, "s_cbranch_vccnz")
        else: groups += xg; nyoung = 3
    else:
        groups += capture(wdma, i)
        if i == 1: groups += capture(xload, 2); nyoung = 3
        if i == 2:
            xg = capture(xload, 3)
            if XE == 2: setvcc(); groups += cond(xg, "s_cbranch_vccz")
            else: groups += xg; nyoung = 3
    convert_with(i, groups)
    e(f"v_mov_b32 v19, {i+1}")
    if i == 0:
        e("s_cbranch_vccz P_r0")
        e(f"s_waitcnt vmcnt({nyoung})")
        lbl("P_r0")
    elif i == 2 and XE == 2:
        e("s_cbranch_vccz P_r2a"); e("s_waitcnt vmcnt(3)"); e("s_branch P_r2b"); lbl("P_r2a"); e("s_waitcnt vmcnt(0)"); lbl("P_r2b")
    else:
        e(f"s_waitcnt vmcnt({nyoung})")
    e("ds_write_b32 v16, v19")
    st2()
    if i+1 < len(LADDER): e(f"s_setprio {LADDER[i+1]}")
    if i == 0:
        spin(17, F_AUX, 18, 1)
        e("v_lshlrev_b32 v19, 1, v4")
        e(f"v_add_u32 v19, {GF32}, v19")
        for k in range(1, 5):
            e(f"s_lshl_b32 s43, s{54+k}, 1")
            e("v_add_u32 v18, s43, v19")
            e(f"ds_read_b128 v[{GF+8*k}:{GF+8*k+3}], v18")
            e(f"ds_read_b128 v[{GF+8*k+4}:{GF+8*k+7}], v18 offset:16")
        e("s_waitcnt lgkmcnt(0)")
    if i == 3:
        e("s_cmp_eq_u32 s47, 1"); e("s_cbranch_scc1 P_skipx4")
        xload(4)
        lbl("P_skipx4")
R = TP+8
def reduce8():
    e(f"s_setprio {opt('stprio', 3)}")
    e("s_nop 3")
    if M2:
        e("v_and_b32 v14, 3, v0")
        for k in range(1, 4): e(f"v_cmp_eq_u32 s[{74+2*k}:{75+2*k}], {k}, v14")
    for rg in range(3):
        S1 = SA + rg*8; S2 = S1 + 4
        if M1: e(f"v_mov_b32 v{TP+2*rg}, v{S1}")
        else: e(f"v_add_f32 v{TP+2*rg}, v{S1}, v{S1+1}")
        if M2:
            e(f"v_cndmask_b32 v{TP+2*rg+1}, v{S2}, v{S2+1}, s[76:77]")
            e(f"v_cndmask_b32 v{TP+2*rg+1}, v{TP+2*rg+1}, v{S2+2}, s[78:79]")
            e(f"v_cndmask_b32 v{TP+2*rg+1}, v{TP+2*rg+1}, v{S2+3}, s[80:81]")
        else: e(f"v_add_f32 v{TP+2*rg+1}, v{S2}, v{S2+1}")
    src, dst = TP, TP+8
    for mod in ["quad_perm:[1,0,3,2]", "quad_perm:[2,3,0,1]", "row_half_mirror"]:
        e("s_nop 1")
        for k in range(6): e(f"v_add_f32_dpp v{dst+k}, v{src+k}, v{src+k} {mod} row_mask:0xf bank_mask:0xf")
        src, dst = dst, src
    e("s_mul_i32 s42, s46, 192")
    e(f"s_add_u32 s42, s42, {STATT}")
    e("v_lshlrev_b32 v14, 3, v3")
    e("v_add_u32 v14, s42, v14")
    e("s_lshl_b32 s42, s46, 2")
    e(f"s_add_u32 s42, s42, {FLG+F_STATB}")
    e("v_mov_b32 v15, s42")
reduce8()
spin(15, 0, 18, 1)
for rg in range(3): e(f"ds_read_b64 v[{TP+2*rg}:{TP+2*rg+1}], v14 offset:{PART-STATT + rg*64}")
e("s_waitcnt lgkmcnt(0)")
for k in range(6): e(f"v_add_f32 v{R+k}, v{R+k}, v{TP+k}")
e("v_cmp_eq_u32 s[76:77], 1, v2")
e("v_cmp_eq_u32 s[78:79], 2, v2")
e("v_cmp_gt_u32 s[80:81], 3, v2")
e("v_lshl_add_u32 v14, v2, 6, v14")
e(f"v_cndmask_b32 v{R}, v{R}, v{R+2}, s[76:77]")
e(f"v_cndmask_b32 v{R+1}, v{R+1}, v{R+3}, s[76:77]")
e(f"v_cndmask_b32 v{R}, v{R}, v{R+4}, s[78:79]")
e(f"v_cndmask_b32 v{R+1}, v{R+1}, v{R+5}, s[78:79]")
e(f"v_cndmask_b32 v{PV}, v{PV}, v{PV+1}, s[76:77]")
e(f"v_cndmask_b32 v{PV}, v{PV}, v{PV+2}, s[78:79]")
finalize_stats([(R, R+1, TP, PV)])
e("s_mov_b64 exec, s[80:81]")
e(f"ds_write_b64 v14, v[{R}:{R+1}]")
e("s_mov_b64 exec, -1")
e("v_mov_b32 v19, 5")
e("ds_write_b32 v16, v19 offset:16")
st2()
e("s_branch L_store")
lbl("P_odd_done")
reduce8()
for rg in range(3): e(f"ds_write_b64 v14, v[{R+2*rg}:{R+2*rg+1}] offset:{PART-STATT + rg*64}")
e("v_mov_b32 v19, 1")
e("ds_write_b32 v15, v19")
st2()

lbl("L_store")
e("s_sub_u32 s46, s36, 4")
e("s_cmp_eq_u32 s46, 7")
e("s_cbranch_scc0 L_st1")
e("s_setprio 0")
exloads()
e(f"v_mov_b32 v{EX+9}, {STATT + 99*8}")
e(f"ds_read_b32 v{EX+8}, v{EX+9}")
e(f"v_mov_b32 v{EX+16}, 0"); e(f"v_mov_b32 v{EX+17}, 0")
e("s_waitcnt vmcnt(0) lgkmcnt(0)")
for i in range(8):
    x = EX+i; a_, b_ = TP, TP+1
    if i == 4: e("s_mov_b64 exec, 0xff")
    e(f"v_lshlrev_b32 v{a_}, 16, v{x}")
    e(f"v_and_b32 v{b_}, s66, v{x}")
    e(f"v_sub_f32 v{a_}, v{a_}, v{EX+8}")
    e(f"v_sub_f32 v{b_}, v{b_}, v{EX+8}")
    e(f"v_add_f32 v{EX+16}, v{EX+16}, v{a_}")
    e(f"v_fmac_f32 v{EX+17}, v{a_}, v{a_}")
    e(f"v_add_f32 v{EX+16}, v{EX+16}, v{b_}")
    e(f"v_fmac_f32 v{EX+17}, v{b_}, v{b_}")
e("s_mov_b64 exec, -1")
exstats()
e("v_mov_b32 v19, 1")
e(f"v_mov_b32 v14, {FLG + F_CONV}")
e("ds_write_b32 v14, v19")
e("s_branch L_fin")
lbl("L_st1")
e("s_setprio 0")
lbl("L_park")
e(f"s_sleep {opt('park', 2)}")
e(f"ds_read_b32 v18, v17 offset:{F_DONE}")
e("s_waitcnt lgkmcnt(0)")
e("v_cmp_le_u32 vcc, 8, v18")
if SAFE:
    e("s_add_u32 s68, s68, 1")
    e("s_bitcmp1_b32 s68, 18")
    e("s_cbranch_scc1 L_parked")
e("s_cmp_eq_u64 vcc, 0")
e("s_cbranch_scc1 L_park")
lbl("L_parked")
e("s_add_u32 s47, s46, 1")
e("s_cmp_eq_u32 s46, 6")
e("s_cbranch_scc1 L_xrow")
e(f"v_mul_u32_u24 v8, {OUTP}, v3")
e(f"s_mul_i32 s48, s46, {16*OUTP}")
e(f"s_add_u32 s48, s48, {OUTT}")
e("v_add3_u32 v8, v8, v4, s48")
e(f"s_mul_i32 s48, s46, {16*1152}")
e("s_add_u32 s48, s48, s40")
e("s_add_u32 s48, s48, s41")
e("s_add_u32 s49, s48, 9216")
st2()
spin(17, F_OUT, 18, "s47")
st2()
for jj in range(6): e(f"ds_read_b128 v[{20+4*jj}:{23+4*jj}], v8 offset:{(jj//3)*8*OUTP + (jj%3)*128}")
for jj in range(6):
    e(f"s_waitcnt lgkmcnt({5-jj})")
    e(f"buffer_store_dwordx4 v[{20+4*jj}:{23+4*jj}], v5, s[32:35], s{48+jj//3} offen offset:{(jj%3)*128} {OFLAG}")
e("s_branch L_fin")
lbl("L_xrow")
e(f"v_add_u32 v6, {OUTT + 98*OUTP}, v1")
e("s_add_u32 s48, s37, 8160")
e("s_mul_i32 s48, s48, 1152")
e("s_add_u32 s48, s48, s41")
st2()
spin(17, F_OUT, 18, "s47")
st2()
e("s_mov_b64 exec, 0xffffff")
e("ds_read_b128 v[44:47], v6")
e("s_waitcnt lgkmcnt(0)")
e(f"buffer_store_dwordx4 v[44:47], v1, s[32:35], s48 offen {OFLAG}")
e("s_branch L_fin")

def exconv():
    e(f"v_add_u32 v14, {AUX + 2*AUXP}, v1")
    e(f"v_mov_b32 v{EX+16}, 0"); e(f"v_mov_b32 v{EX+17}, 0")
    e(f"s_waitcnt vmcnt({6 if EXC else 0})")
    for i in range(8):
        x = EX+i; g = EX+8+i; a, b, c, d = TP, TP+1, TP+2, TP+3
        e(f"v_lshlrev_b32 v{a}, 16, v{x}")
        e(f"v_and_b32 v{b}, s66, v{x}")
        e(f"v_lshlrev_b32 v{c}, 16, v{g}")
        e(f"v_and_b32 v{d}, s66, v{g}")
        e(f"v_add_f32 v{EX+16}, v{EX+16}, v{a}")
        e(f"v_fmac_f32 v{EX+17}, v{a}, v{a}")
        e(f"v_add_f32 v{EX+16}, v{EX+16}, v{b}")
        e(f"v_fmac_f32 v{EX+17}, v{b}, v{b}")
        e(f"v_mul_f32 v{a}, v{a}, v{c}")
        e(f"v_mul_f32 v{b}, v{b}, v{d}")
        e(f"v_cvt_pk_bf16_f32 v{x}, v{a}, v{b}")
    e(f"ds_write_b128 v14, v[{EX}:{EX+3}]")
    e(f"ds_write_b128 v14, v[{EX+4}:{EX+7}] offset:1024")
    e("v_mov_b32 v19, 1")
    e(f"v_mov_b32 v14, {FLG + F_AUX + 16}")
    e("ds_write_b32 v14, v19")
if not EXC:
    lbl("P_extra")
    exconv()
    e("s_branch P_l0")
ACC = 20; XF = 104; WF = 132
lbl("L_cons")
e("s_mov_b32 s36, s46")
e(f"s_setprio {opt('c0prio', 3)}")
e("s_mov_b32 s68, 0")
e("s_mov_b32 s66, 0xffff0000")
kappa_bases()
for t in range(1, 9): e(f"s_add_u32 s{76+t}, s{Bs[t//3]}, s{Rs[t%3]}")
e("s_mov_b32 s85, 0")
e("v_and_b32 v6, 3, v0")
e("v_lshlrev_b32 v6, 2, v6")
e(f"v_add_u32 v6, {FLG}, v6")
e("s_lshl_b32 s48, s36, 2")
e(f"s_add_u32 s48, s48, {FLG}")
e("v_mov_b32 v7, s48")
e("v_and_b32 v1, 15, v0")
e("v_lshrrev_b32 v2, 4, v0")
e("v_lshrrev_b32 v4, 2, v1")
e("v_sub_u32 v4, 0, v4")
e("v_xor_b32 v4, v4, v2")
e("v_and_b32 v4, 3, v4")
e("v_lshlrev_b32 v4, 4, v4")
e("v_lshl_add_u32 v13, v1, 6, v4")
e("v_bfe_u32 v4, v0, 2, 2")
e("v_lshl_add_u32 v5, v2, 3, v4")
e("v_lshlrev_b32 v5, 7, v5")
e("v_and_b32 v8, 3, v0")
e("v_lshl_add_u32 v5, v8, 3, v5")
e("v_lshrrev_b32 v4, 1, v4")
e("v_and_b32 v8, 1, v2")
e("v_lshl_or_b32 v4, v8, 1, v4")
e("v_xor_b32 v4, s36, v4")
e("v_lshl_add_u32 v5, v4, 5, v5")
e(f"v_add_u32 v14, {WOFF}, v5")
e("v_min_u32 v4, 2, v1")
e(f"v_mul_u32_u24 v4, {AUXP}, v4")
e("v_lshl_add_u32 v4, v2, 4, v4")
e(f"v_add_u32 v12, {AUX}, v4")
e("v_add_u32 v15, s54, v12")
e(f"v_add_u32 v16, {PS}, v13")
e(f"v_add_u32 v17, {PS}, v14")
e("v_and_b32 v9, 7, v0")
e("v_lshlrev_b32 v9, 2, v9")
e("v_and_b32 v11, 16, v9")
e("v_mul_u32_u24 v11, 3, v11")
e(f"v_add3_u32 v9, v9, v11, {0}")
e(f"v_add_u32 v9, {FLG}, v9")
e("v_mov_b32 v19, 0")
e("v_mov_b32 v8, 1")
e("s_mov_b32 s53, 1")
e("s_mov_b32 s52, 1")
def xread(par, sp, T, alt=0, aux=15):
    x = XF + T*4
    if T < 6: return f"ds_read_b128 v[{x}:{x+3}], v{16 if alt else 13} offset:{par*XS + sp*XH + T*1024}"
    return f"ds_read_b128 v[{x}:{x+3}], v{aux} offset:{sp*64}"
def wreads(par, sp, alt=0):
    r = []
    for t in range(3):
        w = WF + (sp*3+t)*4
        o = par*WS + t*8192 + sp*4096
        r.append(f"ds_read_b64_tr_b16 v[{w}:{w+1}], v{17 if alt else 14} offset:{o}")
        r.append(f"ds_read_b64_tr_b16 v[{w+2}:{w+3}], v{17 if alt else 14} offset:{o+512}")
    return r
def mf(sp, T, t):
    c = ACC + (T*3+t)*4; w = WF + (sp*3+t)*4; x = XF + T*4
    return f"v_mfma_f32_16x16x32_bf16 v[{c}:{c+3}], v[{w}:{w+3}], v[{x}:{x+3}], v[{c}:{c+3}]"
e("v_lshlrev_b32 v11, 1, v10")
e(f"v_add_u32 v11, {GF32}, v11")
e(f"v_add_u32 v10, {AUX + 2*AUXP}, v10")
e("s_waitcnt vmcnt(6)")
e("s_mov_b32 s43, 0x3e003e00")
for k in range(4): e(f"v_dot2_f32_bf16 v{EX+10}, v{EX+12+k}, s43, {0 if k == 0 else 'v%d' % (EX+10)}")
e(f"v_mov_b32 v{EX+11}, {STATT + 99*8}")
for k in range(2):
    a_, b_, c_, d_ = EX+4, EX+5, EX+6+2*k, EX+7+2*k
    e(f"v_lshlrev_b32 v{a_}, 16, v{EX+k}")
    e(f"v_and_b32 v{b_}, s66, v{EX+k}")
    e(f"v_lshlrev_b32 v{c_}, 16, v{EX+2+k}")
    e(f"v_and_b32 v{d_}, s66, v{EX+2+k}")
    e(f"v_sub_f32 v{a_}, v{a_}, v{EX+10}")
    e(f"v_sub_f32 v{b_}, v{b_}, v{EX+10}")
    e(f"v_mul_f32 v{a_}, v{a_}, v{c_}")
    e(f"v_mul_f32 v{b_}, v{b_}, v{d_}")
    e(f"v_cvt_pk_bf16_f32 v{EX+k}, v{a_}, v{b_}")
e("s_mov_b32 exec_hi, 0xf")
e(f"ds_write_b64 v10, v[{EX}:{EX+1}]")
e(f"ds_write_b128 v11, v[{EX+6}:{EX+9}]")
e(f"ds_write_b32 v{EX+11}, v{EX+10}")
e("s_mov_b32 exec_hi, -1")
e("s_waitcnt vmcnt(0)")
e(f"ds_write_b32 v7, v8 offset:{F_AUX}")
e(f"s_setprio {CPRIO}")
st2()
spin(9, 0, 8, 1)
st2()
if DIAG: e("s_memrealtime s[88:89]"); e("s_waitcnt lgkmcnt(0)")
if STAMP == 2: e("s_memrealtime s[72:73]"); e("s_memtime s[74:75]"); e("s_waitcnt lgkmcnt(0)"); e("v_writelane_b32 v167, s72, 60"); e("v_writelane_b32 v167, s74, 58")
CHK = opt("chk", 1)
DNP = opt("dnp", 3)
def chunk_body(par):
    nx = 1-par; alt = par
    auxc = 15 if par == 0 else 18; auxn = 18 if par == 0 else 15
    body = []
    def need(sp, T): return [("x", sp, min(6, T + (WGRAN-1 if T % WGRAN == 0 else 0))), ("w", sp, 2)]
    w1 = wreads(par, 1)
    fill0 = {}
    if par == 0:
        fill0[0] = ["v_swap_b32 v13, v16"]; fill0[1] = ["v_swap_b32 v14, v17"]
    if opt("yabl", 0):
        for kk in (4, 8, 14, 18)[:(4 if par else 3)]:
            fill0.setdefault(kk, []).extend(["v_mfma_f32_16x16x32_bf16 v[156:159], v[160:163], v[160:163], v[156:159]", f"RD:ds_read_b128 v[160:163], v13 offset:{par*XS + kk*256}"])
    fill0[9] = ["s_mov_b32 m0, s52"]; fill0[10] = ["s_movrels_b32 s51, s76"]; fill0[12] = [f"v_add_u32 v{auxn}, s51, v12"]; fill0[13] = ["s_add_u32 s52, s52, 1"]
    if par == 1: fill0[15] = ["s_add_u32 s53, s53, 1"]; fill0[16] = ["s_mov_b32 s59, s53"]
    else: fill0[15] = ["s_min_u32 s59, s53, 4"]
    frpos = 3*(7+CHK) - 8
    for sp in range(2):
        wn = w1 if sp == 0 else wreads(nx, 0, alt)
        wstart = 3 if sp == 0 else 3*max(CHK, 1)
        pend = []
        for T in range(7):
            if sp == 1 and T == CHK: body.append(("chk", nx))
            if sp == 1 and T == DNP: body.append(("done",))
            for t in range(3):
                k = T*3+t
                body.append(("m", need(sp, T), mf(sp, T, t)))
                if sp == 0:
                    for it in fill0.get(k, []): body.append(("r", ("y",), it[3:]) if it.startswith("RD:") else ("x", it))
                if sp*21 + k == frpos: body.append(("r", ("f",), f"ds_read_b32 v8, v6 offset:{nx*16}"))
                if sp*21 + k == 3*(7+CHK) - 2: body.append(("cmp",))
                if sp == 1 and k == 3*DNP - 2: body.append(("x", "v_add_u32 v19, 1, v19"))
                if 0 <= k - wstart < 6: body.append(("r", ("w", 1-sp, (k-wstart)//2), wn[k-wstart]))
                elif pend and (sp == 0 or T >= CHK): body.append(pend.pop(0))
            rd = ("r", ("x", 1, T), xread(par, 1, T, 0, auxc)) if sp == 0 else ("r", ("x", 0, T), xread(nx, 0, T, alt, auxn))
            if sp == 0 or (T >= CHK and not pend): body.append(rd)
            else: pend.append(rd)
        while pend: body.append(pend.pop(0))
    return body
bodyA = chunk_body(0); bodyB = chunk_body(1)
bi = [i for i, it in enumerate(bodyB) if it[0] == "chk"][0]
init_reads = [it for it in bodyB[bi:] if it[0] == "r"]
for it in init_reads: e(it[2].replace("v16 ", "v13 ").replace("v17 ", "v14 "))
seq = [it[1] for it in init_reads]
lastwait = None
def waitfor(tags):
    global lastwait
    idx = max(max(i for i, tg in enumerate(seq) if tg == need) for need in tags)
    n = len(seq) - 1 - idx
    if lastwait is None or idx > lastwait:
        e(f"s_waitcnt lgkmcnt({min(n,15)})"); lastwait = idx
def emit(body):
    global out
    for it in body:
        if it[0] == "r":
            e(it[2]); seq.append(it[1])
        elif it[0] == "x":
            e(it[1])
        elif it[0] == "m":
            waitfor(it[1]); e(it[2])
        elif it[0] == "cmp":
            waitfor([("f",)])
            e("v_cmp_le_u32 vcc, s59, v8")
        elif it[0] == "chk":
            k = spin_id[0]; spin_id[0] += 1
            st2()
            e("s_cmp_eq_u64 vcc, exec")
            e(f"s_cbranch_scc0 SP_{k}")
            lbl(f"SP_ok{k}")
            st2()
            save = out; out = []
            lbl(f"SP_{k}")
            e(f"ds_read_b32 v8, v6 offset:{it[1]*16}")
            e("s_waitcnt lgkmcnt(0)")
            e("v_cmp_le_u32 vcc, s59, v8")
            if SAFE:
                e("s_add_u32 s68, s68, 1"); e("s_bitcmp1_b32 s68, 18"); e(f"s_cbranch_scc1 SP_ok{k}")
            e("s_cmp_eq_u64 vcc, exec")
            e(f"s_cbranch_scc0 SP_{k}")
            e(f"s_branch SP_ok{k}")
            deferred.extend(out); out = save
        elif it[0] == "done":
            waitfor([("x", 1, 6), ("w", 1, 2)])
            e(f"ds_write_b32 v7, v19 offset:{F_DONE}"); seq.append(("d",))
nm = 0; cut = None
for idx_, it in enumerate(bodyA):
    if it[0] == "m":
        if nm == 21: cut = idx_; break
        nm += 1
first = []
for it in bodyA[:cut]:
    if it[0] == "m":
        t_ = it[2]; first.append(("m", it[1], t_[:t_.rindex(",")] + ", 0"))
    elif it[0] == "x" and "v_swap" in it[1]: continue
    else: first.append(it)
emit(first)
e("s_branch C_mid")
lbl("C_loop")
seq = [it[1] for it in init_reads]; lastwait = None
emit(bodyA[:cut])
lbl("C_mid")
emit(bodyA[cut:])
emit(bodyB)
e("s_cmp_eq_u32 s53, 5")
e("s_cbranch_scc0 C_loop")
if DIAG: e("s_memrealtime s[90:91]")
G = [(0,0),(1,0),(6,0),(2,0),(0,1),(6,1),(1,1),(3,0),(2,1),(4,0),(3,1),(5,0),(4,1),(5,1)]
pairs = [156, 158, 160, 162, 164, 8, XF+0, XF+2, XF+24, XF+26, XF+4, XF+6]
SP_ = [10, 12]
C1P = {}; C2P = {}
bc = []
pi = 0
for t in range(3):
    for h in range(2):
        C1P[(t, h)] = pairs[pi]; C2P[(t, h)] = pairs[pi+1]; pi += 2
        for r in range(2):
            a_ = ACC + (6*3+t)*4 + 2*h + r
            bc.append(f"v_mov_b32_dpp v{C1P[(t,h)]+r}, v{a_} row_newbcast:0 row_mask:0xf bank_mask:0xf")
            bc.append(f"v_mov_b32_dpp v{C2P[(t,h)]+r}, v{a_} row_newbcast:1 row_mask:0xf bank_mask:0xf")
def sread(T): return ("r", ("s", T), f"ds_read_b64 v[{SP_[T%2]}:{SP_[T%2]+1}], v3 offset:{T*128}")
def E(T, pk):
    st = SP_[T % 2]; it = []
    A = [ACC + (T*3+t)*4 for t in range(3)]
    first_ = True
    for t in range(3):
        for h in range(2):
            a_ = A[t] + 2*h
            if pk: l = [f"v_pk_fma_f32 v[{a_}:{a_+1}], v[{a_}:{a_+1}], v[{st}:{st+1}], v[{C2P[(t,h)]}:{C2P[(t,h)]+1}] op_sel:[0,1,0] op_sel_hi:[1,1,1]"]
            else: l = [f"v_fma_f32 v{a_+r}, v{a_+r}, v{st+1}, v{C2P[(t,h)]+r}" for r in range(2)]
            for x in l:
                it.append(("xw", [("s", T)], x) if first_ else ("x", x)); first_ = False
    for t in range(3):
        for h in range(2):
            a_ = A[t] + 2*h
            if pk: it.append(("x", f"v_pk_fma_f32 v[{a_}:{a_+1}], v[{C1P[(t,h)]}:{C1P[(t,h)]+1}], v[{st}:{st+1}], v[{a_}:{a_+1}] op_sel:[0,0,0] op_sel_hi:[1,0,1]"))
            else: it += [("x", f"v_fmac_f32 v{a_+r}, v{C1P[(t,h)]+r}, v{st}") for r in range(2)]
    if T + 2 <= 5: it.append(sread(T+2))
    for t in range(3):
        it.append(("x", f"v_cvt_pk_bf16_f32 v{A[t]}, v{A[t]}, v{A[t]+1}"))
        it.append(("x", f"v_cvt_pk_bf16_f32 v{A[t]+1}, v{A[t]+2}, v{A[t]+3}"))
    it.append(("x", f"v_mov_b32 v19, {T+1}"))
    for t in range(3): it.append(("r", ("o",), f"ds_write_b64 v5, v[{A[t]}:{A[t]+1}] offset:{T*16*OUTP + t*128}"))
    it.append(("r", ("o",), f"ds_write_b32 v7, v19 offset:{F_OUT}"))
    return it
fill = {m: [] for m in range(42)}
w1 = wreads(0, 1, 1)
for k in range(6): fill[k].append(("r", ("w", 1, k//2), w1[k]))
for g_, (T, sp) in enumerate(G):
    if sp == 0: fill[3*g_+2].append(("r", ("x", 1, T), xread(0, 1, T, 1, 15)))
fill[6] += [("x", "v_and_b32 v4, 7, v0"), ("x", "v_cmp_gt_u32 vcc, 4, v4")]
fill[7] += [("x", "v_lshlrev_b32 v4, 2, v4"), ("x", f"v_add_u32 v4, {FLG+16}, v4")]
fill[9] += [("x", "v_cndmask_b32 v14, 8, 5, vcc"), ("r", ("f",), "ds_read_b32 v18, v4")]
fill[10] += [("x", "v_lshlrev_b32 v3, 3, v1"), ("x", f"v_add_u32 v3, {STATT}, v3")]
fill[12] += [("x", f"v_mul_u32_u24 v5, {OUTP}, v1"), ("x", "v_lshl_add_u32 v5, v2, 3, v5")]
fill[13] += [("x", "s_lshl_b32 s48, s36, 5"), ("x", f"s_add_u32 s48, s48, {OUTT}")]
fill[14] += [("x", "v_add_u32 v5, s48, v5")]
fill[16] += [("xw", [("f",)], "v_cmp_le_u32 vcc, v14, v18")]
fill[17] += [("chk2",), sread(0), sread(1)]
for k, l in enumerate(bc): fill[19 + min(k//5, 4)].append(("x", l))
for n_, T in enumerate((0, 1, 2)):
    it = E(T, False); per = -(-len(it)//6)
    for k, x in enumerate(it): fill[24 + 6*n_ + min(k//per, 5)].append(x)
seq = [it[1] for it in init_reads]; lastwait = None
def emit2(items):
    global out, lastwait
    for it in items:
        if it[0] == "r": e(it[2]); seq.append(it[1])
        elif it[0] == "x": e(it[1])
        elif it[0] == "xw": waitfor(it[1]); e(it[2])
        elif it[0] == "chk2":
            e("s_cmp_eq_u64 vcc, exec")
            e("s_cbranch_scc0 SP_L")
            lbl("SP_Lok")
            save = out; out = []
            lbl("SP_L")
            e("ds_read_b32 v18, v4")
            e("s_waitcnt lgkmcnt(0)")
            e("v_cmp_le_u32 vcc, v14, v18")
            if SAFE:
                e("s_add_u32 s68, s68, 1"); e("s_bitcmp1_b32 s68, 18"); e("s_cbranch_scc1 SP_Lok")
            e("s_cmp_eq_u64 vcc, exec")
            e("s_cbranch_scc0 SP_L")
            e("s_branch SP_Lok")
            deferred.extend(out); out = save
for g_, (T, sp) in enumerate(G):
    for t in range(3):
        waitfor([("x", sp, T), ("w", sp, 2)])
        e(mf(sp, T, t))
        emit2(fill[3*g_+t])
if STAMP == 2: e("s_memrealtime s[72:73]"); e("s_memtime s[74:75]"); e("s_waitcnt lgkmcnt(0)"); e("v_writelane_b32 v167, s72, 61"); e("v_writelane_b32 v167, s74, 59"); lastwait = len(seq)-1
e(f"v_mov_b32 v4, {FLG + F_CONV}")
for T in (3, 4, 5): emit2(E(T, True))
spin(4, 0, 18, 1); lastwait = len(seq)-1
emit2([sread(6)])
emit2(E(6, True))
e("s_branch L_fin2")
out.extend(deferred); deferred.clear()
lbl("L_fin2")
st2()
if DIAG in (2, 3):
    e("s_memrealtime s[92:93]"); e("s_waitcnt lgkmcnt(0)")
    if DIAG == 2: e("s_sub_u32 s94, s88, s86")
    else: e("s_sub_u32 s94, s90, s88")
    e("s_lshl_b32 s94, s94, 1")
    lbl("DG_a")
    e("s_memrealtime s[96:97]"); e("s_waitcnt lgkmcnt(0)")
    e("s_sub_u32 s95, s96, s92")
    e("s_cmp_lt_u32 s95, s94")
    e("s_cbranch_scc1 DG_a")
lbl("L_fin")
if DIAG == 1:
    e("s_waitcnt vmcnt(0)")
    e("s_memrealtime s[92:93]"); e("s_waitcnt lgkmcnt(0)")
    e("s_sub_u32 s94, s92, s86")
    lbl("DG_b")
    e("s_memrealtime s[96:97]"); e("s_waitcnt lgkmcnt(0)")
    e("s_sub_u32 s95, s96, s92")
    e("s_cmp_lt_u32 s95, s94")
    e("s_cbranch_scc1 DG_b")
if STAMP == 3:
    e("s_mov_b64 exec, -1")
    st2(); e("s_waitcnt vmcnt(0)"); st2()
    e("s_memrealtime s[74:75]")
    srd(56, 14, 256)
    e("v_readlane_b32 s72, v167, 62")
    e("s_waitcnt lgkmcnt(0)")
    e("s_cmp_lg_u32 s36, 9")
    e("s_cbranch_scc1 L_d2")
    e("s_sub_u32 s73, s74, s72")
    e("s_not_b32 s72, s72")
    e("v_mov_b32 v1, 0"); e("v_mov_b32 v2, s72"); e("v_mov_b32 v3, s74"); e("v_mov_b32 v4, s73")
    e("s_mov_b64 exec, 1")
    e("buffer_atomic_umax v2, v1, s[56:59], 0 offen")
    e("buffer_atomic_umax v3, v1, s[56:59], 0 offen offset:4")
    e("buffer_atomic_add v4, v1, s[56:59], 0 offen offset:8")
    e("s_branch L_end")
    lbl("L_d2")
    e("s_cmp_lg_u32 s2, 100")
    e("s_cbranch_scc1 L_end")
    e("s_cmp_lg_u32 s36, 0")
    e("s_cbranch_scc1 L_end")
    e("v_readlane_b32 s70, v167, 0")
    e("s_nop 3")
    e("v_subrev_u32 v167, s70, v167")
    e("v_lshlrev_b32 v1, 1, v0")
    e("v_add_u32 v1, 8, v1")
    e("s_mov_b32 exec_lo, 0x555554")
    e("s_mov_b32 exec_hi, 0")
    e("buffer_store_dword v167, v1, s[56:59], 0 offen")
if STAMP == 2:
    e("s_mov_b64 exec, -1")
    st2(); e("s_waitcnt vmcnt(0)"); st2()
    e("s_memrealtime s[72:73]"); e("s_memtime s[74:75]"); e("s_waitcnt lgkmcnt(0)"); e("v_writelane_b32 v167, s72, 63"); e("v_writelane_b32 v167, s74, 57")
    srd(56, 14, 1<<22)
    e("s_lshl_b32 s60, s2, 12")
    e("s_lshl_b32 s61, s36, 8")
    e("s_add_u32 s60, s60, s61")
    e("v_lshlrev_b32 v1, 2, v0")
    e("buffer_store_dword v167, v1, s[56:59], s60 offen")
lbl("L_end")

text = HDR + f"""; @launch grid=(256,1,1) block=({NW*64},1,1) lds={LDS_TOTAL}
.amdgcn_target "amdgcn-amd-amdhsa--gfx950"
.text
.globl {NAME}_kernel
.p2align 8
.type {NAME}_kernel,@function
{NAME}_kernel:
""" + "\n".join(out) + f"""
    s_endpgm
.section .rodata,"a"
.p2align 6
.amdhsa_kernel {NAME}_kernel
  .amdhsa_next_free_vgpr 168
  .amdhsa_next_free_sgpr 100
  .amdhsa_accum_offset 168
  .amdhsa_group_segment_fixed_size 0
  .amdhsa_kernarg_size 56
  .amdhsa_user_sgpr_count 2
  .amdhsa_user_sgpr_kernarg_segment_ptr 1
  .amdhsa_system_sgpr_workgroup_id_x 1
.end_amdhsa_kernel
"""
open(sys.argv[1], "w").write(text)
```

```python
import sys
NAME = "standalone__layernorm_linear__sampling"
opts = dict(a.split("=", 1) for a in sys.argv[2:] if "=" in a)
def opt(k, d): return type(d)(opts.get(k, d))
STAMP = opt("stamp", 0)
STATS = opt("stats", "plain")
XFLAG = opt("xflag", ""); WFLAG = opt("wflag", ""); OFLAG = opt("oflag", "nt")
BARPOS = opt("barpos", 3)
PPRIO = opt("pprio", 0); P0PRIO = opt("p0prio", 2); CPRIO = opt("cprio", 1)
ROT = opt("rot", 3); SAFE = opt("safe", 1); WGRAN = opt("wgran", 2)
SPAN = opt("span", 1.0); X1MODE = opt("x1mode", 1); ROLEPERM = opt("roleperm", 1)
NW = 12
out = []
def e(s): out.append("    " + s)
def lbl(s): out.append(s + ":")
HDR = open("cdna_kernels/%s.s.ref" % NAME).read().split("; Override launch")[0]

XH = 6208; XS = 12416; WS = 24576; WOFF = 2*XS; PS = 2*XS + 2*WS
AUX = 2*PS; AUXP = 2080
STATT = AUX + 3*AUXP
PART = STATT + 896
FLG = (PART + 768 + 127)//128*128
LDS_TOTAL = FLG + 128
OUTT = PS; OUTP = 400
GF32 = FLG + 128
LDS_TOTAL = GF32 + 2304
F_DONE, F_STATB, F_AUX, F_OUT, F_CONV = 32, 48, 64, 80, 96
SER = opt("ser", 0)
PF = 0
B0 = opt("b0", 1)
CVPRIO = opt("cvprio", -1); CVPRIO = None if CVPRIO < 0 else CVPRIO

def st2(force=False):
    if STAMP not in (2, 3): return
    if opt("light", 0) and not force: return
    e("s_memtime s[70:71]")
    e("s_waitcnt lgkmcnt(0)")
    e("s_mov_b32 m0, s69"); e("s_nop 0"); e("v_writelane_b32 v167, s70, m0")
    e("s_add_u32 s69, s69, 1")
def srd(d, b, n):
    e(f"s_mov_b32 s{d}, s{b}")
    e(f"s_and_b32 s{d+1}, s{b+1}, 0xffff")
    e(f"s_mov_b32 s{d+2}, {n}")
    e(f"s_mov_b32 s{d+3}, 0x00020000")
def finalize_stats(trips):
    seq = [
     "v_mul_f32 v{m}, 0x3ae38e39, v{m}",
     "v_mul_f32 v{q}, 0x3ae38e39, v{q}",
     "v_fma_f32 v{q}, -v{m}, v{m}, v{q}",
     "v_max_f32 v{q}, 0, v{q}",
     "v_add_f32 v{m}, v{m}, v{p}",
     "v_cvt_pk_bf16_f32 v{t}, v{m}, v{q}",
     "v_lshlrev_b32 v{m}, 16, v{t}",
     "v_sub_f32 v{m}, v{p}, v{m}",
     "v_and_b32 v{q}, 0xffff0000, v{t}",
     "v_add_f32 v{q}, 0x3727c5ac, v{q}",
     "v_cvt_pk_bf16_f32 v{t}, v{q}, v{q}",
     "v_lshlrev_b32 v{q}, 16, v{t}",
     "v_sqrt_f32 v{q}, v{q}",
     "NOP",
     "v_cvt_pk_bf16_f32 v{t}, v{q}, v{q}",
     "v_lshlrev_b32 v{q}, 16, v{t}",
     "v_rcp_f32 v{q}, v{q}",
     "NOP",
     "v_mul_f32 v{m}, v{m}, v{q}"]
    for s in seq:
        if s == "NOP": e("s_nop 0"); continue
        for (m, q, t, p) in trips: e(s.format(m=m, q=q, t=t, p=p))
spin_id = [0]
deferred = []
def spin(vaddr, off, vtmp, sneed, preread=False):
    global out
    k = spin_id[0]; spin_id[0] += 1
    save = None
    if preread:
        e(f"v_cmp_le_u32 vcc, {sneed}, v{vtmp}")
        e("s_cmp_eq_u64 vcc, exec")
        e(f"s_cbranch_scc0 SP_{k}")
        lbl(f"SP_ok{k}")
        save = out; out = []
    lbl(f"SP_{k}")
    if opt("slp", 0) and not preread: e(f"s_sleep {opt('slp', 0)}")
    e(f"ds_read_b32 v{vtmp}, v{vaddr} offset:{off}")
    e("s_waitcnt lgkmcnt(0)")
    e(f"v_cmp_le_u32 vcc, {sneed}, v{vtmp}")
    if SAFE:
        e("s_add_u32 s68, s68, 1")
        e("s_bitcmp1_b32 s68, 18")
        e(f"s_cbranch_scc1 SP_ok{k}")
    e("s_cmp_eq_u64 vcc, exec")
    e(f"s_cbranch_scc0 SP_{k}")
    if preread:
        e(f"s_branch SP_ok{k}")
        deferred.extend(out); out = save
    else:
        lbl(f"SP_ok{k}")

e("s_cmp_ge_u32 s2, 255")
e("s_cbranch_scc1 L_end")
if STAMP in (2, 3):
    e("s_mov_b32 s69, 0"); e("v_mov_b32 v167, 0"); e("s_memrealtime s[72:73]"); st2(True); e("v_writelane_b32 v167, s72, 62")
DIAG = opt("diag", 0)
if DIAG: e("s_memrealtime s[86:87]")
e("v_readfirstlane_b32 s36, v0")
e("v_and_b32 v0, 63, v0")
e("s_nop 2")
e("s_cmp_lt_u32 s36, 704")
e("s_cbranch_scc1 L_nz")
e("v_lshlrev_b32 v10, 2, v0")
e("v_mov_b32 v11, 0")
e(f"v_add_u32 v10, {FLG - 128}, v10")
e("ds_write_b32 v10, v11")
e("s_waitcnt lgkmcnt(0)")
lbl("L_nz")
e("s_load_dwordx2 s[16:17], s[0:1], 0")
e("s_load_dwordx2 s[20:21], s[0:1], 8")
e("s_load_dwordx2 s[28:29], s[0:1], 24")
e("s_load_dwordx2 s[60:61], s[0:1], 16")
e("s_load_dwordx2 s[32:33], s[0:1], 32")
if STAMP: e(f"s_load_dwordx2 s[14:15], s[0:1], {48 if STAMP == 2 else 40}")
e("s_barrier")
LADDER = opt("ladder", "3210")
e(f"s_setprio {LADDER[0]}")
e("s_and_b32 s3, s2, 7")
e("s_lshr_b32 s40, s2, 3")
e("s_lshl1_add_u32 s41, s3, s40")
e("s_sub_u32 s41, s41, 30")
e("s_mul_i32 s42, s3, 10")
e("s_cmp_ge_u32 s40, 30")
e("s_cselect_b32 s40, s41, s40")
e("s_cselect_b32 s42, 80, s42")
e("s_mul_i32 s39, s40, 43")
e("s_lshr_b32 s39, s39, 7")
e("s_mul_i32 s43, s39, 3")
e("s_sub_u32 s38, s40, s43")
e("s_add_u32 s37, s42, s39")
e("s_lshr_b32 s36, s36, 6")
e("s_lshr_b32 s47, s36, 3")
e("s_and_b32 s46, s36, 3")
e("s_lshr_b32 s27, s39, 2")
e("s_add_u32 s27, s27, s38")
if ROT == 0: e("s_mov_b32 s27, 0")
e("s_add_u32 s54, s27, s47")
e("s_sub_u32 s43, s54, 3")
e("s_min_u32 s54, s54, s43")
e("s_lshl_b32 s54, s54, 7")
e(f"s_mul_i32 s40, s37, {96*1152}")
e(f"s_mul_i32 s42, s46, {24*1152}")
e("s_add_u32 s44, s40, s42")
e("v_and_b32 v2, 7, v0")
e("v_lshrrev_b32 v3, 3, v0")
e("v_lshlrev_b32 v4, 4, v2")
e("v_mul_u32_u24 v8, 1152, v3")
e("v_add_u32 v5, v8, v4")
e("v_add_u32 v6, 9216, v5")
e("v_add_u32 v7, 18432, v5")
e(f"s_mov_b32 s18, {8192*1152}")
e("s_mov_b32 s19, 0x00020000")
e("s_movk_i32 s22, 1152")
e("s_mov_b32 s23, 0x00020000")
e(f"s_mov_b32 s30, {576*1152}")
e("s_mov_b32 s31, 0x00020000")
e("s_bitcmp1_b32 s36, 2")
e("s_cbranch_scc1 P_l2")

XR = 20; GP = 56; GF = 64; SA = 104; TP = 128; ON = 144; EX = 146
XE = opt("xe", 0)
XB = [0, 1, 0, 2, 0] if XE == 2 else [0, 1, 0, 1, 0]
vm = []
def gload(i):
    e(f"buffer_load_dwordx4 v[{GP+4*i}:{GP+4*i+3}], v4, s[20:23], s{54+i} offen"); vm.append(("g", i))
def xload(i):
    e(f"s_add_u32 s67, s44, s{54+i}")
    for rg in range(3):
        r = XR + XB[i]*12 + rg*4
        e(f"buffer_load_dwordx4 v[{r}:{r+3}], v{5+rg}, s[16:19], s67 offen {XFLAG}"); vm.append(("x", i))
def wdma(i):
    so = (i % 2)*PS
    e(f"s_mul_i32 s43, s{54+i}, 576")
    e("s_add_u32 s43, s43, s45")
    e("s_add_u32 s42, s43, 9216")
    for c in range(3):
        for gg in range(2):
            e(f"s_add_u32 m0, s{89+c}, {so + gg*1024}")
            e(f"s_add_u32 s65, s{43-gg}, s{86+c}" if False else f"s_add_u32 s92, s{43-gg}, s{86+c}")
            e(f"buffer_load_dwordx4 v{8+gg}, s[28:31], s92 offen {WFLAG} lds"); vm.append(("w", i))
def wait_min(tags):
    last = max(k for k, t in enumerate(vm) if t in tags)
    n = len([t for t in vm[last+1:] if t[1] != 4]) if tags[0][1] != 4 else len(vm)-1-last
    e(f"s_waitcnt vmcnt({min(n,63)})")
def kappa_bases():
    e("s_sub_u32 s43, s27, 3")
    e("s_min_u32 s27, s27, s43")
    e("s_lshl_b32 s27, s27, 7")
    for k, pk in ((64, 27), (65, 64)):
        e(f"s_add_u32 s{k}, s{pk}, 128")
        e(f"s_cmp_eq_u32 s{k}, 384")
        e(f"s_cselect_b32 s{k}, 0, s{k}")
    e("s_mov_b32 s24, 0")
    e("s_bitcmp1_b32 s39, 0")
    if ROT == 0: e("s_cmp_eq_u32 s24, 1")
    e("s_cselect_b32 s25, 2, 1")
    e("s_mulk_i32 s25, 384")
    e("s_sub_u32 s26, 1152, s25")
Bs = [24, 25, 26]; Rs = [27, 64, 65]
def wparams():
    e("v_and_b32 v9, 16, v0")
    e("v_lshlrev_b32 v9, 1, v9")
    e("v_xor_b32 v8, v5, v9")
    e("v_xor_b32 v9, 64, v8")
    e("s_mul_i32 s41, s38, 384")
    e(f"s_mul_i32 s42, s46, {16*1152}")
    e("s_add_u32 s45, s41, s42")
    e("s_lshl_b32 s49, s46, 11")
    e(f"s_mul_i32 s42, s47, {WS}")
    e("s_add_u32 s49, s49, s42")
    e(f"s_add_u32 s49, s49, {WOFF}")
    e("s_and_b32 s3, s39, 3")
    e("s_bcnt1_i32_b32 s3, s3")
    e("s_lshl_b32 s86, s3, 7")
    for k in (87, 88):
        e(f"s_add_u32 s{k}, s{k-1}, 128")
        e(f"s_cmp_eq_u32 s{k}, 384")
        e(f"s_cselect_b32 s{k}, 0, s{k}")
    for k in range(3):
        e(f"s_lshl_b32 s{89+k}, s{86+k}, 6")
        e(f"s_add_u32 s{89+k}, s{89+k}, s49")
EXC = 1
def exloads():
    e("s_add_u32 s48, s37, 8160")
    e("s_mul_i32 s48, s48, 1152")
    e("s_mov_b32 s60, s16")
    e("s_mov_b32 s61, s17")
    e("s_add_u32 s62, s48, 1152")
    e(f"s_min_u32 s62, s62, {8192*1152}")
    e("s_mov_b32 s63, 0x00020000")
    e(f"buffer_load_dwordx4 v[{EX}:{EX+3}], v1, s[60:63], s48 offen")
    e(f"buffer_load_dwordx4 v[{EX+4}:{EX+7}], v1, s[60:63], s48 offen offset:1024")
W0UP = 1
PV = 60
e("s_sub_u32 s43, s27, 3")
e("s_min_u32 s43, s27, s43")
e("s_lshl_b32 s43, s43, 7")
e("s_add_u32 s43, s43, s44")
e("s_waitcnt lgkmcnt(0)")
gload(0); xload(0)
e(f"buffer_load_dwordx4 v[{EX}:{EX+3}], v8, s[16:19], s43 offen")
e("s_add_u32 s42, s43, 9216")
e(f"buffer_load_dwordx4 v[{EX+4}:{EX+7}], v8, s[16:19], s42 offen")
e("s_add_u32 s43, s43, 18432")
e(f"buffer_load_dwordx4 v[{EX+8}:{EX+11}], v8, s[16:19], s43 offen")
lbl("P_l2")
wparams()
e("s_waitcnt lgkmcnt(0)")
e("s_cmp_lt_u32 s36, 4")
e("s_cbranch_scc1 P_l1")
e("s_bitcmp1_b32 s36, 2")
e("s_cbranch_scc0 C_a0")
e("v_lshlrev_b32 v1, 4, v0")
e("s_add_u32 s48, s37, 8160")
e("s_mul_i32 s48, s48, 1152")
e("s_mul_i32 s42, s46, 288")
e("v_lshlrev_b32 v10, 3, v0")
e("v_add_u32 v10, s42, v10")
e(f"buffer_load_dwordx2 v[{EX}:{EX+1}], v10, s[16:19], s48 offen")
e(f"buffer_load_dwordx2 v[{EX+2}:{EX+3}], v10, s[20:23], 0 offen")
e(f"buffer_load_dwordx4 v[{EX+12}:{EX+15}], off, s[16:19], s48")
e("s_cmp_ge_u32 s46, 2")
e("s_cbranch_scc1 C_a0")
e("s_cmp_eq_u32 s46, 1")
e("s_cselect_b32 s60, s60, s20")
e("s_cselect_b32 s61, s61, s21")
e("s_movk_i32 s62, 1152")
e("s_mov_b32 s63, 0x00020000")
e(f"s_mul_i32 s48, s46, {AUXP}")
e(f"s_add_u32 m0, s48, {AUX}")
e("s_nop 0")
e("buffer_load_dwordx4 v1, s[60:63], 0 offen lds")
e("buffer_load_dwordx4 v1, s[60:63], 0 offen offset:1024 lds")
lbl("C_a0")
n0 = len(vm); wdma(0); del vm[n0:]
e("s_bitcmp1_b32 s36, 2")
e("s_cbranch_scc1 L_cons")

lbl("P_l1")
e("s_xor_b32 s42, s36, 4")
e("s_cmp_lt_u32 s36, 8")
e("s_cselect_b32 s36, s42, s36")
e("v_lshlrev_b32 v1, 4, v0")
e("s_mov_b32 s68, 0")
e("s_mov_b32 s66, 0xffff0000")
kappa_bases()
for i in range(1, 5):
    t0, t1 = 2*i, min(2*i+1, 8)
    e(f"s_add_u32 s42, s{Bs[t0//3]}, s{Rs[t0%3]}")
    e(f"s_add_u32 s43, s{Bs[t1//3]}, s{Rs[t1%3]}")
    e("s_cmp_eq_u32 s47, 1")
    e(f"s_cselect_b32 s{54+i}, s43, s42")
if XE:
    e("s_cbranch_scc0 P_nx1")
    n0 = len(vm); xload(1); del vm[n0:]
    if XE == 2: e("s_branch P_nx2")
    lbl("P_nx1")
    if XE == 2:
        n0 = len(vm); xload(3); del vm[n0:]
        lbl("P_nx2")
e(f"s_mov_b32 s34, {8192*1152}")
e("s_mov_b32 s35, 0x00020000")
e("v_lshrrev_b32 v10, 2, v3")
e("v_sub_u32 v10, 0, v10")
e("v_xor_b32 v10, v10, v2")
e("v_and_b32 v10, 3, v10")
e("v_lshlrev_b32 v10, 4, v10")
e("v_lshl_add_u32 v10, v3, 6, v10")
e("v_lshrrev_b32 v11, 2, v2")
e(f"v_mul_u32_u24 v11, {XH}, v11")
e("s_and_b32 s43, s46, 1")
e("s_lshl_b32 s43, s43, 5")
e("v_xor_b32 v10, s43, v10")
e("s_mul_i32 s42, s46, 1536")
e(f"s_mul_i32 s43, s47, {XS}")
e("s_add_u32 s42, s42, s43")
e("v_xor_b32 v12, 32, v10")
e("v_add3_u32 v10, v10, v11, s42")
e("v_add3_u32 v11, v12, v11, s42")
e(f"v_add_u32 v12, {PS}, v10")
e(f"v_add_u32 v13, {PS}, v11")
e("s_lshl_b32 s42, s47, 4")
e("s_lshl_b32 s43, s46, 2")
e("s_add_u32 s42, s42, s43")
e(f"s_add_u32 s42, s42, {FLG}")
e("v_mov_b32 v16, s42")
e("v_xor_b32 v15, 16, v16")
e(f"v_add_u32 v15, {F_CONV}, v15")
e("v_and_b32 v17, 3, v0")
e("v_lshlrev_b32 v17, 2, v17")
e(f"v_add_u32 v17, {FLG}, v17")
M1 = STATS in ("mfma", "mfma1"); M2 = STATS in ("mfma", "mfma2")
DB = STATS == "db"

def exstats():
    src, dst = EX+16, EX+18
    for mod in ["quad_perm:[1,0,3,2]", "quad_perm:[2,3,0,1]", "row_half_mirror", "row_mirror"]:
        e("s_nop 1")
        e(f"v_add_f32_dpp v{dst}, v{src}, v{src} {mod} row_mask:0xf bank_mask:0xf")
        e(f"v_add_f32_dpp v{dst+1}, v{src+1}, v{src+1} {mod} row_mask:0xf bank_mask:0xf")
        src, dst = dst, src
    e("s_nop 1")
    for r, base in ((src, 76), (src+1, 80)):
        for k in range(4): e(f"v_readlane_b32 s{base+k}, v{r}, {16*k}")
    e("s_nop 3")
    for r, base in ((src, 76), (src+1, 80)):
        e(f"v_mov_b32 v{r}, s{base}")
        for k in range(1, 4): e(f"v_add_f32 v{r}, s{base+k}, v{r}")
    finalize_stats([(src, src+1, TP, EX+8)])
    e(f"v_mov_b32 v14, {STATT + 98*8}")
    e(f"ds_write_b64 v14, v[{src}:{src+1}]")
if not EXC:
    e("s_cmp_lg_u32 s36, 8")
    e("s_cbranch_scc1 P_noex")
    exstats()
lbl("P_noex")

def gunpack(i):
    for k in range(4):
        e(f"v_lshlrev_b32 v{GF+8*i+2*k}, 16, v{GP+4*i+k}")
        e(f"v_and_b32 v{GF+8*i+2*k+1}, s66, v{GP+4*i+k}")
def convert(i):
    gf = GF + 8*i
    for rg in range(3):
        regs = [XR + XB[i]*12 + rg*4 + k for k in range(4)]
        S1 = SA + rg*8; S2 = S1 + 4
        tb = TP + (rg % 2)*8
        mm = []
        for h in range(2):
            x = regs[2*h]
            if M1: mm.append(f"v_mfma_f32_4x4x4_16b_bf16 v[{S1}:{S1+3}], v[{ON}:{ON+1}], v[{x}:{x+1}], v[{S1}:{S1+3}]")
            if M2: mm.append(f"v_mfma_f32_4x4x4_16b_bf16 v[{S2}:{S2+3}], v[{x}:{x+1}], v[{x}:{x+1}], v[{S2}:{S2+3}]")
        for k in range(4):
            if mm and (len(mm) == 4 or k % 2 == 0 or (M1 and M2)): e(mm.pop(0))
            e(f"v_lshlrev_b32 v{tb+2*k}, 16, v{regs[k]}")
            e(f"v_and_b32 v{tb+2*k+1}, s66, v{regs[k]}")
        assert not mm
        for k in range(8): e(f"v_sub_f32 v{tb+k}, v{tb+k}, v{PV+rg}")
        for k in range(4):
            lo, hi = tb+2*k, tb+2*k+1
            if DB or opt("yabl", 0): continue
            if i == 0 and k == 0:
                e(f"v_add_f32 v{S1}, v{lo}, v{hi}")
                e(f"v_mul_f32 v{S2}, v{lo}, v{lo}")
                e(f"v_mul_f32 v{S2+1}, v{hi}, v{hi}")
            elif i == 0 and k == 1:
                e(f"v_add_f32 v{S1+1}, v{lo}, v{hi}")
                e(f"v_fmac_f32 v{S2}, v{lo}, v{lo}")
                e(f"v_fmac_f32 v{S2+1}, v{hi}, v{hi}")
            else:
                e(f"v_add_f32 v{S1}, v{S1}, v{lo}")
                e(f"v_add_f32 v{S1+1}, v{S1+1}, v{hi}")
                e(f"v_fmac_f32 v{S2}, v{lo}, v{lo}")
                e(f"v_fmac_f32 v{S2+1}, v{hi}, v{hi}")
        for k in range(4):
            lo, hi = tb+2*k, tb+2*k+1
            e(f"v_mul_f32 v{lo}, v{lo}, v{gf+2*k}")
            e(f"v_mul_f32 v{hi}, v{hi}, v{gf+2*k+1}")
        for k in range(4):
            e(f"v_cvt_pk_bf16_f32 v{regs[k]}, v{tb+2*k}, v{tb+2*k+1}")
        if opt("w64", 0):
            e(f"ds_write_b64 v{10+2*(i%2)+(rg&1)}, v[{regs[0]}:{regs[1]}] offset:{rg*512}")
            e(f"ds_write_b64 v{10+2*(i%2)+(rg&1)}, v[{regs[2]}:{regs[3]}] offset:{rg*512+8}")
        else:
            e(f"ds_write_b128 v{10+2*(i%2)+(rg&1)}, v[{regs[0]}:{regs[3]}] offset:{rg*512}")
def capture(fn, *args):
    global out
    save = out; out = []; n0 = len(vm)
    fn(*args)
    lines = out; out = save
    tags = vm[n0:]; del vm[n0:]
    groups = []; cur = []
    for l in lines:
        cur.append(l)
        if "buffer_load" in l: groups.append((cur, tags[len(groups)])); cur = []
    assert not cur
    return groups
def convert_with(i, groups):
    global out
    save = out; out = []
    convert(i)
    lines = out; out = save
    if opt("wend", 0):
        lines = [l for l in lines if "ds_write" not in l] + (["    s_waitcnt vmcnt(%d)" % (3 if i in (1, 2) else 0)] if opt("wend", 0) == 2 and i >= 1 else []) + [l for l in lines if "ds_write" in l]
    if opt("novalu", 0) and i >= 1: lines = [l for l in lines if "ds_write" in l] + ["    s_nop 0"]*40
    if opt("nowr", 0) and i >= 1: lines = [l for l in lines if "ds_write" not in l]
    if opt("nodma", 0) and i >= 2:
        groups = [([l.replace("buffer_load_dwordx4 v8", "buffer_load_dwordx4 v[148:151], v8").replace("buffer_load_dwordx4 v9", "buffer_load_dwordx4 v[148:151], v9").replace(" lds", "") for l in g[0]], g[1]) if g is not None else None for g in groups]
    if opt("novm", 0) and i >= 2:
        groups = [([l for l in g[0] if "buffer_load" not in l], g[1]) if g is not None else None for g in groups]
    if not groups:
        out.extend(lines); return
    step = max(1, int((len(lines) - 8) * SPAN) // len(groups))
    gi = 0
    for k, l in enumerate(lines):
        if gi < len(groups) and k == gi*step:
            if groups[gi] is not None:
                out.extend(groups[gi][0]); vm.append(groups[gi][1])
            gi += 1
        out.append(l)
    assert gi == len(groups)
st2()
skid = [0]
def cond(groups, br):
    r = []
    for gr in groups:
        if gr is None: r.append(None); continue
        skid[0] += 1
        r.append(([f"    {br} P_sk{skid[0]}"] + gr[0] + [f"P_sk{skid[0]}:"], gr[1]))
    return r
def setvcc():
    e("s_cmp_eq_u32 s47, 1"); e("s_cselect_b64 vcc, -1, 0")
for i in range(5):
    if i == 4:
        e("s_cmp_eq_u32 s47, 1")
        e("s_cbranch_scc1 P_odd_done")
    if i >= 2:
        e(f"s_add_u32 s43, s47, {2*(i-2)+1}")
        spin(17, F_DONE, 18, "s43")
    if i == 0:
        if XE == 1:
            e("s_cmp_eq_u32 s47, 0"); e("s_cbranch_scc0 P_w0"); e("s_waitcnt vmcnt(0)"); lbl("P_w0"); e("s_waitcnt vmcnt(3)")
        elif W0UP:
            e("s_cmp_eq_u32 s47, 0"); e("s_cbranch_scc0 P_w0"); e("s_waitcnt vmcnt(0)"); lbl("P_w0"); e("s_waitcnt vmcnt(6)")
        else:
            e(f"s_waitcnt vmcnt({3 if XE == 2 else 0})")
    else:
        e("s_waitcnt vmcnt(0)")
    st2()
    groups = []
    nyoung = 0
    if i == 0:
        e("s_mov_b32 s43, 0x3e003e00")
        for k in range(4):
            for rg in range(3): e(f"v_dot2_f32_bf16 v{PV+rg}, v{EX+4*rg+k}, s43, {0 if k == 0 else 'v%d' % (PV+rg)}")
        gunpack(0)
        setvcc()
        groups = [None]*3 if W0UP else cond(capture(wdma, 0), "s_cbranch_vccz")
        xg = capture(xload, 1)
        if XE: groups += cond(xg, "s_cbranch_vccnz")
        else: groups += xg; nyoung = 3
    else:
        groups += capture(wdma, i)
        if i == 1: groups += capture(xload, 2); nyoung = 3
        if i == 2:
            xg = capture(xload, 3)
            if XE == 2: setvcc(); groups += cond(xg, "s_cbranch_vccz")
            else: groups += xg; nyoung = 3
    convert_with(i, groups)
    e(f"v_mov_b32 v19, {i+1}")
    if i == 0:
        e("s_cbranch_vccz P_r0")
        e(f"s_waitcnt vmcnt({nyoung})")
        lbl("P_r0")
    elif i == 2 and XE == 2:
        e("s_cbranch_vccz P_r2a"); e("s_waitcnt vmcnt(3)"); e("s_branch P_r2b"); lbl("P_r2a"); e("s_waitcnt vmcnt(0)"); lbl("P_r2b")
    else:
        e(f"s_waitcnt vmcnt({nyoung})")
    e("ds_write_b32 v16, v19")
    st2()
    if i+1 < len(LADDER): e(f"s_setprio {LADDER[i+1]}")
    if i == 0:
        spin(17, F_AUX, 18, 1)
        e("v_lshlrev_b32 v19, 1, v4")
        e(f"v_add_u32 v19, {GF32}, v19")
        for k in range(1, 5):
            e(f"s_lshl_b32 s43, s{54+k}, 1")
            e("v_add_u32 v18, s43, v19")
            e(f"ds_read_b128 v[{GF+8*k}:{GF+8*k+3}], v18")
            e(f"ds_read_b128 v[{GF+8*k+4}:{GF+8*k+7}], v18 offset:16")
        e("s_waitcnt lgkmcnt(0)")
    if i == 3:
        e("s_cmp_eq_u32 s47, 1"); e("s_cbranch_scc1 P_skipx4")
        xload(4)
        lbl("P_skipx4")
R = TP+8
def reduce8():
    e(f"s_setprio {opt('stprio', 3)}")
    e("s_nop 3")
    if M2:
        e("v_and_b32 v14, 3, v0")
        for k in range(1, 4): e(f"v_cmp_eq_u32 s[{74+2*k}:{75+2*k}], {k}, v14")
    for rg in range(3):
        S1 = SA + rg*8; S2 = S1 + 4
        if M1: e(f"v_mov_b32 v{TP+2*rg}, v{S1}")
        else: e(f"v_add_f32 v{TP+2*rg}, v{S1}, v{S1+1}")
        if M2:
            e(f"v_cndmask_b32 v{TP+2*rg+1}, v{S2}, v{S2+1}, s[76:77]")
            e(f"v_cndmask_b32 v{TP+2*rg+1}, v{TP+2*rg+1}, v{S2+2}, s[78:79]")
            e(f"v_cndmask_b32 v{TP+2*rg+1}, v{TP+2*rg+1}, v{S2+3}, s[80:81]")
        else: e(f"v_add_f32 v{TP+2*rg+1}, v{S2}, v{S2+1}")
    src, dst = TP, TP+8
    for mod in ["quad_perm:[1,0,3,2]", "quad_perm:[2,3,0,1]", "row_half_mirror"]:
        e("s_nop 1")
        for k in range(6): e(f"v_add_f32_dpp v{dst+k}, v{src+k}, v{src+k} {mod} row_mask:0xf bank_mask:0xf")
        src, dst = dst, src
    e("s_mul_i32 s42, s46, 192")
    e(f"s_add_u32 s42, s42, {STATT}")
    e("v_lshlrev_b32 v14, 3, v3")
    e("v_add_u32 v14, s42, v14")
    e("s_lshl_b32 s42, s46, 2")
    e(f"s_add_u32 s42, s42, {FLG+F_STATB}")
    e("v_mov_b32 v15, s42")
reduce8()
spin(15, 0, 18, 1)
for rg in range(3): e(f"ds_read_b64 v[{TP+2*rg}:{TP+2*rg+1}], v14 offset:{PART-STATT + rg*64}")
e("s_waitcnt lgkmcnt(0)")
for k in range(6): e(f"v_add_f32 v{R+k}, v{R+k}, v{TP+k}")
e("v_cmp_eq_u32 s[76:77], 1, v2")
e("v_cmp_eq_u32 s[78:79], 2, v2")
e("v_cmp_gt_u32 s[80:81], 3, v2")
e("v_lshl_add_u32 v14, v2, 6, v14")
e(f"v_cndmask_b32 v{R}, v{R}, v{R+2}, s[76:77]")
e(f"v_cndmask_b32 v{R+1}, v{R+1}, v{R+3}, s[76:77]")
e(f"v_cndmask_b32 v{R}, v{R}, v{R+4}, s[78:79]")
e(f"v_cndmask_b32 v{R+1}, v{R+1}, v{R+5}, s[78:79]")
e(f"v_cndmask_b32 v{PV}, v{PV}, v{PV+1}, s[76:77]")
e(f"v_cndmask_b32 v{PV}, v{PV}, v{PV+2}, s[78:79]")
finalize_stats([(R, R+1, TP, PV)])
e("s_mov_b64 exec, s[80:81]")
e(f"ds_write_b64 v14, v[{R}:{R+1}]")
e("s_mov_b64 exec, -1")
e("v_mov_b32 v19, 5")
e("ds_write_b32 v16, v19 offset:16")
st2()
e("s_branch L_store")
lbl("P_odd_done")
reduce8()
for rg in range(3): e(f"ds_write_b64 v14, v[{R+2*rg}:{R+2*rg+1}] offset:{PART-STATT + rg*64}")
e("v_mov_b32 v19, 1")
e("ds_write_b32 v15, v19")
st2()

lbl("L_store")
e("s_sub_u32 s46, s36, 4")
e("s_cmp_eq_u32 s46, 7")
e("s_cbranch_scc0 L_st1")
e("s_setprio 0")
exloads()
e(f"v_mov_b32 v{EX+9}, {STATT + 99*8}")
e(f"ds_read_b32 v{EX+8}, v{EX+9}")
e(f"v_mov_b32 v{EX+16}, 0"); e(f"v_mov_b32 v{EX+17}, 0")
e("s_waitcnt vmcnt(0) lgkmcnt(0)")
for i in range(8):
    x = EX+i; a_, b_ = TP, TP+1
    if i == 4: e("s_mov_b64 exec, 0xff")
    e(f"v_lshlrev_b32 v{a_}, 16, v{x}")
    e(f"v_and_b32 v{b_}, s66, v{x}")
    e(f"v_sub_f32 v{a_}, v{a_}, v{EX+8}")
    e(f"v_sub_f32 v{b_}, v{b_}, v{EX+8}")
    e(f"v_add_f32 v{EX+16}, v{EX+16}, v{a_}")
    e(f"v_fmac_f32 v{EX+17}, v{a_}, v{a_}")
    e(f"v_add_f32 v{EX+16}, v{EX+16}, v{b_}")
    e(f"v_fmac_f32 v{EX+17}, v{b_}, v{b_}")
e("s_mov_b64 exec, -1")
exstats()
e("v_mov_b32 v19, 1")
e(f"v_mov_b32 v14, {FLG + F_CONV}")
e("ds_write_b32 v14, v19")
e("s_branch L_fin")
lbl("L_st1")
e("s_setprio 0")
lbl("L_park")
if opt('park', 0): e(f"s_sleep {opt('park', 0)}")
e(f"ds_read_b32 v18, v17 offset:{F_DONE}")
e("s_waitcnt lgkmcnt(0)")
e("v_cmp_le_u32 vcc, 8, v18")
if SAFE:
    e("s_add_u32 s68, s68, 1")
    e("s_bitcmp1_b32 s68, 18")
    e("s_cbranch_scc1 L_parked")
e("s_cmp_eq_u64 vcc, 0")
e("s_cbranch_scc1 L_park")
lbl("L_parked")
e("s_add_u32 s47, s46, 1")
e("s_cmp_eq_u32 s46, 6")
e("s_cbranch_scc1 L_xrow")
e(f"v_mul_u32_u24 v8, {OUTP}, v3")
e(f"s_mul_i32 s48, s46, {16*OUTP}")
e(f"s_add_u32 s48, s48, {OUTT}")
e("v_add3_u32 v8, v8, v4, s48")
e(f"s_mul_i32 s48, s46, {16*1152}")
e("s_add_u32 s48, s48, s40")
e("s_add_u32 s48, s48, s41")
e("s_add_u32 s49, s48, 9216")
st2()
spin(17, F_OUT, 18, "s47")
st2()
for jj in range(6): e(f"ds_read_b128 v[{20+4*jj}:{23+4*jj}], v8 offset:{(jj//3)*8*OUTP + (jj%3)*128}")
for jj in range(6):
    e(f"s_waitcnt lgkmcnt({5-jj})")
    e(f"buffer_store_dwordx4 v[{20+4*jj}:{23+4*jj}], v5, s[32:35], s{48+jj//3} offen offset:{(jj%3)*128} {OFLAG}")
e("s_branch L_fin")
lbl("L_xrow")
e(f"v_add_u32 v6, {OUTT + 98*OUTP}, v1")
e("s_add_u32 s48, s37, 8160")
e("s_mul_i32 s48, s48, 1152")
e("s_add_u32 s48, s48, s41")
st2()
spin(17, F_OUT, 18, "s47")
st2()
e("s_mov_b64 exec, 0xffffff")
e("ds_read_b128 v[44:47], v6")
e("s_waitcnt lgkmcnt(0)")
e(f"buffer_store_dwordx4 v[44:47], v1, s[32:35], s48 offen {OFLAG}")
e("s_branch L_fin")

def exconv():
    e(f"v_add_u32 v14, {AUX + 2*AUXP}, v1")
    e(f"v_mov_b32 v{EX+16}, 0"); e(f"v_mov_b32 v{EX+17}, 0")
    e(f"s_waitcnt vmcnt({6 if EXC else 0})")
    for i in range(8):
        x = EX+i; g = EX+8+i; a, b, c, d = TP, TP+1, TP+2, TP+3
        e(f"v_lshlrev_b32 v{a}, 16, v{x}")
        e(f"v_and_b32 v{b}, s66, v{x}")
        e(f"v_lshlrev_b32 v{c}, 16, v{g}")
        e(f"v_and_b32 v{d}, s66, v{g}")
        e(f"v_add_f32 v{EX+16}, v{EX+16}, v{a}")
        e(f"v_fmac_f32 v{EX+17}, v{a}, v{a}")
        e(f"v_add_f32 v{EX+16}, v{EX+16}, v{b}")
        e(f"v_fmac_f32 v{EX+17}, v{b}, v{b}")
        e(f"v_mul_f32 v{a}, v{a}, v{c}")
        e(f"v_mul_f32 v{b}, v{b}, v{d}")
        e(f"v_cvt_pk_bf16_f32 v{x}, v{a}, v{b}")
    e(f"ds_write_b128 v14, v[{EX}:{EX+3}]")
    e(f"ds_write_b128 v14, v[{EX+4}:{EX+7}] offset:1024")
    e("v_mov_b32 v19, 1")
    e(f"v_mov_b32 v14, {FLG + F_AUX + 16}")
    e("ds_write_b32 v14, v19")
if not EXC:
    lbl("P_extra")
    exconv()
    e("s_branch P_l0")
ACC = 20; XF = 104; WF = 132
lbl("L_cons")
e("s_mov_b32 s36, s46")
e(f"s_setprio {opt('c0prio', 3)}")
e("s_mov_b32 s68, 0")
e("s_mov_b32 s66, 0xffff0000")
kappa_bases()
for t in range(1, 9): e(f"s_add_u32 s{76+t}, s{Bs[t//3]}, s{Rs[t%3]}")
e("s_mov_b32 s85, 0")
e("v_and_b32 v6, 3, v0")
e("v_lshlrev_b32 v6, 2, v6")
e(f"v_add_u32 v6, {FLG}, v6")
e("s_lshl_b32 s48, s36, 2")
e(f"s_add_u32 s48, s48, {FLG}")
e("v_mov_b32 v7, s48")
e("v_and_b32 v1, 15, v0")
e("v_lshrrev_b32 v2, 4, v0")
e("v_lshrrev_b32 v4, 2, v1")
e("v_sub_u32 v4, 0, v4")
e("v_xor_b32 v4, v4, v2")
e("v_and_b32 v4, 3, v4")
e("v_lshlrev_b32 v4, 4, v4")
e("v_lshl_add_u32 v13, v1, 6, v4")
e("v_bfe_u32 v4, v0, 2, 2")
e("v_lshl_add_u32 v5, v2, 3, v4")
e("v_lshlrev_b32 v5, 7, v5")
e("v_and_b32 v8, 3, v0")
e("v_lshl_add_u32 v5, v8, 3, v5")
e("v_lshrrev_b32 v4, 1, v4")
e("v_and_b32 v8, 1, v2")
e("v_lshl_or_b32 v4, v8, 1, v4")
e("v_xor_b32 v4, s36, v4")
e("v_lshl_add_u32 v5, v4, 5, v5")
e(f"v_add_u32 v14, {WOFF}, v5")
e("v_min_u32 v4, 2, v1")
e(f"v_mul_u32_u24 v4, {AUXP}, v4")
e("v_lshl_add_u32 v4, v2, 4, v4")
e(f"v_add_u32 v12, {AUX}, v4")
e("v_add_u32 v15, s54, v12")
e(f"v_add_u32 v16, {PS}, v13")
e(f"v_add_u32 v17, {PS}, v14")
e("v_and_b32 v9, 7, v0")
e("v_lshlrev_b32 v9, 2, v9")
e("v_and_b32 v11, 16, v9")
e("v_mul_u32_u24 v11, 3, v11")
e(f"v_add3_u32 v9, v9, v11, {0}")
e(f"v_add_u32 v9, {FLG}, v9")
e("v_mov_b32 v19, 0")
e("v_mov_b32 v8, 1")
e("s_mov_b32 s53, 1")
e("s_mov_b32 s52, 1")
def xread(par, sp, T, alt=0, aux=15):
    x = XF + T*4
    if T < 6: return f"ds_read_b128 v[{x}:{x+3}], v{16 if alt else 13} offset:{par*XS + sp*XH + T*1024}"
    return f"ds_read_b128 v[{x}:{x+3}], v{aux} offset:{sp*64}"
def wreads(par, sp, alt=0):
    r = []
    for t in range(3):
        w = WF + (sp*3+t)*4
        o = par*WS + t*8192 + sp*4096
        r.append(f"ds_read_b64_tr_b16 v[{w}:{w+1}], v{17 if alt else 14} offset:{o}")
        r.append(f"ds_read_b64_tr_b16 v[{w+2}:{w+3}], v{17 if alt else 14} offset:{o+512}")
    return r
def mf(sp, T, t):
    c = ACC + (T*3+t)*4; w = WF + (sp*3+t)*4; x = XF + T*4
    return f"v_mfma_f32_16x16x32_bf16 v[{c}:{c+3}], v[{w}:{w+3}], v[{x}:{x+3}], v[{c}:{c+3}]"
e("v_lshlrev_b32 v11, 1, v10")
e(f"v_add_u32 v11, {GF32}, v11")
e(f"v_add_u32 v10, {AUX + 2*AUXP}, v10")
e("s_waitcnt vmcnt(6)")
e("s_mov_b32 s43, 0x3e003e00")
for k in range(4): e(f"v_dot2_f32_bf16 v{EX+10}, v{EX+12+k}, s43, {0 if k == 0 else 'v%d' % (EX+10)}")
e(f"v_mov_b32 v{EX+11}, {STATT + 99*8}")
for k in range(2):
    a_, b_, c_, d_ = EX+4, EX+5, EX+6+2*k, EX+7+2*k
    e(f"v_lshlrev_b32 v{a_}, 16, v{EX+k}")
    e(f"v_and_b32 v{b_}, s66, v{EX+k}")
    e(f"v_lshlrev_b32 v{c_}, 16, v{EX+2+k}")
    e(f"v_and_b32 v{d_}, s66, v{EX+2+k}")
    e(f"v_sub_f32 v{a_}, v{a_}, v{EX+10}")
    e(f"v_sub_f32 v{b_}, v{b_}, v{EX+10}")
    e(f"v_mul_f32 v{a_}, v{a_}, v{c_}")
    e(f"v_mul_f32 v{b_}, v{b_}, v{d_}")
    e(f"v_cvt_pk_bf16_f32 v{EX+k}, v{a_}, v{b_}")
e("s_mov_b32 exec_hi, 0xf")
e(f"ds_write_b64 v10, v[{EX}:{EX+1}]")
e(f"ds_write_b128 v11, v[{EX+6}:{EX+9}]")
e(f"ds_write_b32 v{EX+11}, v{EX+10}")
e("s_mov_b32 exec_hi, -1")
e("s_waitcnt vmcnt(0)")
e(f"ds_write_b32 v7, v8 offset:{F_AUX}")
e(f"s_setprio {CPRIO}")
st2()
spin(9, 0, 8, 1)
st2()
if DIAG: e("s_memrealtime s[88:89]"); e("s_waitcnt lgkmcnt(0)")
if STAMP == 2: e("s_memrealtime s[72:73]"); e("s_memtime s[74:75]"); e("s_waitcnt lgkmcnt(0)"); e("v_writelane_b32 v167, s72, 60"); e("v_writelane_b32 v167, s74, 58")
CHK = opt("chk", 1)
DNP = opt("dnp", 3)
def chunk_body(par):
    nx = 1-par; alt = par
    auxc = 15 if par == 0 else 18; auxn = 18 if par == 0 else 15
    body = []
    def need(sp, T): return [("x", sp, min(6, T + (WGRAN-1 if T % WGRAN == 0 else 0))), ("w", sp, 2)]
    w1 = wreads(par, 1)
    fill0 = {}
    if par == 0:
        fill0[0] = ["v_swap_b32 v13, v16"]; fill0[1] = ["v_swap_b32 v14, v17"]
    if opt("yabl", 0):
        for kk in (4, 8, 14, 18)[:(4 if par else 3)]:
            fill0.setdefault(kk, []).extend(["v_mfma_f32_16x16x32_bf16 v[156:159], v[160:163], v[160:163], v[156:159]", f"RD:ds_read_b128 v[160:163], v13 offset:{par*XS + kk*256}"])
    fill0[9] = ["s_mov_b32 m0, s52"]; fill0[10] = ["s_movrels_b32 s51, s76"]; fill0[12] = [f"v_add_u32 v{auxn}, s51, v12"]; fill0[13] = ["s_add_u32 s52, s52, 1"]
    if par == 1: fill0[15] = ["s_add_u32 s53, s53, 1"]; fill0[16] = ["s_mov_b32 s59, s53"]
    else: fill0[15] = ["s_min_u32 s59, s53, 4"]
    frpos = 3*(7+CHK) - 8
    for sp in range(2):
        wn = w1 if sp == 0 else wreads(nx, 0, alt)
        wstart = 3 if sp == 0 else 3*max(CHK, 1)
        pend = []
        for T in range(7):
            if sp == 1 and T == CHK: body.append(("chk", nx))
            if sp == 1 and T == DNP: body.append(("done",))
            for t in range(3):
                k = T*3+t
                body.append(("m", need(sp, T), mf(sp, T, t)))
                if sp == 0:
                    for it in fill0.get(k, []): body.append(("r", ("y",), it[3:]) if it.startswith("RD:") else ("x", it))
                if sp*21 + k == frpos: body.append(("r", ("f",), f"ds_read_b32 v8, v6 offset:{nx*16}"))
                if sp*21 + k == 3*(7+CHK) - 2: body.append(("cmp",))
                if sp == 1 and k == 3*DNP - 2: body.append(("x", "v_add_u32 v19, 1, v19"))
                if 0 <= k - wstart < 6: body.append(("r", ("w", 1-sp, (k-wstart)//2), wn[k-wstart]))
                elif pend and (sp == 0 or T >= CHK): body.append(pend.pop(0))
            rd = ("r", ("x", 1, T), xread(par, 1, T, 0, auxc)) if sp == 0 else ("r", ("x", 0, T), xread(nx, 0, T, alt, auxn))
            if sp == 0 or (T >= CHK and not pend): body.append(rd)
            else: pend.append(rd)
        while pend: body.append(pend.pop(0))
    return body
bodyA = chunk_body(0); bodyB = chunk_body(1)
bi = [i for i, it in enumerate(bodyB) if it[0] == "chk"][0]
init_reads = [it for it in bodyB[bi:] if it[0] == "r"]
for it in init_reads: e(it[2].replace("v16 ", "v13 ").replace("v17 ", "v14 "))
seq = [it[1] for it in init_reads]
lastwait = None
def waitfor(tags):
    global lastwait
    idx = max(max(i for i, tg in enumerate(seq) if tg == need) for need in tags)
    n = len(seq) - 1 - idx
    if lastwait is None or idx > lastwait:
        e(f"s_waitcnt lgkmcnt({min(n,15)})"); lastwait = idx
def emit(body):
    global out
    for it in body:
        if it[0] == "r":
            e(it[2]); seq.append(it[1])
        elif it[0] == "x":
            e(it[1])
        elif it[0] == "m":
            waitfor(it[1]); e(it[2])
        elif it[0] == "cmp":
            waitfor([("f",)])
            e("v_cmp_le_u32 vcc, s59, v8")
        elif it[0] == "chk":
            k = spin_id[0]; spin_id[0] += 1
            st2()
            e("s_cmp_eq_u64 vcc, exec")
            e(f"s_cbranch_scc0 SP_{k}")
            lbl(f"SP_ok{k}")
            st2()
            save = out; out = []
            lbl(f"SP_{k}")
            e(f"ds_read_b32 v8, v6 offset:{it[1]*16}")
            e("s_waitcnt lgkmcnt(0)")
            e("v_cmp_le_u32 vcc, s59, v8")
            if SAFE:
                e("s_add_u32 s68, s68, 1"); e("s_bitcmp1_b32 s68, 18"); e(f"s_cbranch_scc1 SP_ok{k}")
            e("s_cmp_eq_u64 vcc, exec")
            e(f"s_cbranch_scc0 SP_{k}")
            e(f"s_branch SP_ok{k}")
            deferred.extend(out); out = save
        elif it[0] == "done":
            waitfor([("x", 1, 6), ("w", 1, 2)])
            e(f"ds_write_b32 v7, v19 offset:{F_DONE}"); seq.append(("d",))
nm = 0; cut = None
for idx_, it in enumerate(bodyA):
    if it[0] == "m":
        if nm == 21: cut = idx_; break
        nm += 1
first = []
for it in bodyA[:cut]:
    if it[0] == "m":
        t_ = it[2]; first.append(("m", it[1], t_[:t_.rindex(",")] + ", 0"))
    elif it[0] == "x" and "v_swap" in it[1]: continue
    else: first.append(it)
emit(first)
e("s_branch C_mid")
lbl("C_loop")
seq = [it[1] for it in init_reads]; lastwait = None
emit(bodyA[:cut])
lbl("C_mid")
emit(bodyA[cut:])
emit(bodyB)
e("s_cmp_eq_u32 s53, 5")
e("s_cbranch_scc0 C_loop")
if DIAG: e("s_memrealtime s[90:91]")
G = [(0,0),(1,0),(6,0),(2,0),(0,1),(6,1),(1,1),(3,0),(2,1),(4,0),(3,1),(5,0),(4,1),(5,1)]
pairs = [156, 158, 160, 162, 164, 8, XF+0, XF+2, XF+24, XF+26, XF+4, XF+6]
SP_ = [10, 12]
C1P = {}; C2P = {}
bc = []
pi = 0
for t in range(3):
    for h in range(2):
        C1P[(t, h)] = pairs[pi]; C2P[(t, h)] = pairs[pi+1]; pi += 2
        for r in range(2):
            a_ = ACC + (6*3+t)*4 + 2*h + r
            bc.append(f"v_mov_b32_dpp v{C1P[(t,h)]+r}, v{a_} row_newbcast:0 row_mask:0xf bank_mask:0xf")
            bc.append(f"v_mov_b32_dpp v{C2P[(t,h)]+r}, v{a_} row_newbcast:1 row_mask:0xf bank_mask:0xf")
def sread(T): return ("r", ("s", T), f"ds_read_b64 v[{SP_[T%2]}:{SP_[T%2]+1}], v3 offset:{T*128}")
def E(T, pk):
    st = SP_[T % 2]; it = []
    A = [ACC + (T*3+t)*4 for t in range(3)]
    first_ = True
    for t in range(3):
        for h in range(2):
            a_ = A[t] + 2*h
            if pk: l = [f"v_pk_fma_f32 v[{a_}:{a_+1}], v[{a_}:{a_+1}], v[{st}:{st+1}], v[{C2P[(t,h)]}:{C2P[(t,h)]+1}] op_sel:[0,1,0] op_sel_hi:[1,1,1]"]
            else: l = [f"v_fma_f32 v{a_+r}, v{a_+r}, v{st+1}, v{C2P[(t,h)]+r}" for r in range(2)]
            for x in l:
                it.append(("xw", [("s", T)], x) if first_ else ("x", x)); first_ = False
    for t in range(3):
        for h in range(2):
            a_ = A[t] + 2*h
            if pk: it.append(("x", f"v_pk_fma_f32 v[{a_}:{a_+1}], v[{C1P[(t,h)]}:{C1P[(t,h)]+1}], v[{st}:{st+1}], v[{a_}:{a_+1}] op_sel:[0,0,0] op_sel_hi:[1,0,1]"))
            else: it += [("x", f"v_fmac_f32 v{a_+r}, v{C1P[(t,h)]+r}, v{st}") for r in range(2)]
    if T + 2 <= 5: it.append(sread(T+2))
    for t in range(3):
        it.append(("x", f"v_cvt_pk_bf16_f32 v{A[t]}, v{A[t]}, v{A[t]+1}"))
        it.append(("x", f"v_cvt_pk_bf16_f32 v{A[t]+1}, v{A[t]+2}, v{A[t]+3}"))
    it.append(("x", f"v_mov_b32 v19, {T+1}"))
    for t in range(3): it.append(("r", ("o",), f"ds_write_b64 v5, v[{A[t]}:{A[t]+1}] offset:{T*16*OUTP + t*128}"))
    it.append(("r", ("o",), f"ds_write_b32 v7, v19 offset:{F_OUT}"))
    return it
fill = {m: [] for m in range(42)}
w1 = wreads(0, 1, 1)
for k in range(6): fill[k].append(("r", ("w", 1, k//2), w1[k]))
for g_, (T, sp) in enumerate(G):
    if sp == 0: fill[3*g_+2].append(("r", ("x", 1, T), xread(0, 1, T, 1, 15)))
fill[6] += [("x", "v_and_b32 v4, 7, v0"), ("x", "v_cmp_gt_u32 vcc, 4, v4")]
fill[7] += [("x", "v_lshlrev_b32 v4, 2, v4"), ("x", f"v_add_u32 v4, {FLG+16}, v4")]
fill[9] += [("x", "v_cndmask_b32 v14, 8, 5, vcc"), ("r", ("f",), "ds_read_b32 v18, v4")]
fill[10] += [("x", "v_lshlrev_b32 v3, 3, v1"), ("x", f"v_add_u32 v3, {STATT}, v3")]
fill[12] += [("x", f"v_mul_u32_u24 v5, {OUTP}, v1"), ("x", "v_lshl_add_u32 v5, v2, 3, v5")]
fill[13] += [("x", "s_lshl_b32 s48, s36, 5"), ("x", f"s_add_u32 s48, s48, {OUTT}")]
fill[14] += [("x", "v_add_u32 v5, s48, v5")]
fill[16] += [("xw", [("f",)], "v_cmp_le_u32 vcc, v14, v18")]
fill[17] += [("chk2",), sread(0), sread(1)]
for k, l in enumerate(bc): fill[19 + min(k//5, 4)].append(("x", l))
for n_, T in enumerate((0, 1, 2)):
    it = E(T, False); per = -(-len(it)//6)
    for k, x in enumerate(it): fill[24 + 6*n_ + min(k//per, 5)].append(x)
seq = [it[1] for it in init_reads]; lastwait = None
def emit2(items):
    global out, lastwait
    for it in items:
        if it[0] == "r": e(it[2]); seq.append(it[1])
        elif it[0] == "x": e(it[1])
        elif it[0] == "xw": waitfor(it[1]); e(it[2])
        elif it[0] == "chk2":
            e("s_cmp_eq_u64 vcc, exec")
            e("s_cbranch_scc0 SP_L")
            lbl("SP_Lok")
            save = out; out = []
            lbl("SP_L")
            e("ds_read_b32 v18, v4")
            e("s_waitcnt lgkmcnt(0)")
            e("v_cmp_le_u32 vcc, v14, v18")
            if SAFE:
                e("s_add_u32 s68, s68, 1"); e("s_bitcmp1_b32 s68, 18"); e("s_cbranch_scc1 SP_Lok")
            e("s_cmp_eq_u64 vcc, exec")
            e("s_cbranch_scc0 SP_L")
            e("s_branch SP_Lok")
            deferred.extend(out); out = save
for g_, (T, sp) in enumerate(G):
    for t in range(3):
        waitfor([("x", sp, T), ("w", sp, 2)])
        e(mf(sp, T, t))
        emit2(fill[3*g_+t])
if STAMP == 2: e("s_memrealtime s[72:73]"); e("s_memtime s[74:75]"); e("s_waitcnt lgkmcnt(0)"); e("v_writelane_b32 v167, s72, 61"); e("v_writelane_b32 v167, s74, 59"); lastwait = len(seq)-1
e(f"v_mov_b32 v4, {FLG + F_CONV}")
for T in (3, 4, 5): emit2(E(T, True))
spin(4, 0, 18, 1); lastwait = len(seq)-1
emit2([sread(6)])
emit2(E(6, True))
e("s_branch L_fin2")
out.extend(deferred); deferred.clear()
lbl("L_fin2")
st2()
if DIAG in (2, 3):
    e("s_memrealtime s[92:93]"); e("s_waitcnt lgkmcnt(0)")
    if DIAG == 2: e("s_sub_u32 s94, s88, s86")
    else: e("s_sub_u32 s94, s90, s88")
    e("s_lshl_b32 s94, s94, 1")
    lbl("DG_a")
    e("s_memrealtime s[96:97]"); e("s_waitcnt lgkmcnt(0)")
    e("s_sub_u32 s95, s96, s92")
    e("s_cmp_lt_u32 s95, s94")
    e("s_cbranch_scc1 DG_a")
lbl("L_fin")
if DIAG == 1:
    e("s_waitcnt vmcnt(0)")
    e("s_memrealtime s[92:93]"); e("s_waitcnt lgkmcnt(0)")
    e("s_sub_u32 s94, s92, s86")
    lbl("DG_b")
    e("s_memrealtime s[96:97]"); e("s_waitcnt lgkmcnt(0)")
    e("s_sub_u32 s95, s96, s92")
    e("s_cmp_lt_u32 s95, s94")
    e("s_cbranch_scc1 DG_b")
if STAMP == 3:
    e("s_mov_b64 exec, -1")
    st2(); e("s_waitcnt vmcnt(0)"); st2()
    e("s_memrealtime s[74:75]")
    srd(56, 14, 256)
    e("v_readlane_b32 s72, v167, 62")
    e("s_waitcnt lgkmcnt(0)")
    e("s_cmp_lg_u32 s36, 9")
    e("s_cbranch_scc1 L_d2")
    e("s_sub_u32 s73, s74, s72")
    e("s_not_b32 s72, s72")
    e("v_mov_b32 v1, 0"); e("v_mov_b32 v2, s72"); e("v_mov_b32 v3, s74"); e("v_mov_b32 v4, s73")
    e("s_mov_b64 exec, 1")
    e("buffer_atomic_umax v2, v1, s[56:59], 0 offen")
    e("buffer_atomic_umax v3, v1, s[56:59], 0 offen offset:4")
    e("buffer_atomic_add v4, v1, s[56:59], 0 offen offset:8")
    e("s_branch L_end")
    lbl("L_d2")
    e("s_cmp_lg_u32 s2, 100")
    e("s_cbranch_scc1 L_end")
    e("s_cmp_lg_u32 s36, 0")
    e("s_cbranch_scc1 L_end")
    e("v_readlane_b32 s70, v167, 0")
    e("s_nop 3")
    e("v_subrev_u32 v167, s70, v167")
    e("v_lshlrev_b32 v1, 1, v0")
    e("v_add_u32 v1, 8, v1")
    e("s_mov_b32 exec_lo, 0x555554")
    e("s_mov_b32 exec_hi, 0")
    e("buffer_store_dword v167, v1, s[56:59], 0 offen")
if STAMP == 2:
    e("s_mov_b64 exec, -1")
    st2(); e("s_waitcnt vmcnt(0)"); st2()
    e("s_memrealtime s[72:73]"); e("s_memtime s[74:75]"); e("s_waitcnt lgkmcnt(0)"); e("v_writelane_b32 v167, s72, 63"); e("v_writelane_b32 v167, s74, 57")
    srd(56, 14, 1<<22)
    e("s_lshl_b32 s60, s2, 12")
    e("s_lshl_b32 s61, s36, 8")
    e("s_add_u32 s60, s60, s61")
    e("v_lshlrev_b32 v1, 2, v0")
    e("buffer_store_dword v167, v1, s[56:59], s60 offen")
lbl("L_end")

DESC = """; Generated by work/gen_z18.py (hand-written generator).  Fused LayerNorm + Linear, one launch, 255 working WGs (96(+1) x 192 tiles).
"""
text = HDR + DESC + f"""; @launch grid=(256,1,1) block=({NW*64},1,1) lds={LDS_TOTAL}
.amdgcn_target "amdgcn-amd-amdhsa--gfx950"
.text
.globl {NAME}_kernel
.p2align 8
.type {NAME}_kernel,@function
{NAME}_kernel:
""" + "\n".join(out) + f"""
    s_endpgm
.section .rodata,"a"
.p2align 6
.amdhsa_kernel {NAME}_kernel
  .amdhsa_next_free_vgpr 168
  .amdhsa_next_free_sgpr 100
  .amdhsa_accum_offset 168
  .amdhsa_group_segment_fixed_size 0
  .amdhsa_kernarg_size 56
  .amdhsa_user_sgpr_count 2
  .amdhsa_user_sgpr_kernarg_segment_ptr 1
  .amdhsa_system_sgpr_workgroup_id_x 1
.end_amdhsa_kernel
"""
open(sys.argv[1], "w").write(text)
```
